```python
import torch

def _softmax(x, axis=-1):
    return torch.softmax(x, dim=axis)
def _gelu(x):
    return torch.nn.functional.gelu(x, approximate="tanh")
def _silu(x):
    return torch.nn.functional.silu(x)
def _sigmoid(x):
    return torch.sigmoid(x)
def _layernorm(x, axis=-1, eps=1e-5):
    m = x.mean(dim=axis, keepdim=True)
    v = x.var(dim=axis, keepdim=True, unbiased=False)
    return (x - m) / torch.sqrt(v + eps)
def _scatter_add(tgt, idx, src, axis=0):
    return tgt.clone().index_add_(axis, idx, src)
def _segment_sum(src, seg, n):
    out = torch.zeros((n,) + src.shape[1:], dtype=src.dtype)
    return out.index_add_(0, seg, src)
def _pad(x, pw):
    flat = tuple(v for pair in reversed(pw) for v in pair)
    return torch.nn.functional.pad(x, flat)

kernel_name = 'gated_mix__grouped_kv_mqa__grouped_kv_mqa__prompt'

def setup_inputs():

    _w = (lambda a: (lambda t: t.to(torch.bfloat16) if t.is_floating_point() else t)(torch.as_tensor(a)))
    def _A_setup():
        B, S, D, H = 1, 2048, 512, 32
        Dh = D // H
        return {
            "x": _w((lambda *s: torch.randn(*s, dtype=torch.bfloat16) * 0.05)(B, S, D)),
            "wq": _w((lambda *s: torch.randn(*s, dtype=torch.bfloat16) * 0.8)(D, H * Dh)),
            "wk": _w((lambda *s: torch.randn(*s, dtype=torch.bfloat16) * 0.8)(D, Dh)),
            "wv": _w((lambda *s: torch.randn(*s, dtype=torch.bfloat16) * 0.05)(D, Dh)),
            "wo": _w((lambda *s: torch.randn(*s, dtype=torch.bfloat16) * 0.05)(H * Dh, D)),
        }
    _A_in = _A_setup()

    def _B_setup():
        B, S, D, H = 1, 2048, 512, 32
        Dh = D // H
        return {
            "x": _w((lambda *s: torch.randn(*s, dtype=torch.bfloat16) * 0.05)(B, S, D)),
            "wq": _w((lambda *s: torch.randn(*s, dtype=torch.bfloat16) * 0.8)(D, H * Dh)),
            "wk": _w((lambda *s: torch.randn(*s, dtype=torch.bfloat16) * 0.8)(D, Dh)),
            "wv": _w((lambda *s: torch.randn(*s, dtype=torch.bfloat16) * 0.05)(D, Dh)),
            "wo": _w((lambda *s: torch.randn(*s, dtype=torch.bfloat16) * 0.05)(H * Dh, D)),
        }
    _B_in = _B_setup()

    return {
        "A_x": _A_in["x"],
        "A_wq": _A_in["wq"],
        "A_wk": _A_in["wk"],
        "A_wv": _A_in["wv"],
        "A_wo": _A_in["wo"],
        "B_x": _B_in["x"],
        "B_wq": _B_in["wq"],
        "B_wk": _B_in["wk"],
        "B_wv": _B_in["wv"],
        "B_wo": _B_in["wo"],
        "gate_w": _w((lambda *s: torch.randn(*s, dtype=torch.bfloat16) * 0.05)(512) * 16.0),
    }

def reference(A_x, A_wq, A_wk, A_wv, A_wo, B_x, B_wq, B_wk, B_wv, B_wo, gate_w):
    def _A_ref(x, wq, wk, wv, wo):
        B, S, D = x.shape
        H = 32
        Dh = D // H
        q = (lambda x, *d: x.permute(*d))((x @ wq).reshape(B, S, H, Dh), 0, 2, 1, 3)
        k = x @ wk
        v = x @ wv
        scores = torch.einsum("bhqd,bkd->bhqk", q, k) * (Dh ** -0.5)
        p = _softmax(scores, axis=-1)
        o = torch.einsum("bhqk,bkd->bhqd", p, v)
        return (lambda x, *d: x.permute(*d))(o, 0, 2, 1, 3).reshape(B, S, H * Dh) @ wo

    def _B_ref(x, wq, wk, wv, wo):
        B, S, D = x.shape
        H = 32
        Dh = D // H
        q = (lambda x, *d: x.permute(*d))((x @ wq).reshape(B, S, H, Dh), 0, 2, 1, 3)
        k = x @ wk
        v = x @ wv
        scores = torch.einsum("bhqd,bkd->bhqk", q, k) * (Dh ** -0.5)
        p = _softmax(scores, axis=-1)
        o = torch.einsum("bhqk,bkd->bhqd", p, v)
        return (lambda x, *d: x.permute(*d))(o, 0, 2, 1, 3).reshape(B, S, H * Dh) @ wo

    x = A_x
    g = _sigmoid((x * gate_w).sum(-1, keepdims=True))
    a = _A_ref(x, A_wq, A_wk, A_wv, A_wo)
    b = _B_ref(x, B_wq, B_wk, B_wv, B_wo)
    return g * a + (1 - g) * b
```

```python
import re

def vr(a, n=1):
    return f"v{a}" if n == 1 else f"v[{a}:{a+n-1}]"
def ar(a, n=1):
    return f"a{a}" if n == 1 else f"a[{a}:{a+n-1}]"
def sr(a, n=1):
    return f"s{a}" if n == 1 else f"s[{a}:{a+n-1}]"

class Asm:
    def __init__(self):
        self.lines = []
    def __call__(self, s):
        for l in s.strip("\n").split("\n"):
            l = l.strip()
            if l:
                self.lines.append("    " + l)
    def label(self, l):
        self.lines.append(f"{l}:")
    def raw(self, l):
        self.lines.append(l)
    def c(self, l):
        self.lines.append("    ; " + l)
    def text(self):
        return "\n".join(self.lines) + "\n"

REG_RE = re.compile(r"^(v|a|s)(\d+)$")
RNG_RE = re.compile(r"^(v|a|s)\[(\d+):(\d+)\]$")
def regs_of(op):
    op = op.strip()
    neg = op.lstrip("-")
    if neg.startswith("abs(") or neg.startswith("|"):
        neg = neg.replace("abs(", "").replace(")", "").replace("|", "")
    m = REG_RE.match(neg)
    if m:
        return {(m.group(1), int(m.group(2)))}
    m = RNG_RE.match(neg)
    if m:
        return {(m.group(1), i) for i in range(int(m.group(2)), int(m.group(3)) + 1)}
    if neg == "vcc":
        return {("s", "vcc_lo"), ("s", "vcc_hi")}
    if neg in ("vcc_lo", "vcc_hi"):
        return {("s", neg)}
    if neg == "exec":
        return {("s", "exec_lo"), ("s", "exec_hi")}
    if neg == "m0":
        return {("s", "m0")}
    return set()

TRANS = ("v_exp_f32", "v_log_f32", "v_rcp_f32", "v_rsq_f32", "v_sqrt_f32", "v_sin_f32", "v_cos_f32", "v_exp_f16", "v_rcp_iflag_f32")

def split_ops(rest):
    ops = []
    depth = 0
    cur = ""
    for ch in rest:
        if ch == "[":
            depth += 1
        if ch == "]":
            depth -= 1
        if ch == "," and depth == 0:
            ops.append(cur.strip()); cur = ""
        else:
            cur += ch
    if cur.strip():
        ops.append(cur.strip())
    mods = []
    if ops:
        parts = ops[-1].split()
        ops[-1] = parts[0]
        mods = parts[1:]
    return ops, mods

class Ins:
    pass

def parse(line):
    l = line.split(";")[0].strip()
    if not l or l.endswith(":") or l.startswith("."):
        return None
    sp = l.split(None, 1)
    mn = sp[0]
    rest = sp[1] if len(sp) > 1 else ""
    ops, mods = split_ops(rest)
    I = Ins()
    I.mn = mn; I.ops = ops; I.mods = mods; I.text = l
    I.w = set(); I.r = set()
    I.kind = "other"
    I.passes = 0
    I.srcC = set(); I.srcAB = set()
    I.store_data = set()
    base = re.sub(r"_(e32|e64|sdwa|dpp)$", "", mn)
    I.base = base
    if mn.startswith("v_mfma") or mn.startswith("v_smfmac"):
        I.kind = "mfma"
        I.passes = 8 if "32x32" in mn else 4
        I.w = regs_of(ops[0])
        I.srcAB = regs_of(ops[1]) | regs_of(ops[2])
        if mn.startswith("v_smfmac"):
            I.srcC = regs_of(ops[0]); I.srcAB |= regs_of(ops[3])
        else:
            I.srcC = regs_of(ops[3])
        I.r = I.srcAB | I.srcC
    elif mn.startswith("v_"):
        I.kind = "valu"
        if base.startswith("v_cmp"):
            I.w = regs_of(ops[0]); srcs = ops[1:]
        elif base in ("v_readfirstlane_b32", "v_readlane_b32"):
            I.w = regs_of(ops[0]); srcs = ops[1:]
        elif base in ("v_add_co_u32", "v_sub_co_u32", "v_addc_co_u32", "v_subb_co_u32"):
            I.w = regs_of(ops[0]) | regs_of(ops[1]); srcs = ops[2:]
        elif base.startswith("v_permlane") and "swap" in base:
            I.w = regs_of(ops[0]) | regs_of(ops[1]); srcs = ops
        else:
            I.w = regs_of(ops[0]); srcs = ops[1:]
            if base in ("v_fmac_f32", "v_mac_f32", "v_dot2c_f32_bf16", "v_writelane_b32") or "UNUSED_PRESERVE" in l:
                srcs = ops
        for o in srcs:
            I.r |= regs_of(o)
        if base == "v_cndmask_b32" and len(ops) == 3:
            I.r |= regs_of("vcc")
        I.trans = base in TRANS
    elif mn.startswith("ds_"):
        I.kind = "ds"
        if mn.startswith("ds_read") or mn.startswith("ds_bpermute") or mn.startswith("ds_permute") or mn.startswith("ds_swizzle"):
            I.w = regs_of(ops[0])
            for o in ops[1:]:
                I.r |= regs_of(o)
        else:
            for o in ops:
                I.r |= regs_of(o)
    elif mn.startswith("buffer_") or mn.startswith("global_") or mn.startswith("flat_"):
        I.kind = "vmem"
        allmods = mods
        is_lds = ("lds" in allmods) or ("_lds_" in mn)
        I.lds = is_lds
        if mn.startswith("buffer_inv") or mn.startswith("buffer_wbl2"):
            pass
        elif "load" in mn and not is_lds:
            I.w = regs_of(ops[0])
            for o in ops[1:]:
                I.r |= regs_of(o)
        elif "load" in mn and is_lds:
            for o in ops:
                I.r |= regs_of(o)
            I.r |= regs_of("m0")
        elif "store" in mn:
            for o in ops:
                I.r |= regs_of(o)
            if mn.startswith("buffer"):
                d = ops[0]
            else:
                d = ops[1]
            if mn.endswith("x4") or mn.endswith("x3"):
                I.store_data = regs_of(d)
        elif "atomic" in mn:
            for o in ops:
                I.r |= regs_of(o)
            if "sc0" in allmods:
                I.w = regs_of(ops[0])
    elif mn.startswith("s_"):
        I.kind = "salu"
        if mn == "s_nop":
            I.kind = "nop"
        elif mn.startswith("s_cmp") or mn.startswith("s_cbranch") or mn in ("s_branch", "s_barrier", "s_waitcnt", "s_endpgm", "s_setprio", "s_sleep"):
            for o in ops:
                I.r |= regs_of(o)
        else:
            if ops:
                I.w = regs_of(ops[0])
                for o in ops[1:]:
                    I.r |= regs_of(o)
            if "saveexec" in mn:
                I.w |= regs_of("exec"); I.r |= regs_of("exec")
    return I

def states(I):
    if I.kind == "nop":
        return int(I.ops[0], 0) + 1
    return 1

def isv(regs):
    return {r for r in regs if r[0] in ("v", "a")}
def iss(regs):
    return {r for r in regs if r[0] == "s"}

def check(lines, name="", maxlook=24):
    ins = [(i, parse(l)) for i, l in enumerate(lines)]
    ins = [(i, I) for i, I in ins if I is not None]
    errs = []
    for k, (li, C) in enumerate(ins):
        dist = 0
        j = k - 1
        while j >= 0 and dist < maxlook:
            P = ins[j][1]
            need = 0; why = ""
            def req(n, w):
                nonlocal need, why
                if n > need:
                    need = n; why = w
            if P.kind == "valu":
                wv = isv(P.w); ws = iss(P.w)
                if C.kind == "mfma" and wv & C.r:
                    req(2, "VALU write -> MFMA read")
                if C.kind == "valu":
                    if getattr(P, "trans", False) and not getattr(C, "trans", False) and wv & C.r:
                        req(1, "trans -> VALU")
                    if C.base in ("v_readfirstlane_b32", "v_readlane_b32") and wv & isv(C.r):
                        req(1, "VALU write -> readlane")
                    if C.base.startswith("v_permlane") and wv & C.r:
                        req(2, "VALU write -> permlane")
                    if ("dpp" in C.mn or any(m.startswith(("quad_perm", "row_", "wave_")) for m in C.mods)) and wv & C.r:
                        req(2, "VALU write -> DPP")
                    if ws & iss(C.r):
                        req(2, "VALU sgpr write -> VALU read")
                        if C.base in ("v_readlane_b32", "v_writelane_b32"):
                            req(4, "VALU sgpr write -> lane select")
                    if ("sdwa" in P.mn or "op_sel" in P.text) and wv & (C.r | C.w):
                        req(1, "SDWA/opsel -> VALU")
                if C.kind == "vmem" and ws & iss(C.r):
                    req(5, "VALU sgpr write -> VMEM read")
            if P.kind == "mfma":
                D = P.w
                n_rw = 12 if P.passes == 8 else 8
                n_c = 10 if P.passes == 8 else 6
                if C.kind == "valu" and D & (C.r | C.w):
                    req(n_rw, "MFMA D -> VALU")
                if C.kind in ("vmem", "ds") and D & (C.r | C.w):
                    req(n_rw, "MFMA D -> VMEM/DS")
                if C.kind == "mfma":
                    if D & C.srcAB:
                        req(n_rw, "MFMA D -> MFMA A/B")
                    if D & C.srcC:
                        if not (C.srcC == D and C.passes == P.passes):
                            req(n_c, "MFMA D -> MFMA C partial")
                    if D & C.w and not (C.srcC == D and C.passes == P.passes) :
                        req(n_c, "MFMA D -> MFMA D (WAW)")
                if C.kind == "valu" and P.srcC & C.w and not (D & C.w):
                    req(7 if P.passes == 8 else 3, "MFMA C read -> VALU write (WAR)")
            if P.kind == "salu" and ("s", "m0") in P.w and C.kind == "vmem" and getattr(C, "lds", False):
                req(1, "M0 write -> LDS DMA")
            if P.kind == "vmem" and P.store_data:
                if C.kind == "valu" and P.store_data & C.w:
                    req(2, "wide store data WAR (VALU)")
                elif P.store_data & C.w:
                    req(1, "wide store data WAR")
            if need > dist:
                errs.append(f"[{name}] line {li}: '{C.text}' needs {need} states after '{P.text}' ({why}), has {dist}")
            dist += states(P)
            j -= 1
    return errs
```

```python
import sys, math
from asmlib import *

NAME = "gated_mix__grouped_kv_mqa__grouped_kv_mqa__prompt"
KA = dict(x=0, wqA=8, wkA=16, wvA=24, woA=32, xB=40, wqB=48, wkB=56, wvB=64, woB=72, gw=80, out=88, dbg=96, ws=104)
WS_Q = 0
WS_KV = 4 << 20
WS_G = WS_KV + (256 << 10)
WS_O = 8 << 20
WS_SIZE = 12 << 20
CQ = 0.25 * math.log2(math.e)
import struct
def f2u(f): return struct.unpack("<I", struct.pack("<f", f))[0]

def srd(a, d, base, nbytes):
    a(f"s_mov_b32 s{d}, s{base}")
    a(f"s_and_b32 s{d+1}, s{base+1}, 0xffff")
    a(f"s_mov_b32 s{d+2}, {nbytes}")
    a(f"s_mov_b32 s{d+3}, 0x20000")

def kdesc(name, vgpr, sgpr=96, accum=None):
    if accum is None:
        accum = (vgpr + 3) // 4 * 4
    return f""".amdhsa_kernel {name}
  .amdhsa_next_free_vgpr {vgpr}
  .amdhsa_next_free_sgpr {sgpr}
  .amdhsa_accum_offset {accum}
  .amdhsa_group_segment_fixed_size 0
  .amdhsa_kernarg_size 112
  .amdhsa_user_sgpr_count 2
  .amdhsa_user_sgpr_kernarg_segment_ptr 1
  .amdhsa_system_sgpr_workgroup_id_x 1
  .amdhsa_float_denorm_mode_32 3
.end_amdhsa_kernel
"""

def header(a, name):
    a.raw(f".globl {name}")
    a.raw(".p2align 8")
    a.raw(f".type {name},@function")
    a.label(name)

MF = "v_mfma_f32_32x32x16_bf16"
SM = "v_smfmac_f32_32x32x32_bf16"

def gen_proj():
    a = Asm()
    name = "proj_kernel"
    header(a, name)
    X = 64
    ACC = 16
    AF = 48
    vX, vW, vA0, vA1, vA2, vA3, vL, vT0, vT1, vT2, vE = 1, 2, 3, 4, 5, 6, 7, 8, 9, 10, 11
    EACC = 192
    PK = 208
    a("s_cmp_ge_u32 s2, 256")
    a("s_cbranch_scc1 L_proj_end")
    a(f"s_load_dwordx2 s[4:5], s[0:1], {KA['x']}")
    a(f"s_load_dwordx2 s[6:7], s[0:1], {KA['wqA']}")
    a(f"s_load_dwordx2 s[8:9], s[0:1], {KA['wkA']}")
    a(f"s_load_dwordx2 s[10:11], s[0:1], {KA['wvA']}")
    a(f"s_load_dwordx2 s[12:13], s[0:1], {KA['wqB']}")
    a(f"s_load_dwordx2 s[14:15], s[0:1], {KA['wkB']}")
    a(f"s_load_dwordx2 s[16:17], s[0:1], {KA['wvB']}")
    a(f"s_load_dwordx2 s[18:19], s[0:1], {KA['gw']}")
    a(f"s_load_dwordx2 s[20:21], s[0:1], {KA['ws']}")
    a("v_lshrrev_b32 v8, 6, v0")
    a("v_and_b32 v7, 63, v0")
    a("v_readfirstlane_b32 s38, v8")
    a("s_and_b32 s41, s2, 1")
    a("s_lshr_b32 s42, s2, 3")
    a("s_and_b32 s42, s42, 3")
    a("s_lshl_b32 s36, s41, 2")
    a("s_add_u32 s36, s36, s42")
    a("s_lshr_b32 s37, s2, 1")
    a("s_and_b32 s37, s37, 3")
    a("s_lshl_b32 s37, s37, 3")
    a("s_lshr_b32 s43, s2, 5")
    a("s_add_u32 s37, s37, s43")
    a("s_and_b32 s39, s38, 1")
    a("s_lshr_b32 s40, s38, 1")
    a(f"v_and_b32 v{vT0}, 31, v{vL}")
    a(f"v_lshrrev_b32 v{vT1}, 5, v{vL}")
    a("s_lshl_b32 s44, s37, 6")
    a("s_lshl_b32 s45, s40, 5")
    a("s_add_u32 s44, s44, s45")
    a(f"v_add_u32 v{vX}, s44, v{vT0}")
    a(f"v_lshlrev_b32 v{vX}, 10, v{vX}")
    a(f"v_lshl_add_u32 v{vX}, v{vT1}, 4, v{vX}")
    a(f"v_lshrrev_b32 v{vT0}, 4, v{vL}")
    a(f"v_and_b32 v{vT2}, 15, v{vL}")
    a(f"v_lshlrev_b32 v{vW}, 2, v{vT0}")
    a(f"v_xor_b32 v{vW}, v{vW}, v{vT2}")
    a(f"v_lshlrev_b32 v{vW}, 4, v{vW}")
    a(f"v_lshl_add_u32 v{vW}, v{vT0}, 10, v{vW}")
    a("s_lshl_b32 s45, s42, 8")
    a(f"v_add_u32 v{vW}, s45, v{vW}")
    a(f"v_lshrrev_b32 v{vA1}, 2, v{vT2}")
    a(f"v_lshl_add_u32 v{vA0}, v{vT1}, 3, v{vA1}")
    a(f"v_lshlrev_b32 v{vA0}, 8, v{vA0}")
    a(f"v_and_b32 v{vA2}, 1, v{vT0}")
    a(f"v_lshlrev_b32 v{vA2}, 1, v{vA2}")
    a(f"v_bfe_u32 v{vA3}, v{vT2}, 1, 1")
    a(f"v_add_u32 v{vA2}, v{vA2}, v{vA3}")
    a("s_lshl_b32 s45, s39, 3")
    a(f"v_add_u32 v{vA2}, s45, v{vA2}")
    a(f"v_lshlrev_b32 v{vA1}, 2, v{vA1}")
    a(f"v_xor_b32 v{vA2}, v{vA2}, v{vA1}")
    a(f"v_lshl_add_u32 v{vA0}, v{vA2}, 4, v{vA0}")
    a(f"v_and_b32 v{vA3}, 1, v{vT2}")
    a(f"v_lshl_add_u32 v{vA0}, v{vA3}, 3, v{vA0}")
    a(f"v_xor_b32 v{vA1}, 64, v{vA0}")
    a(f"v_add_u32 v{vA2}, 0x10000, v{vA0}")
    a(f"v_add_u32 v{vA3}, 0x10000, v{vA1}")
    a(f"v_lshrrev_b32 v{vE}, 2, v{vT2}")
    a(f"v_lshl_add_u32 v{vE}, v{vT1}, 3, v{vE}")
    a(f"v_lshlrev_b32 v{vE}, 6, v{vE}")
    a(f"v_and_b32 v12, 1, v{vT0}")
    a(f"v_lshl_add_u32 v{vE}, v12, 5, v{vE}")
    a(f"v_and_b32 v12, 3, v{vT2}")
    a(f"v_lshl_add_u32 v{vE}, v12, 3, v{vE}")
    a(f"v_add_u32 v{vE}, 0x20000, v{vE}")
    for i in range(32):
        a(f"v_mov_b32 v{ACC+i}, 0")
    a("s_waitcnt lgkmcnt(0)")
    srd(a, 24, 4, 2048 * 1024)
    a("s_cmp_eq_u32 s41, 0")
    a("s_cselect_b32 s46, s6, s12")
    a("s_cselect_b32 s47, s7, s13")
    srd(a, 28, 46, 512 * 1024)
    srd(a, 32, 20, WS_SIZE)
    a("s_lshl_b32 s48, s38, 12")
    a("s_lshl_b32 s49, s38, 10")
    for q in range(4):
        for st in range(8):
            a(f"s_mov_b32 m0, s49")
            a(f"s_add_u32 s49, s49, 4096")
            a(f"buffer_load_dwordx4 v{vW}, s[28:31], s48 offen lds")
            a(f"s_add_u32 s48, s48, 16384")
        for st in range(8):
            s = 8 * q + st
            a(f"buffer_load_dwordx4 {vr(X+4*s,4)}, v{vX}, s[24:27], 0 offen offset:{s*32}")
    a("s_cmp_gt_u32 s36, 2")
    a("s_cbranch_scc1 L_proj_noextra")
    a("s_cmp_eq_u32 s36, 2")
    a("s_cbranch_scc1 L_proj_gateload")
    a("s_cmp_eq_u32 s36, 0")
    a("s_cselect_b32 s50, s8, s10")
    a("s_cselect_b32 s51, s9, s11")
    a("s_cselect_b32 s52, s14, s16")
    a("s_cselect_b32 s53, s15, s17")
    a(f"v_and_b32 v12, 2, v{vL}")
    a("v_cmp_eq_u32 vcc, 0, v12")
    a("v_mov_b32 v12, s52")
    a("v_mov_b32 v13, s50")
    a("v_cndmask_b32 v14, v12, v13, vcc")
    a("v_mov_b32 v12, s53")
    a("v_mov_b32 v13, s51")
    a("v_cndmask_b32 v15, v12, v13, vcc")
    a(f"v_lshrrev_b32 v12, 2, v{vL}")
    a("v_lshlrev_b32 v12, 5, v12")
    a(f"v_and_b32 v13, 1, v{vL}")
    a("v_lshl_add_u32 v12, v13, 4, v12")
    a("s_lshl_b32 s54, s38, 9")
    a("v_add_u32 v12, s54, v12")
    a("v_add_co_u32 v14, vcc, v14, v12")
    a("s_nop 1")
    a("v_addc_co_u32 v15, vcc, 0, v15, vcc")
    a("s_lshl_b32 s49, s38, 10")
    a("s_add_u32 s49, s49, 0x20000")
    for st in range(8):
        a("s_mov_b32 m0, s49")
        a("s_add_u32 s49, s49, 4096")
        a("global_load_lds_dwordx4 v[14:15], off")
        if st < 7:
            a("v_add_co_u32 v14, vcc, 2048, v14")
            a("s_nop 1")
            a("v_addc_co_u32 v15, vcc, 0, v15, vcc")
    a("s_branch L_proj_noextra")
    a.label("L_proj_gateload")
    srd(a, 52, 18, 1024)
    a(f"v_lshlrev_b32 v12, 4, v{vL}")
    a("s_mov_b32 m0, 0x20000")
    a("s_nop 0")
    a("buffer_load_dwordx4 v12, s[52:55], 0 offen lds")
    a.label("L_proj_noextra")
    def trreads(s, buf):
        va = (vA0, vA1) if s < 16 else (vA2, vA3)
        off = (s % 16) * 4096
        for u in range(2):
            r = AF + buf * 8 + u * 4
            a(f"ds_read_b64_tr_b16 {vr(r,2)}, v{va[u]} offset:{off}")
            a(f"ds_read_b64_tr_b16 {vr(r+2,2)}, v{va[u]} offset:{off+1024}")
    for q in range(4):
        a(f"s_waitcnt vmcnt({16*(3-q)})")
        a("s_barrier")
        trreads(8 * q, 0)
        for st in range(8):
            s = 8 * q + st
            buf = st & 1
            if st < 7:
                trreads(s + 1, buf ^ 1)
                a("s_waitcnt lgkmcnt(4)")
            else:
                a("s_waitcnt lgkmcnt(0)")
            for u in range(2):
                a(f"{MF} {vr(ACC+16*u,16)}, {vr(AF+buf*8+u*4,4)}, {vr(X+4*s,4)}, {vr(ACC+16*u,16)}")
    a(f"s_mov_b32 s56, {hex(f2u(CQ))}")
    a("s_lshl_b32 s57, s41, 5")
    a("s_lshl_b32 s58, s42, 3")
    a("s_add_u32 s57, s57, s58")
    a("s_lshl_b32 s58, s39, 2")
    a("s_add_u32 s57, s57, s58")
    a("s_lshl_b32 s57, s57, 16")
    a("s_lshl_b32 s58, s37, 1")
    a("s_add_u32 s58, s58, s40")
    a("s_lshl_b32 s59, s58, 10")
    a("s_add_u32 s57, s57, s59")
    if WS_Q: a(f"s_add_u32 s57, s57, {WS_Q}")
    a(f"v_lshlrev_b32 v12, 4, v{vL}")
    a("s_nop 7")
    for u in range(2):
        for i in range(16):
            a(f"v_mul_f32 v{ACC+16*u+i}, s56, v{ACC+16*u+i}")
    for u in range(2):
        for e in range(2):
            for j in range(4):
                src = ACC + 16 * u + 8 * e + 2 * j
                a(f"v_cvt_pk_bf16_f32 v{PK+(2*u+e)*4+j}, v{src}, v{src+1}")
    for u in range(2):
        for e in range(2):
            a(f"buffer_store_dwordx4 {vr(PK+(2*u+e)*4,4)}, v12, s[32:35], s57 offen")
            a("s_add_u32 s57, s57, 65536")
    a("s_cmp_gt_u32 s36, 2")
    a("s_cbranch_scc1 L_proj_done")
    a("s_cmp_lg_u32 s39, 0")
    a("s_cbranch_scc1 L_proj_done")
    for i in range(16):
        a(f"v_mov_b32 v{EACC+i}, 0")
    a("s_cmp_eq_u32 s36, 2")
    a("s_cbranch_scc1 L_proj_gate")
    a("s_cmp_eq_u32 s36, 1")
    a("s_cbranch_scc1 L_proj_v")
    def echain(kind):
        def rd(s, buf):
            r = AF + buf * 4
            if kind == "g":
                a(f"ds_read_b128 {vr(r,4)}, v13 offset:{s*32}")
            else:
                a(f"ds_read_b64_tr_b16 {vr(r,2)}, v{vE} offset:{s*1024}")
                a(f"ds_read_b64_tr_b16 {vr(r+2,2)}, v{vE} offset:{s*1024+256}")
        n = 1 if kind == "g" else 2
        rd(0, 0)
        for s in range(32):
            buf = s & 1
            if s < 31:
                rd(s + 1, buf ^ 1)
                a(f"s_waitcnt lgkmcnt({n})")
            else:
                a("s_waitcnt lgkmcnt(0)")
            if kind == "v":
                a(f"{MF} {vr(EACC,16)}, {vr(X+4*s,4)}, {vr(AF+buf*4,4)}, {vr(EACC,16)}")
            else:
                a(f"{MF} {vr(EACC,16)}, {vr(AF+buf*4,4)}, {vr(X+4*s,4)}, {vr(EACC,16)}")
        a("s_nop 15")
    echain("k")
    for j in range(8):
        a(f"v_cvt_pk_bf16_f32 v{PK+16+j}, v{EACC+2*j}, v{EACC+2*j+1}")
    a(f"v_and_b32 v12, 0x33, v{vL}")
    a(f"v_and_b32 v13, 4, v{vL}")
    a("v_lshl_add_u32 v12, v13, 1, v12")
    a(f"v_and_b32 v13, 8, v{vL}")
    a("v_lshrrev_b32 v13, 1, v13")
    a("v_add_u32 v12, v12, v13")
    a("v_lshlrev_b32 v12, 4, v12")
    a("s_lshl_b32 s59, s58, 11")
    a(f"s_add_u32 s59, s59, {WS_KV}")
    a(f"buffer_store_dwordx4 {vr(PK+16,4)}, v12, s[32:35], s59 offen")
    a("s_add_u32 s59, s59, 131072")
    a(f"buffer_store_dwordx4 {vr(PK+20,4)}, v12, s[32:35], s59 offen")
    a("s_branch L_proj_done")
    a.label("L_proj_v")
    echain("v")
    for j in range(8):
        a(f"v_cvt_pk_bf16_f32 v{PK+16+j}, v{EACC+2*j}, v{EACC+2*j+1}")
    a(f"v_and_b32 v12, 15, v{vL}")
    a(f"v_lshrrev_b32 v13, 5, v{vL}")
    a("v_lshl_add_u32 v12, v13, 4, v12")
    a("v_lshlrev_b32 v12, 4, v12")
    a(f"v_bfe_u32 v13, v{vL}, 4, 1")
    a("v_lshl_add_u32 v12, v13, 17, v12")
    a("s_lshl_b32 s59, s58, 11")
    a(f"s_add_u32 s59, s59, {WS_KV+1024}")
    a(f"buffer_store_dwordx4 {vr(PK+16,4)}, v12, s[32:35], s59 offen")
    a(f"buffer_store_dwordx4 {vr(PK+20,4)}, v12, s[32:35], s59 offen offset:512")
    a("s_branch L_proj_done")
    a.label("L_proj_gate")
    a(f"v_lshrrev_b32 v13, 5, v{vL}")
    a("v_lshlrev_b32 v13, 4, v13")
    a("v_add_u32 v13, 0x20000, v13")
    echain("g")
    a(f"v_cvt_pk_bf16_f32 v12, v{EACC}, v{EACC}")
    a("v_lshlrev_b32 v12, 16, v12")
    a(f"s_mov_b32 s60, {hex(f2u(-math.log2(math.e)))}")
    a("v_mul_f32 v12, s60, v12")
    a("v_exp_f32 v12, v12")
    a("s_nop 0")
    a("v_add_f32 v12, 1.0, v12")
    a("v_rcp_f32 v12, v12")
    a("s_nop 0")
    a("v_cvt_pk_bf16_f32 v12, v12, v12")
    a("v_lshlrev_b32 v12, 16, v12")
    a(f"v_lshlrev_b32 v13, 2, v{vL}")
    a("s_lshl_b32 s59, s58, 7")
    a(f"s_add_u32 s59, s59, {WS_G}")
    a(f"v_cmp_gt_u32 vcc, 32, v{vL}")
    a("s_and_saveexec_b64 s[62:63], vcc")
    a("buffer_store_dword v12, v13, s[32:35], s59 offen")
    a("s_mov_b64 exec, s[62:63]")
    a.label("L_proj_done")
    a("s_waitcnt vmcnt(0)")
    a.label("L_proj_end")
    a("s_endpgm")
    return a, kdesc(name, 232)

def gen_attn():
    a = Asm()
    name = "attn_kernel"
    header(a, name)
    QA, QB = 8, 12
    CA, CB = 16, 32
    SA, SB = 48, 64
    OA, OB = 80, 96
    KB = 112
    V0 = 120
    V1 = 128
    IDX = 136
    vK, vV, vL, vT0, vT1 = 1, 2, 3, 4, 5
    T = 140
    a("s_cmp_ge_u32 s2, 256")
    a("s_cbranch_scc1 L_attn_end")
    a(f"s_load_dwordx2 s[20:21], s[0:1], {KA['ws']}")
    a("v_lshrrev_b32 v4, 6, v0")
    a(f"v_and_b32 v{vL}, 63, v0")
    a("v_readfirstlane_b32 s38, v4")
    a("s_and_b32 s41, s2, 1")
    a("s_lshr_b32 s42, s2, 1")
    a("s_and_b32 s43, s42, 3")
    a("s_lshr_b32 s37, s42, 2")
    a("s_and_b32 s39, s38, 3")
    a("s_lshr_b32 s40, s38, 2")
    a("s_lshl_b32 s44, s43, 3")
    a("s_lshl_b32 s45, s39, 1")
    a("s_add_u32 s44, s44, s45")
    a("s_lshl_b32 s45, s37, 1")
    a("s_add_u32 s45, s45, s40")
    a("s_lshl_b32 s46, s41, 5")
    a("s_add_u32 s46, s46, s44")
    a("s_lshl_b32 s46, s46, 6")
    a("s_add_u32 s46, s46, s45")
    a("s_lshl_b32 s46, s46, 10")
    if WS_Q: a(f"s_add_u32 s46, s46, {WS_Q}")
    a("s_add_u32 s47, s46, 65536")
    a("s_lshl_b32 s50, s45, 6")
    a("s_lshl_b32 s51, s41, 5")
    a("s_add_u32 s50, s50, s51")
    a("s_add_u32 s50, s50, s44")
    a("s_lshl_b32 s50, s50, 10")
    a(f"s_add_u32 s50, s50, {WS_O}")
    a(f"v_lshlrev_b32 v{vK}, 4, v{vL}")
    a(f"v_lshrrev_b32 v{vT0}, 5, v{vL}")
    a(f"v_and_b32 v{vT1}, 15, v{vL}")
    a(f"v_lshl_add_u32 v{vV}, v{vT0}, 4, v{vT1}")
    a(f"v_lshlrev_b32 v{vV}, 4, v{vV}")
    a(f"v_add_u32 v{vV}, 1024, v{vV}")
    a(f"v_mov_b32 v{IDX}, 0xdddddddd")
    a("s_mov_b32 s60, 0x0000ffff")
    a("s_mov_b32 s61, 0x0000ffff")
    for i in range(16):
        a(f"v_mov_b32 v{V0+i}, 0x3f803f80")
    a("s_waitcnt lgkmcnt(0)")
    srd(a, 32, 20, WS_SIZE)
    a(f"buffer_load_dwordx4 {vr(QA,4)}, v{vK}, s[32:35], s46 offen")
    a(f"buffer_load_dwordx4 {vr(QB,4)}, v{vK}, s[32:35], s47 offen")
    a("s_lshl_b32 s48, s41, 17")
    a(f"s_add_u32 s48, s48, {WS_KV}")
    a("s_lshl_b32 s49, s38, 10")
    a("s_add_u32 s48, s48, s49")
    for st in range(16):
        a("s_mov_b32 m0, s49")
        a("s_add_u32 s49, s49, 8192")
        a(f"buffer_load_dwordx4 v{vK}, s[32:35], s48 offen lds")
        a("s_add_u32 s48, s48, 8192")
    a("s_mov_b32 s62, 1")
    a("s_waitcnt vmcnt(13)")
    a("s_barrier")

    def ldK(buf, off):
        a(f"ds_read_b128 {vr(KB+4*buf,4)}, v{vK} offset:{off}")
    def ldV(buf, off):
        a("s_mov_b64 exec, s[60:61]")
        a(f"ds_read_b128 {vr(V0+4*buf,4)}, v{vV} offset:{off}")
        a(f"ds_read_b128 {vr(V1+4*buf,4)}, v{vV} offset:{off+512}")
        a("s_mov_b64 exec, -1")
    def rowmax_to_C(S, C, m):
        a(f"v_max3_f32 v{m}, v{S}, v{S+1}, v{S+2}")
        for i in range(3, 15, 2):
            a(f"v_max3_f32 v{m}, v{m}, v{S+i}, v{S+i+1}")
        a(f"v_max_f32 v{m}, v{m}, v{S+15}")
        a(f"v_mov_b32 v{m+1}, v{m}")
        a("s_nop 1")
        a(f"v_permlane32_swap_b32 v{m}, v{m+1}")
        a("s_nop 1")
        a(f"v_max_f32 v{m}, v{m}, v{m+1}")
        for i in range(16):
            a(f"v_mul_f32 v{C+i}, -1.0, v{m}")

    ldK(0, 0)
    a("s_waitcnt lgkmcnt(0)")
    a(f"{MF} {vr(SA,16)}, {vr(KB,4)}, {vr(QA,4)}, 0")
    a(f"{MF} {vr(SB,16)}, {vr(KB,4)}, {vr(QB,4)}, 0")
    a("s_nop 15")
    rowmax_to_C(SA, CA, T)
    rowmax_to_C(SB, CB, T + 2)

    a.label("L_attn_restart")
    a(f"v_lshlrev_b32 v{vK}, 4, v{vL}")
    a(f"v_lshrrev_b32 v{vT0}, 5, v{vL}")
    a(f"v_and_b32 v{vT1}, 15, v{vL}")
    a(f"v_lshl_add_u32 v{vV}, v{vT0}, 4, v{vT1}")
    a(f"v_lshlrev_b32 v{vV}, 4, v{vV}")
    a(f"v_add_u32 v{vV}, 1024, v{vV}")
    for i in range(16):
        a(f"v_mov_b32 v{OA+i}, 0")
        a(f"v_mov_b32 v{OB+i}, 0")
        a(f"v_mov_b32 v{SB+i}, 0")
    ldK(0, 0)
    ldK(1, 2048)
    ldV(0, 0)
    a("s_waitcnt lgkmcnt(0)")
    a(f"{MF} {vr(SA,16)}, {vr(KB,4)}, {vr(QA,4)}, {vr(CA,16)}")
    a("s_mov_b32 s63, 0")
    a("s_nop 7")
    a("s_nop 1")
    U = 8
    a.raw(".p2align 6")
    a.label("L_attn_loop")
    body_start = len(a.lines)
    a("s_cmp_eq_u32 s63, s62")
    a("s_cbranch_scc0 L_attn_nobar")
    a("s_waitcnt vmcnt(0)")
    a("s_barrier")
    a.label("L_attn_nobar")
    def ex(S, i): a(f"v_exp_f32 v{S+i}, v{S+i}")
    for u in range(U):
        p = u & 1
        off = u * 2048
        ex(SA, 0); ex(SA, 1)
        a(f"{SM} {vr(OB,16)}, {vr(V1+4*(p^1),4)}, {vr(SB+8,8)}, v{IDX}")
        ex(SA, 2); ex(SA, 3); ex(SA, 4)
        a(f"{MF} {vr(SB,16)}, {vr(KB+4*p,4)}, {vr(QB,4)}, {vr(CB,16)}")
        ldK(p, off + 2 * 2048)
        ldV(p ^ 1, off + 2048)
        for i in range(5, 10): ex(SA, i)
        a("s_waitcnt lgkmcnt(3)")
        a(f"{SM} {vr(OA,16)}, {vr(V0+4*p,4)}, {vr(SA,8)}, v{IDX}")
        for i in range(10, 16): ex(SA, i)
        ex(SB, 0); ex(SB, 1)
        a(f"{SM} {vr(OA,16)}, {vr(V1+4*p,4)}, {vr(SA+8,8)}, v{IDX}")
        ex(SB, 2); ex(SB, 3); ex(SB, 4)
        a(f"{MF} {vr(SA,16)}, {vr(KB+4*(p^1),4)}, {vr(QA,4)}, {vr(CA,16)}")
        for i in range(5, 10): ex(SB, i)
        a(f"{SM} {vr(OB,16)}, {vr(V0+4*p,4)}, {vr(SB,8)}, v{IDX}")
        for i in range(10, 16): ex(SB, i)
    a(f"v_add_u32 v{vK}, {U*2048}, v{vK}")
    a(f"v_add_u32 v{vV}, {U*2048}, v{vV}")
    a("s_add_u32 s63, s63, 1")
    a(f"s_cmp_lt_u32 s63, {64//U}")
    a("s_cbranch_scc1 L_attn_loop")
    body_end = len(a.lines)
    a("s_nop 0")
    a(f"{SM} {vr(OB,16)}, {vr(V1+4,4)}, {vr(SB+8,8)}, v{IDX}")
    a("s_waitcnt lgkmcnt(0)")
    a("s_nop 15")
    a(f"v_mul_f32 v{T}, 0, v{OA}")
    for i in range(1, 8): a(f"v_fma_f32 v{T}, v{OA+i}, 0, v{T}")
    for i in range(0, 8): a(f"v_fma_f32 v{T}, v{OB+i}, 0, v{T}")
    a(f"v_max_f32 v{T+1}, v{OA+8}, v{OB+8}")
    a(f"v_add_f32 v{T}, v{T}, v{T+1}")
    a(f"s_mov_b32 s64, {hex(f2u(2.0**60))}")
    a(f"v_cmp_gt_f32 vcc, s64, v{T}")
    a("s_cmp_eq_u32 s62, 2")
    a("s_cbranch_scc1 L_attn_fin")
    a("s_cmp_eq_u64 vcc, exec")
    a("s_cbranch_scc1 L_attn_fin")
    a("s_mov_b32 s62, 2")
    a(f"v_lshlrev_b32 v{vK}, 4, v{vL}")
    a(f"v_mov_b32 v{T+4}, 0xff800000")
    a(f"v_mov_b32 v{T+5}, 0xff800000")
    a("s_mov_b32 s63, 0")
    a.label("L_attn_maxloop")
    ldK(0, 0)
    a("s_waitcnt lgkmcnt(0)")
    a(f"{MF} {vr(SA,16)}, {vr(KB,4)}, {vr(QA,4)}, 0")
    a(f"{MF} {vr(SB,16)}, {vr(KB,4)}, {vr(QB,4)}, 0")
    a("s_nop 15")
    for i in range(0, 16, 2):
        a(f"v_max3_f32 v{T+4}, v{T+4}, v{SA+i}, v{SA+i+1}")
        a(f"v_max3_f32 v{T+5}, v{T+5}, v{SB+i}, v{SB+i+1}")
    a(f"v_add_u32 v{vK}, 2048, v{vK}")
    a("s_add_u32 s63, s63, 1")
    a("s_cmp_lt_u32 s63, 64")
    a("s_cbranch_scc1 L_attn_maxloop")
    for (m, C) in ((T + 4, CA), (T + 5, CB)):
        a(f"v_mov_b32 v{T}, v{m}")
        a(f"v_mov_b32 v{T+1}, v{m}")
        a("s_nop 1")
        a(f"v_permlane32_swap_b32 v{T}, v{T+1}")
        a("s_nop 1")
        a(f"v_max_f32 v{T}, v{T}, v{T+1}")
        for i in range(16):
            a(f"v_mul_f32 v{C+i}, -1.0, v{T}")
    a("s_branch L_attn_restart")
    a.label("L_attn_fin")
    a(f"v_rcp_f32 v{T}, v{OA+8}")
    a(f"v_rcp_f32 v{T+1}, v{OB+8}")
    a("s_nop 0")
    for i in range(8):
        a(f"v_mul_f32 v{OA+i}, v{T}, v{OA+i}")
        a(f"v_mul_f32 v{OB+i}, v{T+1}, v{OB+i}")
    for j in range(4):
        a(f"v_cvt_pk_bf16_f32 v{T+4+j}, v{OA+2*j}, v{OA+2*j+1}")
        a(f"v_cvt_pk_bf16_f32 v{T+8+j}, v{OB+2*j}, v{OB+2*j+1}")
    a(f"v_lshlrev_b32 v{vK}, 4, v{vL}")
    a(f"buffer_store_dwordx4 {vr(T+4,4)}, v{vK}, s[32:35], s50 offen")
    a("s_add_u32 s50, s50, 1024")
    a(f"buffer_store_dwordx4 {vr(T+8,4)}, v{vK}, s[32:35], s50 offen")
    a("s_waitcnt vmcnt(0)")
    a.label("L_attn_end")
    a("s_endpgm")
    a.loop = (body_start, body_end)
    return a, kdesc(name, 160)

def gen_oproj():
    a = Asm()
    name = "oproj_kernel"
    header(a, name)
    X = 64
    ACC = 16
    AF = 48
    vW, vA0, vA1, vA2, vA3, vL, vT0, vT1, vT2 = 2, 3, 4, 5, 6, 7, 8, 9, 10
    a("s_cmp_ge_u32 s2, 256")
    a("s_cbranch_scc1 L_op_end")
    a(f"s_load_dwordx2 s[4:5], s[0:1], {KA['woA']}")
    a(f"s_load_dwordx2 s[6:7], s[0:1], {KA['woB']}")
    a(f"s_load_dwordx2 s[8:9], s[0:1], {KA['out']}")
    a(f"s_load_dwordx2 s[20:21], s[0:1], {KA['ws']}")
    a("v_lshrrev_b32 v8, 6, v0")
    a(f"v_and_b32 v{vL}, 63, v0")
    a("v_readfirstlane_b32 s38, v8")
    a("s_and_b32 s36, s2, 7")
    a("s_lshr_b32 s37, s2, 3")
    a("s_and_b32 s42, s37, 7")
    a("s_lshr_b32 s37, s37, 3")
    a("s_lshl_b32 s36, s36, 2")
    a("s_add_u32 s37, s37, s36")
    a("s_and_b32 s40, s38, 1")
    a("s_lshr_b32 s41, s38, 1")
    a("s_lshl_b32 s45, s37, 1")
    a("s_add_u32 s45, s45, s40")
    a("s_lshl_b32 s46, s45, 6")
    a("s_lshl_b32 s47, s41, 5")
    a("s_add_u32 s46, s46, s47")
    a("s_lshl_b32 s46, s46, 10")
    a(f"s_add_u32 s46, s46, {WS_O}")
    a(f"v_lshlrev_b32 v1, 4, v{vL}")
    a(f"v_lshrrev_b32 v{vT0}, 3, v{vL}")
    a(f"v_and_b32 v{vT1}, 7, v{vL}")
    a(f"v_bfe_u32 v{vT2}, v{vT0}, 1, 1")
    a(f"v_lshlrev_b32 v{vT2}, 2, v{vT2}")
    a(f"v_xor_b32 v{vT1}, v{vT1}, v{vT2}")
    a(f"v_lshlrev_b32 v{vW}, 4, v{vT1}")
    a(f"v_lshl_add_u32 v{vW}, v{vT0}, 10, v{vW}")
    a("s_lshl_b32 s47, s42, 7")
    a(f"v_add_u32 v{vW}, s47, v{vW}")
    a(f"v_lshrrev_b32 v{vT0}, 4, v{vL}")
    a(f"v_and_b32 v{vT2}, 15, v{vL}")
    a(f"v_lshrrev_b32 v{vT1}, 5, v{vL}")
    a(f"v_lshrrev_b32 v{vA1}, 2, v{vT2}")
    a(f"v_lshl_add_u32 v{vA0}, v{vT1}, 2, v{vA1}")
    a(f"v_lshlrev_b32 v{vA0}, 7, v{vA0}")
    a(f"v_and_b32 v{vA2}, 1, v{vT0}")
    a(f"v_lshlrev_b32 v{vA2}, 1, v{vA2}")
    a(f"v_bfe_u32 v{vA3}, v{vT2}, 1, 1")
    a(f"v_add_u32 v{vA2}, v{vA2}, v{vA3}")
    a(f"v_bfe_u32 v{vA3}, v{vA1}, 1, 1")
    a(f"v_lshlrev_b32 v{vA3}, 2, v{vA3}")
    a(f"v_xor_b32 v{vA2}, v{vA2}, v{vA3}")
    a(f"v_lshl_add_u32 v{vA0}, v{vA2}, 4, v{vA0}")
    a(f"v_and_b32 v{vA3}, 1, v{vT2}")
    a(f"v_lshl_add_u32 v{vA0}, v{vA3}, 3, v{vA0}")
    a("s_lshl_b32 s47, s41, 16")
    a(f"v_add_u32 v{vA0}, s47, v{vA0}")
    a(f"v_xor_b32 v{vA1}, 64, v{vA0}")
    for i in range(32):
        a(f"v_mov_b32 v{ACC+i}, 0")
    a("s_waitcnt lgkmcnt(0)")
    srd(a, 24, 4, 512 * 1024)
    srd(a, 28, 6, 512 * 1024)
    srd(a, 32, 20, WS_SIZE)
    srd(a, 52, 8, 2048 * 1024)
    a(f"v_and_b32 v12, 31, v{vL}")
    a("v_lshlrev_b32 v12, 2, v12")
    a("s_lshl_b32 s47, s45, 7")
    a(f"s_add_u32 s47, s47, {WS_G}")
    a("buffer_load_dword v13, v12, s[32:35], s47 offen")
    a("s_lshl_b32 s48, s38, 13")
    a("s_lshl_b32 s49, s38, 10")
    for q in range(4):
        for bb in range(2):
            for st in range(4):
                i0 = 16 * q + 4 * st
                a(f"s_add_u32 m0, s49, {bb*65536 + i0*1024}")
                a(f"s_add_u32 s56, s48, {i0*8192}")
                a(f"buffer_load_dwordx4 v{vW}, s[{24+4*bb}:{27+4*bb}], s56 offen lds")
        for st in range(8):
            s = 8 * q + st
            a(f"s_add_u32 s56, s46, {s*1024}")
            a(f"buffer_load_dwordx4 {vr(X+4*s,4)}, v1, s[32:35], s56 offen")
    def trreads(s, buf):
        off = s * 2048
        for u in range(2):
            r = AF + buf * 8 + u * 4
            va = (vA0, vA1)[u]
            a(f"ds_read_b64_tr_b16 {vr(r,2)}, v{va} offset:{off}")
            a(f"ds_read_b64_tr_b16 {vr(r+2,2)}, v{va} offset:{off+1024}")
    for q in range(4):
        a(f"s_waitcnt vmcnt({16*(3-q)})")
        a("s_barrier")
        trreads(8 * q, 0)
        for st in range(8):
            s = 8 * q + st
            buf = st & 1
            if st < 7:
                trreads(s + 1, buf ^ 1)
                a("s_waitcnt lgkmcnt(4)")
            else:
                a("s_waitcnt lgkmcnt(0)")
            for u in range(2):
                a(f"{MF} {vr(ACC+16*u,16)}, {vr(AF+buf*8+u*4,4)}, {vr(X+4*s,4)}, {vr(ACC+16*u,16)}")
    a("s_barrier")
    a("s_nop 15")
    a("s_lshl_b32 s47, s38, 12")
    a(f"v_lshlrev_b32 v12, 4, v{vL}")
    a("v_add_u32 v12, s47, v12")
    a("s_cmp_eq_u32 s41, 0")
    a("s_cbranch_scc0 L_op_b1")
    for j in range(4):
        a(f"ds_write_b128 v12, {vr(ACC+16+4*j,4)} offset:{j*1024}")
    a("s_branch L_op_x")
    a.label("L_op_b1")
    for j in range(4):
        a(f"ds_write_b128 v12, {vr(ACC+4*j,4)} offset:{j*1024}")
    a.label("L_op_x")
    a("s_waitcnt lgkmcnt(0)")
    a("s_barrier")
    a("s_xor_b32 s47, s38, 2")
    a("s_lshl_b32 s47, s47, 12")
    a(f"v_lshlrev_b32 v12, 4, v{vL}")
    a("v_add_u32 v12, s47, v12")
    R = 192
    for j in range(4):
        a(f"ds_read_b128 {vr(R+4*j,4)}, v12 offset:{j*1024}")
    a("s_waitcnt lgkmcnt(0)")
    a("s_cmp_eq_u32 s41, 0")
    a("s_cbranch_scc0 L_op_b1b")
    for i in range(16):
        a(f"v_mov_b32 v{ACC+16+i}, v{R+i}")
    a("s_branch L_op_y")
    a.label("L_op_b1b")
    for i in range(16):
        a(f"v_mov_b32 v{ACC+i}, v{R+i}")
    a.label("L_op_y")
    a("v_sub_f32 v14, 1.0, v13")
    a("v_cvt_pk_bf16_f32 v14, v14, v14")
    a("v_lshlrev_b32 v14, 16, v14")
    def rnd2(dst, s0, s1):
        a(f"v_cvt_pk_bf16_f32 v{dst}, v{s0}, v{s1}")
        a(f"v_lshlrev_b32 v{s0}, 16, v{dst}")
        a(f"v_and_b32 v{s1}, 0xffff0000, v{dst}")
    for i in range(0, 16, 2):
        A0, B0 = ACC + i, ACC + 16 + i
        rnd2(15, A0, A0 + 1)
        rnd2(15, B0, B0 + 1)
        a(f"v_mul_f32 v{A0}, v13, v{A0}")
        a(f"v_mul_f32 v{A0+1}, v13, v{A0+1}")
        a(f"v_mul_f32 v{B0}, v14, v{B0}")
        a(f"v_mul_f32 v{B0+1}, v14, v{B0+1}")
        rnd2(15, A0, A0 + 1)
        rnd2(15, B0, B0 + 1)
        a(f"v_add_f32 v{A0}, v{A0}, v{B0}")
        a(f"v_add_f32 v{A0+1}, v{A0+1}, v{B0+1}")
        a(f"v_cvt_pk_bf16_f32 v{R+i//2}, v{A0}, v{A0+1}")
    a(f"v_and_b32 v12, 31, v{vL}")
    a("s_lshl_b32 s47, s45, 5")
    a("v_add_u32 v12, s47, v12")
    a("v_lshlrev_b32 v12, 10, v12")
    a(f"v_lshrrev_b32 v15, 5, v{vL}")
    a("v_lshl_add_u32 v12, v15, 3, v12")
    a("s_lshl_b32 s47, s42, 7")
    a("s_lshl_b32 s56, s41, 6")
    a("s_add_u32 s47, s47, s56")
    for q in range(4):
        a(f"buffer_store_dwordx2 {vr(R+2*q,2)}, v12, s[52:55], s47 offen offset:{q*16}")
    a("s_waitcnt vmcnt(0)")
    a.label("L_op_end")
    a("s_endpgm")
    return a, kdesc(name, 216)

def build(path):
    ref = open("cdna_kernels/" + NAME + ".s.ref").read().split("\n")
    hdr = [l for l in ref if l.startswith(";") and "@launch" not in l and "Override launch" not in l and "grid=ceil" not in l]
    hdr = hdr[:16]
    k1, d1 = gen_proj()
    k2, d2 = gen_attn()
    k3, d3 = gen_oproj()
    errs = check(k1.lines, "proj") + check(k3.lines, "oproj")
    bs, be = k2.loop
    errs += check(k2.lines, "attn")
    errs += check(k2.lines[bs:be] + k2.lines[bs:be], "attn-loop")
    for e in errs: print("HAZARD", e)
    out = "\n".join(hdr) + "\n"
    out += "; @launch kernel=proj_kernel grid=(256,1,1) block=(256,1,1) lds=163840\n"
    out += "; @launch kernel=attn_kernel grid=(256,1,1) block=(512,1,1) lds=135168\n"
    out += "; @launch kernel=oproj_kernel grid=(256,1,1) block=(256,1,1) lds=131072\n"
    out += '.amdgcn_target "amdgcn-amd-amdhsa--gfx950"\n.text\n'
    out += k1.text() + k2.text() + k3.text()
    out += '.section .rodata,"a"\n.p2align 6\n' + d1 + ".p2align 6\n" + d2 + ".p2align 6\n" + d3
    open(path, "w").write(out)
    return len(errs)

if __name__ == "__main__":
    p = sys.argv[1] if len(sys.argv) > 1 else "cdna_kernels/" + NAME + ".s"
    n = build(p)
    print("written", p, "hazards:", n)
```

```python
import sys, math
from asmlib import *

NAME = "gated_mix__grouped_kv_mqa__grouped_kv_mqa__prompt"
KA = dict(x=0, wqA=8, wkA=16, wvA=24, woA=32, xB=40, wqB=48, wkB=56, wvB=64, woB=72, gw=80, out=88, dbg=96, ws=104)
WS_Q = 0
WS_KV = 4 << 20
WS_G = WS_KV + (256 << 10)
WS_O = 8 << 20
WS_SIZE = 16 << 20
CQ = 0.25 * math.log2(math.e)
import struct
def f2u(f): return struct.unpack("<I", struct.pack("<f", f))[0]

def srd(a, d, base, nbytes):
    a(f"s_mov_b32 s{d}, s{base}")
    a(f"s_and_b32 s{d+1}, s{base+1}, 0xffff")
    a(f"s_mov_b32 s{d+2}, {nbytes}")
    a(f"s_mov_b32 s{d+3}, 0x20000")

def kdesc(name, vgpr, sgpr=96, accum=None):
    if accum is None:
        accum = (vgpr + 3) // 4 * 4
    return f""".amdhsa_kernel {name}
  .amdhsa_next_free_vgpr {vgpr}
  .amdhsa_next_free_sgpr {sgpr}
  .amdhsa_accum_offset {accum}
  .amdhsa_group_segment_fixed_size 0
  .amdhsa_kernarg_size 112
  .amdhsa_user_sgpr_count 2
  .amdhsa_user_sgpr_kernarg_segment_ptr 1
  .amdhsa_system_sgpr_workgroup_id_x 1
  .amdhsa_float_denorm_mode_32 3
.end_amdhsa_kernel
"""

def header(a, name):
    a.raw(f".globl {name}")
    a.raw(".p2align 8")
    a.raw(f".type {name},@function")
    a.label(name)

PROF = False
EXPT = set()
ONES_MODE = 1
WS_PROF = 13 << 20
def stamp(a, idx):
    if PROF:
        a(f"s_memtime s[{70+2*idx}:{71+2*idx}]")
def stamp_rt(a, idx):
    if PROF:
        a(f"s_memrealtime s[{70+2*idx}:{71+2*idx}]")
def stamp_flush(a, kidx, wpb, n, srdreg=32):
    if not PROF: return
    a("s_waitcnt lgkmcnt(0)")
    a(f"s_mul_i32 s68, s2, {wpb}")
    a("s_add_u32 s68, s68, s38")
    a("s_lshl_b32 s68, s68, 6")
    a(f"s_add_u32 s68, s68, {WS_PROF + kidx*(256<<10)}")
    a("v_mov_b32 v0, 0")
    for i in range(n):
        a(f"v_mov_b32 v1, s{70+2*i}")
        a(f"buffer_store_dword v1, v0, s[{srdreg}:{srdreg+3}], s68 offen offset:{4*i}")
        a("s_nop 1")
    a("s_waitcnt vmcnt(0)")

MF = "v_mfma_f32_32x32x16_bf16"
SM = "v_smfmac_f32_32x32x32_bf16"

def gen_proj():
    a = Asm()
    name = "proj_kernel"
    header(a, name)
    X = 64
    ACC = 16
    AF = 48
    vX, vW, vA0, vA1, vA2, vA3, vL, vT0, vT1, vT2, vE = 1, 2, 3, 4, 5, 6, 7, 8, 9, 10, 11
    EACC = 192
    PK = 208
    a("s_cmp_ge_u32 s2, 256")
    a("s_cbranch_scc1 L_proj_end")
    stamp(a, 0); stamp_rt(a, 6)
    a(f"s_load_dwordx2 s[4:5], s[0:1], {KA['x']}")
    a(f"s_load_dwordx2 s[6:7], s[0:1], {KA['wqA']}")
    a(f"s_load_dwordx2 s[8:9], s[0:1], {KA['wkA']}")
    a(f"s_load_dwordx2 s[10:11], s[0:1], {KA['wvA']}")
    a(f"s_load_dwordx2 s[12:13], s[0:1], {KA['wqB']}")
    a(f"s_load_dwordx2 s[14:15], s[0:1], {KA['wkB']}")
    a(f"s_load_dwordx2 s[16:17], s[0:1], {KA['wvB']}")
    a(f"s_load_dwordx2 s[18:19], s[0:1], {KA['gw']}")
    a(f"s_load_dwordx2 s[20:21], s[0:1], {KA['ws']}")
    a("v_lshrrev_b32 v8, 6, v0")
    a("v_and_b32 v7, 63, v0")
    a("v_readfirstlane_b32 s38, v8")
    a("s_and_b32 s41, s2, 1")
    a("s_lshr_b32 s42, s2, 3")
    a("s_and_b32 s42, s42, 3")
    a("s_lshl_b32 s36, s41, 2")
    a("s_add_u32 s36, s36, s42")
    a("s_lshr_b32 s37, s2, 1")
    a("s_and_b32 s37, s37, 3")
    a("s_lshl_b32 s37, s37, 3")
    a("s_lshr_b32 s43, s2, 5")
    a("s_add_u32 s37, s37, s43")
    a("s_and_b32 s39, s38, 1")
    a("s_lshr_b32 s40, s38, 1")
    a(f"v_and_b32 v{vT0}, 31, v{vL}")
    a(f"v_lshrrev_b32 v{vT1}, 5, v{vL}")
    a("s_lshl_b32 s44, s37, 6")
    a("s_lshl_b32 s45, s40, 5")
    a("s_add_u32 s44, s44, s45")
    a(f"v_add_u32 v{vX}, s44, v{vT0}")
    a(f"v_lshlrev_b32 v{vX}, 10, v{vX}")
    a(f"v_lshl_add_u32 v{vX}, v{vT1}, 4, v{vX}")
    a(f"v_lshrrev_b32 v{vT0}, 4, v{vL}")
    a(f"v_and_b32 v{vT2}, 15, v{vL}")
    a(f"v_lshlrev_b32 v{vW}, 2, v{vT0}")
    a(f"v_xor_b32 v{vW}, v{vW}, v{vT2}")
    a(f"v_lshlrev_b32 v{vW}, 4, v{vW}")
    a(f"v_lshl_add_u32 v{vW}, v{vT0}, 10, v{vW}")
    a("s_lshl_b32 s45, s42, 8")
    a(f"v_add_u32 v{vW}, s45, v{vW}")
    a(f"v_lshrrev_b32 v{vA1}, 2, v{vT2}")
    a(f"v_lshl_add_u32 v{vA0}, v{vT1}, 3, v{vA1}")
    a(f"v_lshlrev_b32 v{vA0}, 8, v{vA0}")
    a(f"v_and_b32 v{vA2}, 1, v{vT0}")
    a(f"v_lshlrev_b32 v{vA2}, 1, v{vA2}")
    a(f"v_bfe_u32 v{vA3}, v{vT2}, 1, 1")
    a(f"v_add_u32 v{vA2}, v{vA2}, v{vA3}")
    a("s_lshl_b32 s45, s39, 3")
    a(f"v_add_u32 v{vA2}, s45, v{vA2}")
    a(f"v_lshlrev_b32 v{vA1}, 2, v{vA1}")
    a(f"v_xor_b32 v{vA2}, v{vA2}, v{vA1}")
    a(f"v_lshl_add_u32 v{vA0}, v{vA2}, 4, v{vA0}")
    a(f"v_and_b32 v{vA3}, 1, v{vT2}")
    a(f"v_lshl_add_u32 v{vA0}, v{vA3}, 3, v{vA0}")
    a(f"v_xor_b32 v{vA1}, 64, v{vA0}")
    a(f"v_add_u32 v{vA2}, 0x10000, v{vA0}")
    a(f"v_add_u32 v{vA3}, 0x10000, v{vA1}")
    a(f"v_lshrrev_b32 v{vE}, 2, v{vT2}")
    a(f"v_lshl_add_u32 v{vE}, v{vT1}, 3, v{vE}")
    a(f"v_lshlrev_b32 v{vE}, 6, v{vE}")
    a(f"v_and_b32 v12, 1, v{vT0}")
    a(f"v_lshl_add_u32 v{vE}, v12, 5, v{vE}")
    a(f"v_and_b32 v12, 3, v{vT2}")
    a(f"v_lshl_add_u32 v{vE}, v12, 3, v{vE}")
    a(f"v_add_u32 v{vE}, 0x20000, v{vE}")
    for i in range(32):
        a(f"v_mov_b32 v{ACC+i}, 0")
    a("s_waitcnt lgkmcnt(0)")
    srd(a, 24, 4, 2048 * 1024)
    a("s_cmp_eq_u32 s41, 0")
    a("s_cselect_b32 s46, s6, s12")
    a("s_cselect_b32 s47, s7, s13")
    srd(a, 28, 46, 512 * 1024)
    srd(a, 32, 20, WS_SIZE)
    a("s_lshl_b32 s48, s38, 12")
    a("s_lshl_b32 s49, s38, 10")
    for q in range(4):
        for st in range(8):
            a(f"s_mov_b32 m0, s49")
            a(f"s_add_u32 s49, s49, 4096")
            a(f"buffer_load_dwordx4 v{vW}, s[28:31], s48 offen lds")
            a(f"s_add_u32 s48, s48, 16384")
        for st in range(8):
            s = 8 * q + st
            a(f"buffer_load_dwordx4 {vr(X+4*s,4)}, v{vX}, s[24:27], 0 offen offset:{s*32}")
    a("s_cmp_gt_u32 s36, 2")
    a("s_cbranch_scc1 L_proj_noextra")
    a("s_cmp_eq_u32 s36, 2")
    a("s_cbranch_scc1 L_proj_gateload")
    a("s_cmp_eq_u32 s36, 0")
    a("s_cselect_b32 s50, s8, s10")
    a("s_cselect_b32 s51, s9, s11")
    a("s_cselect_b32 s52, s14, s16")
    a("s_cselect_b32 s53, s15, s17")
    a(f"v_and_b32 v12, 2, v{vL}")
    a("v_cmp_eq_u32 vcc, 0, v12")
    a("v_mov_b32 v12, s52")
    a("v_mov_b32 v13, s50")
    a("v_cndmask_b32 v14, v12, v13, vcc")
    a("v_mov_b32 v12, s53")
    a("v_mov_b32 v13, s51")
    a("v_cndmask_b32 v15, v12, v13, vcc")
    a(f"v_lshrrev_b32 v12, 2, v{vL}")
    a("v_lshlrev_b32 v12, 5, v12")
    a(f"v_and_b32 v13, 1, v{vL}")
    a("v_lshl_add_u32 v12, v13, 4, v12")
    a("s_lshl_b32 s54, s38, 9")
    a("v_add_u32 v12, s54, v12")
    a("v_add_co_u32 v14, vcc, v14, v12")
    a("s_nop 1")
    a("v_addc_co_u32 v15, vcc, 0, v15, vcc")
    a("s_lshl_b32 s49, s38, 10")
    a("s_add_u32 s49, s49, 0x20000")
    for st in range(8):
        a("s_mov_b32 m0, s49")
        a("s_add_u32 s49, s49, 4096")
        a("global_load_lds_dwordx4 v[14:15], off")
        if st < 7:
            a("v_add_co_u32 v14, vcc, 2048, v14")
            a("s_nop 1")
            a("v_addc_co_u32 v15, vcc, 0, v15, vcc")
    a("s_branch L_proj_noextra")
    a.label("L_proj_gateload")
    srd(a, 52, 18, 1024)
    a(f"v_lshlrev_b32 v12, 4, v{vL}")
    a("s_mov_b32 m0, 0x20000")
    a("s_nop 0")
    a("buffer_load_dwordx4 v12, s[52:55], 0 offen lds")
    a.label("L_proj_noextra")
    stamp(a, 1)
    def trreads(s, buf):
        va = (vA0, vA1) if s < 16 else (vA2, vA3)
        off = (s % 16) * 4096
        for u in range(2):
            r = AF + buf * 8 + u * 4
            a(f"ds_read_b64_tr_b16 {vr(r,2)}, v{va[u]} offset:{off}")
            a(f"ds_read_b64_tr_b16 {vr(r+2,2)}, v{va[u]} offset:{off+1024}")
    for q in range(4):
        a(f"s_waitcnt vmcnt({16*(3-q)})")
        a("s_barrier")
        if q == 0: stamp(a, 2)
        if q == 3: stamp(a, 3)
        trreads(8 * q, 0)
        for st in range(8):
            s = 8 * q + st
            buf = st & 1
            if st < 7:
                trreads(s + 1, buf ^ 1)
                a("s_waitcnt lgkmcnt(4)")
            else:
                a("s_waitcnt lgkmcnt(0)")
            for u in range(2):
                a(f"{MF} {vr(ACC+16*u,16)}, {vr(AF+buf*8+u*4,4)}, {vr(X+4*s,4)}, {vr(ACC+16*u,16)}")
    stamp(a, 4)
    a(f"s_mov_b32 s56, {hex(f2u(CQ))}")
    a("s_lshl_b32 s57, s41, 5")
    a("s_lshl_b32 s58, s42, 3")
    a("s_add_u32 s57, s57, s58")
    a("s_lshl_b32 s58, s39, 2")
    a("s_add_u32 s57, s57, s58")
    a("s_lshl_b32 s57, s57, 16")
    a("s_lshl_b32 s58, s37, 1")
    a("s_add_u32 s58, s58, s40")
    a("s_lshl_b32 s59, s58, 10")
    a("s_add_u32 s57, s57, s59")
    if WS_Q: a(f"s_add_u32 s57, s57, {WS_Q}")
    a(f"v_lshlrev_b32 v12, 4, v{vL}")
    a("s_nop 7")
    for u in range(2):
        for i in range(16):
            a(f"v_mul_f32 v{ACC+16*u+i}, s56, v{ACC+16*u+i}")
    for u in range(2):
        for e in range(2):
            for j in range(4):
                src = ACC + 16 * u + 8 * e + 2 * j
                a(f"v_cvt_pk_bf16_f32 v{PK+(2*u+e)*4+j}, v{src}, v{src+1}")
    for u in range(2):
        for e in range(2):
            a(f"buffer_store_dwordx4 {vr(PK+(2*u+e)*4,4)}, v12, s[32:35], s57 offen")
            a("s_add_u32 s57, s57, 65536")
    a("s_cmp_gt_u32 s36, 2")
    a("s_cbranch_scc1 L_proj_done")
    a("s_cmp_lg_u32 s39, 0")
    a("s_cbranch_scc1 L_proj_done")
    for i in range(16):
        a(f"v_mov_b32 v{EACC+i}, 0")
    a("s_cmp_eq_u32 s36, 2")
    a("s_cbranch_scc1 L_proj_gate")
    a("s_cmp_eq_u32 s36, 1")
    a("s_cbranch_scc1 L_proj_v")
    def echain(kind):
        def rd(s, buf):
            r = AF + buf * 4
            if kind == "g":
                a(f"ds_read_b128 {vr(r,4)}, v13 offset:{s*32}")
            else:
                a(f"ds_read_b64_tr_b16 {vr(r,2)}, v{vE} offset:{s*1024}")
                a(f"ds_read_b64_tr_b16 {vr(r+2,2)}, v{vE} offset:{s*1024+256}")
        n = 1 if kind == "g" else 2
        rd(0, 0)
        for s in range(32):
            buf = s & 1
            if s < 31:
                rd(s + 1, buf ^ 1)
                a(f"s_waitcnt lgkmcnt({n})")
            else:
                a("s_waitcnt lgkmcnt(0)")
            if kind == "v":
                a(f"{MF} {vr(EACC,16)}, {vr(X+4*s,4)}, {vr(AF+buf*4,4)}, {vr(EACC,16)}")
            else:
                a(f"{MF} {vr(EACC,16)}, {vr(AF+buf*4,4)}, {vr(X+4*s,4)}, {vr(EACC,16)}")
        a("s_nop 15")
    echain("k")
    for j in range(8):
        a(f"v_cvt_pk_bf16_f32 v{PK+16+j}, v{EACC+2*j}, v{EACC+2*j+1}")
    a(f"v_and_b32 v12, 0x33, v{vL}")
    a(f"v_and_b32 v13, 4, v{vL}")
    a("v_lshl_add_u32 v12, v13, 1, v12")
    a(f"v_and_b32 v13, 8, v{vL}")
    a("v_lshrrev_b32 v13, 1, v13")
    a("v_add_u32 v12, v12, v13")
    a("v_lshlrev_b32 v12, 4, v12")
    a("s_lshl_b32 s59, s58, 11")
    a(f"s_add_u32 s59, s59, {WS_KV}")
    a(f"buffer_store_dwordx4 {vr(PK+16,4)}, v12, s[32:35], s59 offen")
    a("s_add_u32 s59, s59, 131072")
    a(f"buffer_store_dwordx4 {vr(PK+20,4)}, v12, s[32:35], s59 offen")
    a("s_branch L_proj_done")
    a.label("L_proj_v")
    echain("v")
    for j in range(8):
        a(f"v_cvt_pk_bf16_f32 v{PK+16+j}, v{EACC+2*j}, v{EACC+2*j+1}")
    a(f"v_and_b32 v12, 15, v{vL}")
    a(f"v_lshrrev_b32 v13, 5, v{vL}")
    a("v_lshl_add_u32 v12, v13, 4, v12")
    a("v_lshlrev_b32 v12, 4, v12")
    a(f"v_bfe_u32 v13, v{vL}, 4, 1")
    a("v_lshl_add_u32 v12, v13, 17, v12")
    a("s_lshl_b32 s59, s58, 11")
    a(f"s_add_u32 s59, s59, {WS_KV+1024}")
    a(f"buffer_store_dwordx4 {vr(PK+16,4)}, v12, s[32:35], s59 offen")
    a(f"buffer_store_dwordx4 {vr(PK+20,4)}, v12, s[32:35], s59 offen offset:512")
    a("s_branch L_proj_done")
    a.label("L_proj_gate")
    a(f"v_lshrrev_b32 v13, 5, v{vL}")
    a("v_lshlrev_b32 v13, 4, v13")
    a("v_add_u32 v13, 0x20000, v13")
    echain("g")
    a(f"v_cvt_pk_bf16_f32 v12, v{EACC}, v{EACC}")
    a("v_lshlrev_b32 v12, 16, v12")
    a(f"s_mov_b32 s60, {hex(f2u(-math.log2(math.e)))}")
    a("v_mul_f32 v12, s60, v12")
    a("v_exp_f32 v12, v12")
    a("s_nop 0")
    a("v_add_f32 v12, 1.0, v12")
    a("v_rcp_f32 v12, v12")
    a("s_nop 0")
    a("v_cvt_pk_bf16_f32 v12, v12, v12")
    a("v_lshlrev_b32 v12, 16, v12")
    a(f"v_lshlrev_b32 v13, 2, v{vL}")
    a("s_lshl_b32 s59, s58, 7")
    a(f"s_add_u32 s59, s59, {WS_G}")
    a(f"v_cmp_gt_u32 vcc, 32, v{vL}")
    a("s_and_saveexec_b64 s[62:63], vcc")
    a("buffer_store_dword v12, v13, s[32:35], s59 offen")
    a("s_mov_b64 exec, s[62:63]")
    a.label("L_proj_done")
    a("s_waitcnt vmcnt(0)")
    stamp(a, 5); stamp_rt(a, 7)
    stamp_flush(a, 0, 4, 8)
    a.label("L_proj_end")
    a("s_endpgm")
    return a, kdesc(name, 232)

def gen_attn():
    a = Asm()
    name = "attn_kernel"
    header(a, name)
    QA, QB = 8, 12
    CA, CB = 16, 32
    SA, SB = 48, 64
    OA, OB = 80, 96
    KB = 112
    V0 = 120
    V1 = 128
    IDX = 136
    vK, vV, vL, vT0, vT1 = 1, 2, 3, 4, 5
    T = 140
    a("s_cmp_ge_u32 s2, 256")
    a("s_cbranch_scc1 L_attn_end")
    stamp(a, 0); stamp_rt(a, 6)
    a(f"s_load_dwordx2 s[20:21], s[0:1], {KA['ws']}")
    a("v_lshrrev_b32 v4, 6, v0")
    a(f"v_and_b32 v{vL}, 63, v0")
    a("v_readfirstlane_b32 s38, v4")
    a("s_and_b32 s41, s2, 1")
    a("s_lshr_b32 s42, s2, 1")
    a("s_and_b32 s43, s42, 3")
    a("s_lshr_b32 s37, s42, 2")
    a("s_and_b32 s39, s38, 3")
    a("s_lshr_b32 s40, s38, 2")
    a("s_lshl_b32 s44, s43, 3")
    a("s_lshl_b32 s45, s39, 1")
    a("s_add_u32 s44, s44, s45")
    a("s_lshl_b32 s45, s37, 1")
    a("s_add_u32 s45, s45, s40")
    a("s_lshl_b32 s46, s41, 5")
    a("s_add_u32 s46, s46, s44")
    a("s_lshl_b32 s46, s46, 6")
    a("s_add_u32 s46, s46, s45")
    a("s_lshl_b32 s46, s46, 10")
    if WS_Q: a(f"s_add_u32 s46, s46, {WS_Q}")
    a("s_add_u32 s47, s46, 65536")
    a("s_lshl_b32 s50, s45, 6")
    a("s_lshl_b32 s51, s41, 5")
    a("s_add_u32 s50, s50, s51")
    a("s_add_u32 s50, s50, s44")
    a("s_lshl_b32 s50, s50, 10")
    a(f"s_add_u32 s50, s50, {WS_O}")
    a(f"v_lshlrev_b32 v{vK}, 4, v{vL}")
    a(f"v_lshrrev_b32 v{vT0}, 5, v{vL}")
    a(f"v_and_b32 v{vT1}, 15, v{vL}")
    a(f"v_lshl_add_u32 v{vV}, v{vT0}, 4, v{vT1}")
    a(f"v_lshlrev_b32 v{vV}, 4, v{vV}")
    a(f"v_add_u32 v{vV}, 1024, v{vV}")
    a(f"v_mov_b32 v{IDX}, 0xdddddddd")
    a("s_mov_b32 s60, 0x0000ffff")
    a("s_mov_b32 s61, 0x0000ffff")
    if ONES_MODE == 0:
        for i in range(16):
            a(f"v_mov_b32 v{V0+i}, 0x3f803f80")
    else:
        a(f"v_and_b32 v{vT0}, 27, v{vL}")
        a(f"v_cmp_eq_u32 vcc, 16, v{vT0}")
        a(f"v_mov_b32 v{vT1}, 0x3f803f80")
        a("s_nop 0")
        for i in range(16):
            a(f"v_cndmask_b32 v{V0+i}, 0, v{vT1}, vcc")
    a("s_waitcnt lgkmcnt(0)")
    srd(a, 32, 20, WS_SIZE)
    a(f"buffer_load_dwordx4 {vr(QA,4)}, v{vK}, s[32:35], s46 offen")
    a(f"buffer_load_dwordx4 {vr(QB,4)}, v{vK}, s[32:35], s47 offen")
    a("s_lshl_b32 s48, s41, 17")
    a(f"s_add_u32 s48, s48, {WS_KV}")
    a("s_lshl_b32 s49, s38, 10")
    a("s_add_u32 s48, s48, s49")
    for st in range(16):
        a("s_mov_b32 m0, s49")
        a("s_add_u32 s49, s49, 8192")
        a(f"buffer_load_dwordx4 v{vK}, s[32:35], s48 offen lds")
        a("s_add_u32 s48, s48, 8192")
    a("s_mov_b32 s62, 1")
    stamp(a, 1)
    a("s_waitcnt vmcnt(13)")
    a("s_barrier")
    stamp(a, 2)

    def ldK(buf, off):
        a(f"ds_read_b128 {vr(KB+4*buf,4)}, v{vK} offset:{off}")
    def ldV(buf, off):
        a("s_mov_b64 exec, s[60:61]")
        a(f"ds_read_b128 {vr(V0+4*buf,4)}, v{vV} offset:{off}")
        a(f"ds_read_b128 {vr(V1+4*buf,4)}, v{vV} offset:{off+512}")
        a("s_mov_b64 exec, -1")
    def rowmax_to_C(S, C, m):
        a(f"v_max3_f32 v{m}, v{S}, v{S+1}, v{S+2}")
        for i in range(3, 15, 2):
            a(f"v_max3_f32 v{m}, v{m}, v{S+i}, v{S+i+1}")
        a(f"v_max_f32 v{m}, v{m}, v{S+15}")
        a(f"v_mov_b32 v{m+1}, v{m}")
        a("s_nop 1")
        a(f"v_permlane32_swap_b32 v{m}, v{m+1}")
        a("s_nop 1")
        a(f"v_max_f32 v{m}, v{m}, v{m+1}")
        for i in range(16):
            a(f"v_mul_f32 v{C+i}, -1.0, v{m}")

    ldK(0, 0)
    a("s_waitcnt lgkmcnt(0)")
    a(f"{MF} {vr(SA,16)}, {vr(KB,4)}, {vr(QA,4)}, 0")
    a(f"{MF} {vr(SB,16)}, {vr(KB,4)}, {vr(QB,4)}, 0")
    a("s_nop 15")
    rowmax_to_C(SA, CA, T)
    rowmax_to_C(SB, CB, T + 2)

    a.label("L_attn_restart")
    a(f"v_lshlrev_b32 v{vK}, 4, v{vL}")
    a(f"v_lshrrev_b32 v{vT0}, 5, v{vL}")
    a(f"v_and_b32 v{vT1}, 15, v{vL}")
    a(f"v_lshl_add_u32 v{vV}, v{vT0}, 4, v{vT1}")
    a(f"v_lshlrev_b32 v{vV}, 4, v{vV}")
    a(f"v_add_u32 v{vV}, 1024, v{vV}")
    for i in range(16):
        a(f"v_mov_b32 v{OA+i}, 0")
        a(f"v_mov_b32 v{OB+i}, 0")
        a(f"v_mov_b32 v{SB+i}, 0")
    ldK(0, 0)
    ldK(1, 2048)
    ldV(0, 0)
    a("s_waitcnt lgkmcnt(0)")
    a(f"{MF} {vr(SA,16)}, {vr(KB,4)}, {vr(QA,4)}, {vr(CA,16)}")
    a("s_mov_b32 s63, 0")
    a("s_nop 7")
    a("s_nop 1")
    U = 8
    if "prio" in EXPT:
        a("s_cmp_ge_u32 s38, 4")
        a("s_cbranch_scc0 L_attn_noprio0")
        a("s_setprio 1")
        a.label("L_attn_noprio0")
    stamp(a, 3)
    a.raw(".p2align 6")
    a.label("L_attn_loop")
    body_start = len(a.lines)
    a("s_cmp_eq_u32 s63, s62")
    a("s_cbranch_scc0 L_attn_nobar")
    a("s_waitcnt vmcnt(0)")
    a("s_barrier")
    a.label("L_attn_nobar")
    def ex(S, i): a(f"v_exp_f32 v{S+i}, v{S+i}")
    def SMx(txt):
        if "nopv" not in EXPT: a(txt)
    def MFx(txt):
        if "c0" in EXPT:
            txt = txt[:txt.rindex(",")] + ", 0"
        if "noqk" not in EXPT: a(txt)
    def fair():
        if "fair" in EXPT: a("s_nop 0")
    def exf(S, i):
        if "noexp" not in EXPT:
            ex(S, i)
        fair()
    DENSE = "dense" in EXPT
    PKA, PKB = 144, 152
    def cv(S, PK, j):
        a(f"v_cvt_pk_bf16_f32 v{PK+j}, v{S+2*j}, v{S+2*j+1}")
    for u in range(U):
        p = u & 1
        off = u * 2048
        if DENSE:
            exf(SA, 0); exf(SA, 1)
            a(f"{MF} {vr(OB,16)}, {vr(V1+4*(p^1),4)}, {vr(PKB+4,4)}, {vr(OB,16)}")
            exf(SA, 2); cv(SA, PKA, 0); exf(SA, 3); exf(SA, 4)
            MFx(f"{MF} {vr(SB,16)}, {vr(KB+4*p,4)}, {vr(QB,4)}, {vr(CB,16)}")
            ldK(p, off + 2 * 2048)
            ldV(p ^ 1, off + 2048)
            cv(SA, PKA, 1); exf(SA, 5); exf(SA, 6); cv(SA, PKA, 2); exf(SA, 7); exf(SA, 8); cv(SA, PKA, 3); exf(SA, 9); exf(SA, 10)
            a("s_waitcnt lgkmcnt(3)")
            a(f"{MF} {vr(OA,16)}, {vr(V0+4*p,4)}, {vr(PKA,4)}, {vr(OA,16)}")
            cv(SA, PKA, 4); exf(SA, 11); exf(SA, 12); cv(SA, PKA, 5); exf(SA, 13); exf(SA, 14); cv(SA, PKA, 6); exf(SA, 15)
            exf(SB, 0); cv(SA, PKA, 7); exf(SB, 1); exf(SB, 2)
            a(f"{MF} {vr(OA,16)}, {vr(V1+4*p,4)}, {vr(PKA+4,4)}, {vr(OA,16)}")
            cv(SB, PKB, 0); exf(SB, 3); exf(SB, 4)
            MFx(f"{MF} {vr(SA,16)}, {vr(KB+4*(p^1),4)}, {vr(QA,4)}, {vr(CA,16)}")
            cv(SB, PKB, 1); exf(SB, 5); exf(SB, 6); cv(SB, PKB, 2); exf(SB, 7); exf(SB, 8); cv(SB, PKB, 3); exf(SB, 9); exf(SB, 10)
            a(f"{MF} {vr(OB,16)}, {vr(V0+4*p,4)}, {vr(PKB,4)}, {vr(OB,16)}")
            cv(SB, PKB, 4); exf(SB, 11); exf(SB, 12); cv(SB, PKB, 5); exf(SB, 13); exf(SB, 14); cv(SB, PKB, 6); exf(SB, 15)
            a("s_nop 0")
            cv(SB, PKB, 7)
            continue
        exf(SA, 0); exf(SA, 1)
        SMx(f"{SM} {vr(OB,16)}, {vr(V1+4*(p^1),4)}, {vr(SB+8,8)}, v{IDX}")
        exf(SA, 2); exf(SA, 3); exf(SA, 4)
        MFx(f"{MF} {vr(SB,16)}, {vr(KB+4*p,4)}, {vr(QB,4)}, {vr(CB,16)}")
        if "nolds" not in EXPT:
            ldK(p, off + 2 * 2048)
            ldV(p ^ 1, off + 2048)
        for i in range(5, 10): exf(SA, i)
        a("s_waitcnt lgkmcnt(3)")
        SMx(f"{SM} {vr(OA,16)}, {vr(V0+4*p,4)}, {vr(SA,8)}, v{IDX}")
        for i in range(10, 16): exf(SA, i)
        exf(SB, 0); exf(SB, 1)
        SMx(f"{SM} {vr(OA,16)}, {vr(V1+4*p,4)}, {vr(SA+8,8)}, v{IDX}")
        exf(SB, 2); exf(SB, 3); exf(SB, 4)
        MFx(f"{MF} {vr(SA,16)}, {vr(KB+4*(p^1),4)}, {vr(QA,4)}, {vr(CA,16)}")
        for i in range(5, 10): exf(SB, i)
        SMx(f"{SM} {vr(OB,16)}, {vr(V0+4*p,4)}, {vr(SB,8)}, v{IDX}")
        for i in range(10, 16): exf(SB, i)
    if "prio" in EXPT:
        a("s_cmp_eq_u32 s63, 6")
        a("s_cbranch_scc0 L_attn_noprio")
        a("s_setprio 0")
        a.label("L_attn_noprio")
    a(f"v_add_u32 v{vK}, {U*2048}, v{vK}")
    a(f"v_add_u32 v{vV}, {U*2048}, v{vV}")
    if PROF:
        a("s_memtime s[90:91]")
        a("s_memrealtime s[92:93]")
        a("s_waitcnt lgkmcnt(0)")
        a("s_lshl_b32 s94, s63, 1")
        a("v_mov_b32 v167, s90")
        a(f"v_cmp_eq_u32 vcc, s94, v{vL}")
        a("s_add_u32 s94, s94, 1")
        a("s_nop 1")
        a("v_cndmask_b32 v166, v166, v167, vcc")
        a("v_mov_b32 v167, s92")
        a(f"v_cmp_eq_u32 vcc, s94, v{vL}")
        a("s_nop 1")
        a("v_cndmask_b32 v166, v166, v167, vcc")
    a("s_add_u32 s63, s63, 1")
    a(f"s_cmp_lt_u32 s63, {64//U}")
    a("s_cbranch_scc1 L_attn_loop")
    body_end = len(a.lines)
    stamp(a, 4)
    a("s_nop 0")
    a(f"{SM} {vr(OB,16)}, {vr(V1+4,4)}, {vr(SB+8,8)}, v{IDX}")
    a("s_waitcnt lgkmcnt(0)")
    a("s_nop 15")
    a(f"v_mul_f32 v{T}, 0, v{OA}")
    for i in range(1, 8): a(f"v_fma_f32 v{T}, v{OA+i}, 0, v{T}")
    for i in range(0, 8): a(f"v_fma_f32 v{T}, v{OB+i}, 0, v{T}")
    a(f"v_max_f32 v{T+1}, v{OA+8}, v{OB+8}")
    a(f"v_add_f32 v{T}, v{T}, v{T+1}")
    a(f"s_mov_b32 s64, {hex(f2u(2.0**60))}")
    a(f"v_cmp_gt_f32 vcc, s64, v{T}")
    if EXPT & {"nopv", "noqk", "noexp", "dense", "nolds"}:
        a("s_branch L_attn_fin")
    a("s_cmp_eq_u32 s62, 2")
    a("s_cbranch_scc1 L_attn_fin")
    a("s_cmp_eq_u64 vcc, exec")
    a("s_cbranch_scc1 L_attn_fin")
    a("s_mov_b32 s62, 2")
    a(f"v_lshlrev_b32 v{vK}, 4, v{vL}")
    a(f"v_mov_b32 v{T+4}, 0xff800000")
    a(f"v_mov_b32 v{T+5}, 0xff800000")
    a("s_mov_b32 s63, 0")
    a.label("L_attn_maxloop")
    ldK(0, 0)
    a("s_waitcnt lgkmcnt(0)")
    a(f"{MF} {vr(SA,16)}, {vr(KB,4)}, {vr(QA,4)}, 0")
    a(f"{MF} {vr(SB,16)}, {vr(KB,4)}, {vr(QB,4)}, 0")
    a("s_nop 15")
    for i in range(0, 16, 2):
        a(f"v_max3_f32 v{T+4}, v{T+4}, v{SA+i}, v{SA+i+1}")
        a(f"v_max3_f32 v{T+5}, v{T+5}, v{SB+i}, v{SB+i+1}")
    a(f"v_add_u32 v{vK}, 2048, v{vK}")
    a("s_add_u32 s63, s63, 1")
    a("s_cmp_lt_u32 s63, 64")
    a("s_cbranch_scc1 L_attn_maxloop")
    for (m, C) in ((T + 4, CA), (T + 5, CB)):
        a(f"v_mov_b32 v{T}, v{m}")
        a(f"v_mov_b32 v{T+1}, v{m}")
        a("s_nop 1")
        a(f"v_permlane32_swap_b32 v{T}, v{T+1}")
        a("s_nop 1")
        a(f"v_max_f32 v{T}, v{T}, v{T+1}")
        for i in range(16):
            a(f"v_mul_f32 v{C+i}, -1.0, v{T}")
    a("s_branch L_attn_restart")
    a.label("L_attn_fin")
    a(f"v_rcp_f32 v{T}, v{OA+8}")
    a(f"v_rcp_f32 v{T+1}, v{OB+8}")
    a("s_nop 0")
    for i in range(8):
        a(f"v_mul_f32 v{OA+i}, v{T}, v{OA+i}")
        a(f"v_mul_f32 v{OB+i}, v{T+1}, v{OB+i}")
    for j in range(4):
        a(f"v_cvt_pk_bf16_f32 v{T+4+j}, v{OA+2*j}, v{OA+2*j+1}")
        a(f"v_cvt_pk_bf16_f32 v{T+8+j}, v{OB+2*j}, v{OB+2*j+1}")
    a(f"v_lshlrev_b32 v{vK}, 4, v{vL}")
    a(f"buffer_store_dwordx4 {vr(T+4,4)}, v{vK}, s[32:35], s50 offen")
    a("s_add_u32 s50, s50, 1024")
    a(f"buffer_store_dwordx4 {vr(T+8,4)}, v{vK}, s[32:35], s50 offen")
    a("s_waitcnt vmcnt(0)")
    stamp(a, 5); stamp_rt(a, 7)
    if PROF:
        a("s_mul_i32 s68, s2, 8")
        a("s_add_u32 s68, s68, s38")
        a("s_lshl_b32 s68, s68, 8")
        a(f"s_add_u32 s68, s68, {WS_PROF + (1<<20)}")
        a(f"v_lshlrev_b32 v1, 2, v{vL}")
        a("buffer_store_dword v166, v1, s[32:35], s68 offen")
    stamp_flush(a, 1, 8, 8)
    a.label("L_attn_end")
    a("s_endpgm")
    a.loop = (body_start, body_end)
    return a, kdesc(name, 168)

def gen_oproj():
    a = Asm()
    name = "oproj_kernel"
    header(a, name)
    X = 64
    ACC = 16
    AF = 48
    vW, vA0, vA1, vA2, vA3, vL, vT0, vT1, vT2 = 2, 3, 4, 5, 6, 7, 8, 9, 10
    a("s_cmp_ge_u32 s2, 256")
    a("s_cbranch_scc1 L_op_end")
    stamp(a, 0); stamp_rt(a, 6)
    a(f"s_load_dwordx2 s[4:5], s[0:1], {KA['woA']}")
    a(f"s_load_dwordx2 s[6:7], s[0:1], {KA['woB']}")
    a(f"s_load_dwordx2 s[8:9], s[0:1], {KA['out']}")
    a(f"s_load_dwordx2 s[20:21], s[0:1], {KA['ws']}")
    a("v_lshrrev_b32 v8, 6, v0")
    a(f"v_and_b32 v{vL}, 63, v0")
    a("v_readfirstlane_b32 s38, v8")
    a("s_and_b32 s36, s2, 7")
    a("s_lshr_b32 s37, s2, 3")
    a("s_and_b32 s42, s37, 7")
    a("s_lshr_b32 s37, s37, 3")
    a("s_lshl_b32 s36, s36, 2")
    a("s_add_u32 s37, s37, s36")
    a("s_and_b32 s40, s38, 1")
    a("s_lshr_b32 s41, s38, 1")
    a("s_lshl_b32 s45, s37, 1")
    a("s_add_u32 s45, s45, s40")
    a("s_lshl_b32 s46, s45, 6")
    a("s_lshl_b32 s47, s41, 5")
    a("s_add_u32 s46, s46, s47")
    a("s_lshl_b32 s46, s46, 10")
    a(f"s_add_u32 s46, s46, {WS_O}")
    a(f"v_lshlrev_b32 v1, 4, v{vL}")
    a(f"v_lshrrev_b32 v{vT0}, 3, v{vL}")
    a(f"v_and_b32 v{vT1}, 7, v{vL}")
    a(f"v_bfe_u32 v{vT2}, v{vT0}, 1, 1")
    a(f"v_lshlrev_b32 v{vT2}, 2, v{vT2}")
    a(f"v_xor_b32 v{vT1}, v{vT1}, v{vT2}")
    a(f"v_lshlrev_b32 v{vW}, 4, v{vT1}")
    a(f"v_lshl_add_u32 v{vW}, v{vT0}, 10, v{vW}")
    a("s_lshl_b32 s47, s42, 7")
    a(f"v_add_u32 v{vW}, s47, v{vW}")
    a(f"v_lshrrev_b32 v{vT0}, 4, v{vL}")
    a(f"v_and_b32 v{vT2}, 15, v{vL}")
    a(f"v_lshrrev_b32 v{vT1}, 5, v{vL}")
    a(f"v_lshrrev_b32 v{vA1}, 2, v{vT2}")
    a(f"v_lshl_add_u32 v{vA0}, v{vT1}, 2, v{vA1}")
    a(f"v_lshlrev_b32 v{vA0}, 7, v{vA0}")
    a(f"v_and_b32 v{vA2}, 1, v{vT0}")
    a(f"v_lshlrev_b32 v{vA2}, 1, v{vA2}")
    a(f"v_bfe_u32 v{vA3}, v{vT2}, 1, 1")
    a(f"v_add_u32 v{vA2}, v{vA2}, v{vA3}")
    a(f"v_bfe_u32 v{vA3}, v{vA1}, 1, 1")
    a(f"v_lshlrev_b32 v{vA3}, 2, v{vA3}")
    a(f"v_xor_b32 v{vA2}, v{vA2}, v{vA3}")
    a(f"v_lshl_add_u32 v{vA0}, v{vA2}, 4, v{vA0}")
    a(f"v_and_b32 v{vA3}, 1, v{vT2}")
    a(f"v_lshl_add_u32 v{vA0}, v{vA3}, 3, v{vA0}")
    a("s_lshl_b32 s47, s41, 16")
    a(f"v_add_u32 v{vA0}, s47, v{vA0}")
    a(f"v_xor_b32 v{vA1}, 64, v{vA0}")
    for i in range(32):
        a(f"v_mov_b32 v{ACC+i}, 0")
    a("s_waitcnt lgkmcnt(0)")
    srd(a, 24, 4, 512 * 1024)
    srd(a, 28, 6, 512 * 1024)
    srd(a, 32, 20, WS_SIZE)
    srd(a, 52, 8, 2048 * 1024)
    a(f"v_and_b32 v12, 31, v{vL}")
    a("v_lshlrev_b32 v12, 2, v12")
    a("s_lshl_b32 s47, s45, 7")
    a(f"s_add_u32 s47, s47, {WS_G}")
    a("buffer_load_dword v13, v12, s[32:35], s47 offen")
    a("s_lshl_b32 s48, s38, 13")
    a("s_lshl_b32 s49, s38, 10")
    for q in range(4):
        for bb in range(2):
            for st in range(4):
                i0 = 16 * q + 4 * st
                a(f"s_add_u32 m0, s49, {bb*65536 + i0*1024}")
                a(f"s_add_u32 s56, s48, {i0*8192}")
                a(f"buffer_load_dwordx4 v{vW}, s[{24+4*bb}:{27+4*bb}], s56 offen lds")
        for st in range(8):
            s = 8 * q + st
            a(f"s_add_u32 s56, s46, {s*1024}")
            a(f"buffer_load_dwordx4 {vr(X+4*s,4)}, v1, s[32:35], s56 offen")
    stamp(a, 1)
    def trreads(s, buf):
        off = s * 2048
        for u in range(2):
            r = AF + buf * 8 + u * 4
            va = (vA0, vA1)[u]
            a(f"ds_read_b64_tr_b16 {vr(r,2)}, v{va} offset:{off}")
            a(f"ds_read_b64_tr_b16 {vr(r+2,2)}, v{va} offset:{off+1024}")
    for q in range(4):
        a(f"s_waitcnt vmcnt({16*(3-q)})")
        a("s_barrier")
        if q == 0: stamp(a, 2)
        if q == 3: stamp(a, 3)
        trreads(8 * q, 0)
        for st in range(8):
            s = 8 * q + st
            buf = st & 1
            if st < 7:
                trreads(s + 1, buf ^ 1)
                a("s_waitcnt lgkmcnt(4)")
            else:
                a("s_waitcnt lgkmcnt(0)")
            for u in range(2):
                a(f"{MF} {vr(ACC+16*u,16)}, {vr(AF+buf*8+u*4,4)}, {vr(X+4*s,4)}, {vr(ACC+16*u,16)}")
    stamp(a, 4)
    a("s_barrier")
    a("s_nop 15")
    a("s_lshl_b32 s47, s38, 12")
    a(f"v_lshlrev_b32 v12, 4, v{vL}")
    a("v_add_u32 v12, s47, v12")
    a("s_cmp_eq_u32 s41, 0")
    a("s_cbranch_scc0 L_op_b1")
    for j in range(4):
        a(f"ds_write_b128 v12, {vr(ACC+16+4*j,4)} offset:{j*1024}")
    a("s_branch L_op_x")
    a.label("L_op_b1")
    for j in range(4):
        a(f"ds_write_b128 v12, {vr(ACC+4*j,4)} offset:{j*1024}")
    a.label("L_op_x")
    a("s_waitcnt lgkmcnt(0)")
    a("s_barrier")
    a("s_xor_b32 s47, s38, 2")
    a("s_lshl_b32 s47, s47, 12")
    a(f"v_lshlrev_b32 v12, 4, v{vL}")
    a("v_add_u32 v12, s47, v12")
    R = 192
    for j in range(4):
        a(f"ds_read_b128 {vr(R+4*j,4)}, v12 offset:{j*1024}")
    a("s_waitcnt lgkmcnt(0)")
    a("s_cmp_eq_u32 s41, 0")
    a("s_cbranch_scc0 L_op_b1b")
    for i in range(16):
        a(f"v_mov_b32 v{ACC+16+i}, v{R+i}")
    a("s_branch L_op_y")
    a.label("L_op_b1b")
    for i in range(16):
        a(f"v_mov_b32 v{ACC+i}, v{R+i}")
    a.label("L_op_y")
    a("v_sub_f32 v14, 1.0, v13")
    a("v_cvt_pk_bf16_f32 v14, v14, v14")
    a("v_lshlrev_b32 v14, 16, v14")
    def rnd2(dst, s0, s1):
        a(f"v_cvt_pk_bf16_f32 v{dst}, v{s0}, v{s1}")
        a(f"v_lshlrev_b32 v{s0}, 16, v{dst}")
        a(f"v_and_b32 v{s1}, 0xffff0000, v{dst}")
    for i in range(0, 16, 2):
        A0, B0 = ACC + i, ACC + 16 + i
        rnd2(15, A0, A0 + 1)
        rnd2(15, B0, B0 + 1)
        a(f"v_mul_f32 v{A0}, v13, v{A0}")
        a(f"v_mul_f32 v{A0+1}, v13, v{A0+1}")
        a(f"v_mul_f32 v{B0}, v14, v{B0}")
        a(f"v_mul_f32 v{B0+1}, v14, v{B0+1}")
        rnd2(15, A0, A0 + 1)
        rnd2(15, B0, B0 + 1)
        a(f"v_add_f32 v{A0}, v{A0}, v{B0}")
        a(f"v_add_f32 v{A0+1}, v{A0+1}, v{B0+1}")
        a(f"v_cvt_pk_bf16_f32 v{R+i//2}, v{A0}, v{A0+1}")
    a(f"v_and_b32 v12, 31, v{vL}")
    a("s_lshl_b32 s47, s45, 5")
    a("v_add_u32 v12, s47, v12")
    a("v_lshlrev_b32 v12, 10, v12")
    a(f"v_lshrrev_b32 v15, 5, v{vL}")
    a("v_lshl_add_u32 v12, v15, 3, v12")
    a("s_lshl_b32 s47, s42, 7")
    a("s_lshl_b32 s56, s41, 6")
    a("s_add_u32 s47, s47, s56")
    for q in range(4):
        a(f"buffer_store_dwordx2 {vr(R+2*q,2)}, v12, s[52:55], s47 offen offset:{q*16}")
    a("s_waitcnt vmcnt(0)")
    stamp(a, 5); stamp_rt(a, 7)
    stamp_flush(a, 2, 4, 8)
    a.label("L_op_end")
    a("s_endpgm")
    return a, kdesc(name, 216)

def build(path):
    ref = open("cdna_kernels/" + NAME + ".s.ref").read().split("\n")
    hdr = [l for l in ref if l.startswith(";") and "@launch" not in l and "Override launch" not in l and "grid=ceil" not in l]
    hdr = hdr[:16]
    k1, d1 = gen_proj()
    k2, d2 = gen_attn()
    k3, d3 = gen_oproj()
    errs = check(k1.lines, "proj") + check(k3.lines, "oproj")
    bs, be = k2.loop
    errs += check(k2.lines, "attn")
    errs += check(k2.lines[bs:be] + k2.lines[bs:be], "attn-loop")
    for e in errs[:6]: print("HAZARD", e)
    out = "\n".join(hdr) + "\n"
    out += "; @launch kernel=proj_kernel grid=(256,1,1) block=(256,1,1) lds=163840\n"
    out += "; @launch kernel=attn_kernel grid=(256,1,1) block=(512,1,1) lds=135168\n"
    out += "; @launch kernel=oproj_kernel grid=(256,1,1) block=(256,1,1) lds=131072\n"
    out += '.amdgcn_target "amdgcn-amd-amdhsa--gfx950"\n.text\n'
    out += k1.text() + k2.text() + k3.text()
    out += '.section .rodata,"a"\n.p2align 6\n' + d1 + ".p2align 6\n" + d2 + ".p2align 6\n" + d3
    open(path, "w").write(out)
    return len(errs)

if __name__ == "__main__":
    if "--ones0" in sys.argv:
        ONES_MODE = 0
        sys.argv.remove("--ones0")
    for arg in list(sys.argv):
        if arg.startswith("--x="):
            EXPT.update(arg[4:].split(","))
            sys.argv.remove(arg)
    if "--prof" in sys.argv:
        PROF = True
        sys.argv.remove("--prof")
    p = sys.argv[1] if len(sys.argv) > 1 else "cdna_kernels/" + NAME + ".s"
    n = build(p)
    print("written", p, "hazards:", n)
```

```python
import sys, math, struct
from asmlib import *

NAME = "gated_mix__grouped_kv_mqa__grouped_kv_mqa__prompt"
KA = dict(x=0, wqA=8, wkA=16, wvA=24, woA=32, xB=40, wqB=48, wkB=56, wvB=64, woB=72, gw=80, out=88, dbg=96, ws=104)
WS_KV = 4 << 20
WS_G = WS_KV + (256 << 10)
WS_O = 8 << 20
WS_SIZE = 16 << 20
WS_PROF = 13 << 20
CQ = 0.25 * math.log2(math.e)
def f2u(f): return struct.unpack("<I", struct.pack("<f", f))[0]
MF = "v_mfma_f32_32x32x16_bf16"
SM = "v_smfmac_f32_32x32x32_bf16"
PROF = False
EXPT = set()
FUSE3 = False

L_S = [0, 112 << 10, 128 << 10, 144 << 10]
L_PART = 16 << 10
L_GW = L_PART + 3072
L_WKV = 32 << 10
L_X = 48 << 10
L_KV = 32 << 10

sX, sWQ, sWKV, sWS, sDBG, sWO, sOUT, sGW = 20, 24, 28, 32, 36, 40, 44, 48
sW, sB, sHG, sTB, sGI, sTT, sC, sTTKV = 52, 53, 54, 55, 56, 57, 58, 59
sVM = 60
sPASS, sWL, sROLE, sTYPE = 62, 63, 64, 65
sT0, sT1, sT2, sT3, sT4, sT5 = 66, 67, 68, 69, 70, 71
sM0, sOFF = 72, 73
sST = 76

def srd(a, d, base, nbytes):
    a(f"s_mov_b32 s{d}, s{base}")
    a(f"s_and_b32 s{d+1}, s{base+1}, 0xffff")
    a(f"s_mov_b32 s{d+2}, {nbytes}")
    a(f"s_mov_b32 s{d+3}, 0x20000")

def kdesc(name, vgpr, sgpr=100, accum=None):
    if accum is None: accum = (vgpr + 3) // 4 * 4
    return f""".amdhsa_kernel {name}
  .amdhsa_next_free_vgpr {vgpr}
  .amdhsa_next_free_sgpr {sgpr}
  .amdhsa_accum_offset {accum}
  .amdhsa_group_segment_fixed_size 0
  .amdhsa_kernarg_size 112
  .amdhsa_user_sgpr_count 2
  .amdhsa_user_sgpr_kernarg_segment_ptr 1
  .amdhsa_system_sgpr_workgroup_id_x 1
  .amdhsa_float_denorm_mode_32 3
.end_amdhsa_kernel
"""
def header(a, name):
    a.raw(f".globl {name}"); a.raw(".p2align 8"); a.raw(f".type {name},@function"); a.label(name)

NST = 10
def stamp(a, idx):
    if PROF: a(f"s_memtime s[{sST+2*idx}:{sST+2*idx+1}]")
def stamp_rt(a, idx):
    if PROF: a(f"s_memrealtime s[{sST+2*idx}:{sST+2*idx+1}]")
def stamp_flush(a, kidx, wpb, vtmp0, vtmp1):
    if not PROF: return
    a("s_waitcnt lgkmcnt(0)")
    a(f"s_mul_i32 s{sT0}, s2, {wpb}")
    a(f"s_add_u32 s{sT0}, s{sT0}, s{sW}")
    a(f"s_lshl_b32 s{sT0}, s{sT0}, 6")
    a(f"s_add_u32 s{sT0}, s{sT0}, {WS_PROF + kidx*(256<<10)}")
    a(f"v_mov_b32 v{vtmp0}, 0")
    for i in range(NST + 2):
        a(f"v_mov_b32 v{vtmp1}, s{sST+2*i}")
        a(f"buffer_store_dword v{vtmp1}, v{vtmp0}, s[{sWS}:{sWS+3}], s{sT0} offen offset:{4*i}")
        a("s_nop 1")
    a("s_waitcnt vmcnt(0)")

def gen_fused():
    a = Asm()
    name = "fused_kernel"
    header(a, name)
    vL, vK, vV, vT0, vT1, vT2, vT3 = 1, 2, 3, 4, 5, 6, 7
    QA, QB = 8, 12
    CA, CB = 16, 32
    SA, SB = 48, 64
    OA, OB = 80, 96
    KB = 112; V0 = 120; V1 = 128; IDX = 136
    vXa = 16
    vAa = 24
    vWq = 28
    vE = 29
    ACC = 32
    EAC = 48
    AF = 64
    XF = 72
    RD = 80
    WOA = 132 + 8
    a("s_cmp_ge_u32 s2, 256")
    a("s_cbranch_scc1 L_end")
    stamp(a, 0); stamp_rt(a, NST)
    a(f"s_load_dwordx2 s[4:5], s[0:1], {KA['x']}")
    a(f"s_load_dwordx2 s[10:11], s[0:1], {KA['ws']}")
    a(f"s_load_dwordx2 s[12:13], s[0:1], {KA['dbg']}")
    a(f"s_load_dwordx2 s[18:19], s[0:1], {KA['gw']}")
    a(f"s_load_dwordx2 s[16:17], s[0:1], {KA['out']}")
    a("v_lshrrev_b32 v4, 6, v0")
    a(f"v_and_b32 v{vL}, 63, v0")
    a(f"v_readfirstlane_b32 s{sW}, v4")
    a(f"s_lshr_b32 s{sT0}, s2, 3")
    a(f"s_and_b32 s{sGI}, s{sT0}, 7")
    a(f"s_lshr_b32 s{sT0}, s{sT0}, 3")
    a(f"s_and_b32 s{sT1}, s2, 7")
    a(f"s_lshl_b32 s{sT1}, s{sT1}, 2")
    a(f"s_add_u32 s{sTB}, s{sT1}, s{sT0}")
    a(f"s_lshr_b32 s{sB}, s{sGI}, 2")
    a(f"s_and_b32 s{sHG}, s{sGI}, 3")
    a(f"s_lshr_b32 s{sTYPE}, s{sHG}, 1")
    a(f"s_and_b32 s{sTTKV}, s{sHG}, 1")
    a(f"s_lshr_b32 s{sTT}, s{sW}, 2")
    a(f"s_and_b32 s{sC}, s{sW}, 3")
    a(f"s_mov_b32 s{sWL}, s{sC}")
    a(f"s_cmp_eq_u32 s{sTT}, s{sTTKV}")
    a(f"s_cselect_b32 s{sROLE}, 1, 0")
    a(f"s_mul_i32 s{sT0}, s{sB}, 40")
    a(f"s_add_u32 s{sT2}, s0, s{sT0}")
    a(f"s_addc_u32 s{sT3}, s1, 0")
    a(f"s_load_dwordx2 s[6:7], s[{sT2}:{sT3}], 8")
    a(f"s_lshl_b32 s{sT1}, s{sTYPE}, 3")
    a(f"s_add_u32 s{sT4}, s{sT2}, s{sT1}")
    a(f"s_addc_u32 s{sT5}, s{sT3}, 0")
    a(f"s_load_dwordx2 s[8:9], s[{sT4}:{sT5}], 16")
    if FUSE3:
        a(f"s_mul_i32 s{sT0}, s{sTT}, 40")
        a(f"s_add_u32 s{sT4}, s0, s{sT0}")
        a(f"s_addc_u32 s{sT5}, s1, 0")
        a(f"s_load_dwordx2 s[14:15], s[{sT4}:{sT5}], 32")
    a("s_waitcnt lgkmcnt(0)")
    srd(a, sX, 4, 2048 * 1024)
    srd(a, sWQ, 6, 512 * 1024)
    srd(a, sWKV, 8, 16384)
    srd(a, sWS, 10, WS_SIZE)
    srd(a, sDBG, 12, 256)
    srd(a, sGW, 18, 1024)
    srd(a, sOUT, 16, 2048 * 1024)
    if FUSE3: srd(a, sWO, 14, 512 * 1024)
    stamp(a, 1)
    def xrow_dma():
        a(f"s_and_b32 s{sT1}, s{sT0}, 15")
        a(f"v_xor_b32 v{vT0}, s{sT1}, v{vL}")
        a(f"v_lshlrev_b32 v{vT0}, 4, v{vT0}")
        a(f"s_lshl_b32 s{sT1}, s{sT0}, 10")
        a(f"s_add_u32 m0, s{sT1}, {L_X}")
        a(f"s_lshl_b32 s{sT2}, s{sTB}, 16")
        a(f"s_add_u32 s{sT1}, s{sT1}, s{sT2}")
        a(f"buffer_load_dwordx4 v{vT0}, s[{sX}:{sX+3}], s{sT1} offen lds")
    for i in range(4):
        a(f"s_lshl_b32 s{sT0}, s{sTTKV}, 5")
        a(f"s_add_u32 s{sT0}, s{sT0}, s{sW}")
        if i: a(f"s_add_u32 s{sT0}, s{sT0}, {8*i}")
        xrow_dma()
    a(f"v_lshlrev_b32 v{vK}, 4, v{vL}")
    a(f"s_lshl_b32 s{sT1}, s{sW}, 11")
    a(f"s_add_u32 m0, s{sT1}, {L_WKV}")
    a("s_nop 0")
    a(f"buffer_load_dwordx4 v{vK}, s[{sWKV}:{sWKV+3}], s{sT1} offen lds")
    a(f"s_add_u32 s{sT1}, s{sT1}, 1024")
    a(f"s_add_u32 m0, s{sT1}, {L_WKV}")
    a("s_nop 0")
    a(f"buffer_load_dwordx4 v{vK}, s[{sWKV}:{sWKV+3}], s{sT1} offen lds")
    a(f"v_lshrrev_b32 v{vT0}, 4, v{vL}")
    a(f"v_and_b32 v{vT2}, 15, v{vL}")
    a(f"v_lshlrev_b32 v{vWq}, 2, v{vT0}")
    a(f"v_xor_b32 v{vWq}, v{vWq}, v{vT2}")
    a(f"v_lshlrev_b32 v{vWq}, 4, v{vWq}")
    a(f"v_lshl_add_u32 v{vWq}, v{vT0}, 10, v{vWq}")
    a(f"s_lshl_b32 s{sT1}, s{sHG}, 8")
    a(f"v_add_u32 v{vWq}, s{sT1}, v{vWq}")
    def wq_chunk(c):
        slot = L_S[c % 4]
        for i in range(4):
            a(f"s_lshl_b32 s{sT1}, s{sWL}, 12")
            a(f"s_add_u32 m0, s{sT1}, {slot + i*1024}")
            a(f"s_lshl_b32 s{sT1}, s{sWL}, 14")
            a(f"s_add_u32 s{sT1}, s{sT1}, {(64*c + 4*i)*1024}")
            a(f"buffer_load_dwordx4 v{vWq}, s[{sWQ}:{sWQ+3}], s{sT1} offen lds")
    a(f"s_cmp_eq_u32 s{sROLE}, 1")
    a("s_cbranch_scc0 L_wrole_issue")
    a(f"s_mov_b32 m0, {L_GW}")
    a("s_nop 0")
    a(f"buffer_load_dwordx4 v{vK}, s[{sGW}:{sGW+3}], 0 offen lds")
    for i in range(8):
        a(f"s_xor_b32 s{sT0}, s{sTTKV}, 1")
        a(f"s_lshl_b32 s{sT0}, s{sT0}, 5")
        a(f"s_add_u32 s{sT0}, s{sT0}, s{sWL}")
        if i: a(f"s_add_u32 s{sT0}, s{sT0}, {4*i}")
        xrow_dma()
    a("s_branch L_issue_done")
    a.label("L_wrole_issue")
    for c in range(4): wq_chunk(c)
    a.label("L_issue_done")
    stamp(a, 2)
    a(f"v_and_b32 v{vT0}, 31, v{vL}")
    a(f"v_lshrrev_b32 v{vT1}, 5, v{vL}")
    a(f"s_lshl_b32 s{sT0}, s{sTT}, 5")
    a(f"v_add_u32 v{vT2}, s{sT0}, v{vT0}")
    a(f"v_lshlrev_b32 v{vT2}, 10, v{vT2}")
    a(f"v_add_u32 v{vT2}, {L_X}, v{vT2}")
    a(f"v_and_b32 v{vT0}, 15, v{vT0}")
    for sp in range(8):
        a(f"v_add_u32 v{vT3}, {2*sp}, v{vT1}")
        a(f"v_xor_b32 v{vT3}, v{vT3}, v{vT0}")
        a(f"v_lshl_add_u32 v{vXa+sp}, v{vT3}, 4, v{vT2}")
    a(f"v_lshrrev_b32 v{vT0}, 4, v{vL}")
    a(f"v_and_b32 v{vT2}, 15, v{vL}")
    a(f"v_lshrrev_b32 v{vT3}, 2, v{vT2}")
    a(f"v_lshl_add_u32 v{vAa}, v{vT1}, 3, v{vT3}")
    a(f"v_lshlrev_b32 v{vE}, 5, v{vAa}")
    a(f"v_lshlrev_b32 v{vAa}, 8, v{vAa}")
    a(f"v_and_b32 v{vAa+1}, 1, v{vT0}")
    a(f"v_lshlrev_b32 v{vAa+1}, 1, v{vAa+1}")
    a(f"v_bfe_u32 v{vAa+2}, v{vT2}, 1, 1")
    a(f"v_add_u32 v{vAa+1}, v{vAa+1}, v{vAa+2}")
    a(f"s_lshl_b32 s{sT0}, s{sC}, 2")
    a(f"v_add_u32 v{vAa+1}, s{sT0}, v{vAa+1}")
    a(f"v_lshlrev_b32 v{vT3}, 2, v{vT3}")
    a(f"v_xor_b32 v{vAa+1}, v{vAa+1}, v{vT3}")
    a(f"v_lshl_add_u32 v{vAa}, v{vAa+1}, 4, v{vAa}")
    a(f"v_and_b32 v{vAa+2}, 1, v{vT2}")
    a(f"v_lshl_add_u32 v{vAa}, v{vAa+2}, 3, v{vAa}")
    for k in range(1, 4):
        a(f"v_add_u32 v{vAa+k}, {L_S[k]}, v{vAa}")
    a(f"v_and_b32 v{vT3}, 3, v{vT2}")
    a(f"v_lshl_add_u32 v{vE}, v{vT3}, 3, v{vE}")
    a(f"v_add_u32 v{vE}, {L_WKV}, v{vE}")
    for i in range(16):
        a(f"v_mov_b32 v{ACC+i}, 0")
        a(f"v_mov_b32 v{EAC+i}, 0")
    a("s_mov_b32 s60, 0x0000ffff")
    a("s_mov_b32 s61, 0x0000ffff")
    a(f"s_cmp_eq_u32 s{sROLE}, 1")
    a("s_cbranch_scc0 L_w_b0")
    a("s_waitcnt vmcnt(8)")
    a("s_barrier")
    stamp(a, 3)
    a(f"s_lshl_b32 s{sT0}, s{sWL}, 8")
    for sp in range(8):
        a(f"v_add_u32 v{RD+sp}, s{sT0}, v{vXa+sp}")
    a(f"s_lshl_b32 s{sT0}, s{sWL}, 12")
    a(f"v_add_u32 v{RD+8}, s{sT0}, v{vE}")
    a(f"s_lshl_b32 s{sT0}, s{sWL}, 8")
    a(f"v_lshlrev_b32 v{RD+9}, 4, v{vT1}")
    a(f"v_add_u32 v{RD+9}, s{sT0}, v{RD+9}")
    a(f"v_add_u32 v{RD+9}, {L_GW}, v{RD+9}")
    a(f"s_mov_b32 s{sT4}, 0x00010000")
    a(f"s_mov_b32 s{sT5}, 0x00010000")
    WF, XFF = 144, 176
    for sp in range(8):
        a(f"ds_read_b64_tr_b16 {vr(WF+4*sp,2)}, v{RD+8} offset:{sp*512}")
        a(f"ds_read_b64_tr_b16 {vr(WF+4*sp+2,2)}, v{RD+8} offset:{sp*512+128}")
        a(f"ds_read_b128 {vr(XFF+4*sp,4)}, v{RD+sp}")
    a(f"s_cmp_eq_u32 s{sTYPE}, 0")
    a("s_cbranch_scc0 L_kv_v")
    a(f"s_mov_b64 exec, s[{sT4}:{sT5}]")
    for sp in range(8):
        a(f"ds_read_b128 {vr(WF+4*sp,4)}, v{RD+9} offset:{sp*32}")
    a("s_mov_b64 exec, -1")
    a("s_waitcnt lgkmcnt(0)")
    for sp in range(8):
        a(f"{MF} {vr(EAC,16)}, {vr(WF+4*sp,4)}, {vr(XFF+4*sp,4)}, {vr(EAC,16)}")
    a("s_nop 15")
    a(f"s_lshl_b32 s{sT0}, s{sWL}, 12")
    a(f"v_add_u32 v{RD}, s{sT0}, v{vK}")
    for j in range(3):
        a(f"ds_write_b128 v{RD}, {vr(EAC+4*j,4)} offset:{L_PART + j*1024}")
    a("s_branch L_kv_pw")
    a.label("L_kv_v")
    a("s_waitcnt lgkmcnt(0)")
    for sp in range(8):
        a(f"{MF} {vr(EAC,16)}, {vr(XFF+4*sp,4)}, {vr(WF+4*sp,4)}, {vr(EAC,16)}")
    a("s_nop 15")
    a(f"v_and_b32 v{RD}, 15, v{vL}")
    a(f"v_lshl_add_u32 v{RD}, v{vT1}, 4, v{RD}")
    a(f"v_lshlrev_b32 v{RD}, 4, v{RD}")
    a(f"s_lshl_b32 s{sT0}, s{sWL}, 12")
    a(f"v_add_u32 v{RD}, s{sT0}, v{RD}")
    a("s_mov_b64 exec, s[60:61]")
    for j in range(4):
        a(f"ds_write_b128 v{RD}, {vr(EAC+4*j,4)} offset:{L_PART + j*512}")
    a("s_mov_b64 exec, -1")
    a.label("L_kv_pw")
    a("s_waitcnt lgkmcnt(0)")
    a("s_barrier")
    stamp(a, 4)
    a(f"s_cmp_eq_u32 s{sWL}, 0")
    a("s_cbranch_scc0 L_kv_notred")
    a(f"s_lshl_b32 s{sT0}, s{sTB}, 1")
    a(f"s_add_u32 s{sT0}, s{sT0}, s{sTTKV}")
    a(f"s_lshl_b32 s{sT1}, s{sT0}, 11")
    a(f"s_lshl_b32 s{sT2}, s{sB}, 17")
    a(f"s_add_u32 s{sT1}, s{sT1}, s{sT2}")
    a(f"s_add_u32 s{sT1}, s{sT1}, {WS_KV}")
    a(f"s_cmp_eq_u32 s{sTYPE}, 0")
    a("s_cbranch_scc0 L_red_v")
    for p in range(4):
        for j in range(3):
            a(f"ds_read_b128 {vr(WF+16*p+4*j,4)}, v{vK} offset:{L_PART + p*4096 + j*1024}")
    a("s_waitcnt lgkmcnt(0)")
    for i in range(9):
        a(f"v_add_f32 v{WF+i}, v{WF+i}, v{WF+16+i}")
        a(f"v_add_f32 v{WF+32+i}, v{WF+32+i}, v{WF+48+i}")
    for i in range(9):
        a(f"v_add_f32 v{WF+i}, v{WF+i}, v{WF+32+i}")
    for j in range(4):
        a(f"v_cvt_pk_bf16_f32 v{XFF+j}, v{WF+2*j}, v{WF+2*j+1}")
    a(f"v_and_b32 v{RD}, 0x33, v{vL}")
    a(f"v_and_b32 v{RD+1}, 4, v{vL}")
    a(f"v_lshl_add_u32 v{RD}, v{RD+1}, 1, v{RD}")
    a(f"v_and_b32 v{RD+1}, 8, v{vL}")
    a(f"v_lshrrev_b32 v{RD+1}, 1, v{RD+1}")
    a(f"v_add_u32 v{RD}, v{RD}, v{RD+1}")
    a(f"v_lshlrev_b32 v{RD}, 4, v{RD}")
    a(f"buffer_store_dwordx4 {vr(XFF,4)}, v{RD}, s[{sWS}:{sWS+3}], s{sT1} offen sc1")
    a(f"s_cmp_eq_u32 s{sB}, 0")
    a("s_cbranch_scc0 L_red_done")
    a(f"v_cvt_pk_bf16_f32 v{RD+2}, v{WF+8}, v{WF+8}")
    a(f"v_lshlrev_b32 v{RD+2}, 16, v{RD+2}")
    a(f"s_mov_b32 s{sT2}, {hex(f2u(-math.log2(math.e)))}")
    a(f"v_mul_f32 v{RD+2}, s{sT2}, v{RD+2}")
    a(f"v_exp_f32 v{RD+2}, v{RD+2}")
    a("s_nop 0")
    a(f"v_add_f32 v{RD+2}, 1.0, v{RD+2}")
    a(f"v_rcp_f32 v{RD+2}, v{RD+2}")
    a("s_nop 0")
    a(f"v_cvt_pk_bf16_f32 v{RD+2}, v{RD+2}, v{RD+2}")
    a(f"v_lshlrev_b32 v{RD+2}, 16, v{RD+2}")
    a(f"v_lshlrev_b32 v{RD+3}, 2, v{vL}")
    a(f"s_lshl_b32 s{sT2}, s{sT0}, 7")
    a(f"s_add_u32 s{sT2}, s{sT2}, {WS_G}")
    a(f"v_cmp_gt_u32 vcc, 32, v{vL}")
    a(f"s_and_saveexec_b64 s[{sT4}:{sT5}], vcc")
    a(f"buffer_store_dword v{RD+2}, v{RD+3}, s[{sWS}:{sWS+3}], s{sT2} offen sc1")
    a(f"s_mov_b64 exec, s[{sT4}:{sT5}]")
    a("s_branch L_red_done")
    a.label("L_red_v")
    a(f"v_and_b32 v{RD}, 15, v{vL}")
    a(f"v_lshl_add_u32 v{RD}, v{vT1}, 4, v{RD}")
    a(f"v_lshlrev_b32 v{RD}, 4, v{RD}")
    a("s_mov_b64 exec, s[60:61]")
    for p in range(4):
        for j in range(4):
            a(f"ds_read_b128 {vr(WF+16*p+4*j,4)}, v{RD} offset:{L_PART + p*4096 + j*512}")
    a("s_waitcnt lgkmcnt(0)")
    for i in range(16):
        a(f"v_add_f32 v{WF+i}, v{WF+i}, v{WF+16+i}")
        a(f"v_add_f32 v{WF+32+i}, v{WF+32+i}, v{WF+48+i}")
    for i in range(16):
        a(f"v_add_f32 v{WF+i}, v{WF+i}, v{WF+32+i}")
    for j in range(8):
        a(f"v_cvt_pk_bf16_f32 v{RD+8+j}, v{WF+2*j}, v{WF+2*j+1}")
    a(f"s_add_u32 s{sT1}, s{sT1}, 1024")
    a(f"buffer_store_dwordx4 {vr(RD+8,4)}, v{RD}, s[{sWS}:{sWS+3}], s{sT1} offen sc1")
    a(f"buffer_store_dwordx4 {vr(RD+12,4)}, v{RD}, s[{sWS}:{sWS+3}], s{sT1} offen offset:512 sc1")
    a("s_mov_b64 exec, -1")
    a.label("L_red_done")
    a("s_waitcnt vmcnt(0)")
    a(f"s_and_b32 s{sT0}, s2, 3")
    a(f"s_lshl_b32 s{sT1}, s{sB}, 2")
    a(f"s_add_u32 s{sT0}, s{sT0}, s{sT1}")
    a(f"s_lshl_b32 s{sT0}, s{sT0}, 4")
    a(f"v_mov_b32 v{RD}, s{sT0}")
    a(f"v_mov_b32 v{RD+1}, 1")
    a(f"v_cmp_eq_u32 vcc, 0, v{vL}")
    a(f"s_and_saveexec_b64 s[{sT4}:{sT5}], vcc")
    a(f"buffer_atomic_add v{RD+1}, v{RD}, s[{sDBG}:{sDBG+3}], 0 offen sc1")
    a(f"s_mov_b64 exec, s[{sT4}:{sT5}]")
    a("s_branch L_b1")
    a.label("L_kv_notred")
    a("s_waitcnt vmcnt(0)")
    a("s_branch L_b1")
    a.label("L_w_b0")
    a("s_waitcnt vmcnt(16)")
    a("s_barrier")
    a("s_barrier")
    a("s_waitcnt vmcnt(12)")
    a.label("L_b1")
    a("s_barrier")
    stamp(a, 5)
    def qreads(c, sp4, buf):
        s = 4 * c + sp4
        va = vAa + (c % 4)
        a(f"ds_read_b64_tr_b16 {vr(AF+4*buf,2)}, v{va} offset:{sp4*4096}")
        a(f"ds_read_b64_tr_b16 {vr(AF+4*buf+2,2)}, v{va} offset:{sp4*4096+1024}")
        a(f"ds_read_b128 {vr(XF+4*buf,4)}, v{vXa + (s % 8)} offset:{(s//8)*256}")
    for c in range(8):
        qreads(c, 0, 0)
        for sp4 in range(4):
            buf = sp4 & 1
            if sp4 < 3:
                qreads(c, sp4 + 1, buf ^ 1)
                a("s_waitcnt lgkmcnt(3)")
            else:
                a("s_waitcnt lgkmcnt(0)")
            a(f"{MF} {vr(ACC,16)}, {vr(AF+4*buf,4)}, {vr(XF+4*buf,4)}, {vr(ACC,16)}")
        if c < 7:
            lab = f"L_q{c}"
            a(f"s_cmp_eq_u32 s{sROLE}, 1")
            a(f"s_cbranch_scc1 {lab}_kv")
            n = 8 if c < 5 else (4 if c == 5 else 0)
            a(f"s_waitcnt vmcnt({n})")
            a("s_barrier")
            if c + 4 < 8: wq_chunk(c + 4)
            a(f"s_branch {lab}_j")
            a.label(f"{lab}_kv")
            a("s_barrier")
            a.label(f"{lab}_j")
    stamp(a, 6)
    a(f"s_mov_b32 s{sT0}, {hex(f2u(CQ))}")
    a("s_nop 15")
    for i in range(16):
        a(f"v_mul_f32 v{ACC+i}, s{sT0}, v{ACC+i}")
    for j in range(4):
        a(f"v_cvt_pk_bf16_f32 v{QA+j}, v{ACC+2*j}, v{ACC+2*j+1}")
        a(f"v_cvt_pk_bf16_f32 v{QB+j}, v{ACC+8+2*j}, v{ACC+8+2*j+1}")
    a(f"v_lshrrev_b32 v{vT0}, 5, v{vL}")
    a(f"v_and_b32 v{vT1}, 15, v{vL}")
    a(f"v_lshl_add_u32 v{vV}, v{vT0}, 4, v{vT1}")
    a(f"v_lshlrev_b32 v{vV}, 4, v{vV}")
    a(f"v_add_u32 v{vV}, {L_KV+1024}, v{vV}")
    a(f"v_mov_b32 v{IDX}, 0xdddddddd")
    a(f"v_and_b32 v{vT0}, 27, v{vL}")
    a(f"v_cmp_eq_u32 vcc, 16, v{vT0}")
    a(f"v_mov_b32 v{vT1}, 0x3f803f80")
    a("s_nop 0")
    for i in range(16):
        a(f"v_cndmask_b32 v{V0+i}, 0, v{vT1}, vcc")
    a(f"s_cmp_eq_u32 s{sW}, 7")
    a("s_cbranch_scc0 L_nopoll")
    a(f"v_and_b32 v{vT0}, 3, v{vL}")
    a(f"s_lshl_b32 s{sT0}, s{sB}, 2")
    a(f"v_add_u32 v{vT0}, s{sT0}, v{vT0}")
    a(f"v_lshlrev_b32 v{vT0}, 4, v{vT0}")
    a(f"s_mov_b32 s{sT1}, 0")
    a.label("L_poll")
    a(f"buffer_load_dword v{vT1}, v{vT0}, s[{sDBG}:{sDBG+3}], 0 offen sc1")
    a("s_waitcnt vmcnt(0)")
    a(f"v_cmp_eq_u32 vcc, 32, v{vT1}")
    a("s_cmp_eq_u64 vcc, exec")
    a("s_cbranch_scc1 L_nopoll")
    a(f"s_add_u32 s{sT1}, s{sT1}, 1")
    a(f"s_cmp_lt_u32 s{sT1}, 0x40000")
    a("s_cbranch_scc0 L_nopoll")
    a("s_sleep 1")
    a("s_branch L_poll")
    a.label("L_nopoll")
    a("s_barrier")
    stamp(a, 7)
    a(f"s_lshl_b32 s{sOFF}, s{sB}, 17")
    a(f"s_add_u32 s{sOFF}, s{sOFF}, {WS_KV}")
    a(f"s_lshl_b32 s{sM0}, s{sW}, 10")
    a(f"s_add_u32 s{sOFF}, s{sOFF}, s{sM0}")
    a(f"s_add_u32 s{sM0}, s{sM0}, {L_KV}")
    for st in range(16):
        a(f"s_mov_b32 m0, s{sM0}")
        a(f"s_add_u32 s{sM0}, s{sM0}, 8192")
        a(f"buffer_load_dwordx4 v{vK}, s[{sWS}:{sWS+3}], s{sOFF} offen sc1 lds")
        a(f"s_add_u32 s{sOFF}, s{sOFF}, 8192")
    a(f"v_add_u32 v{vK}, {L_KV}, v{vK}")
    a(f"s_mov_b32 s{sPASS}, 1")
    for i in range(16):
        a(f"v_mov_b32 v{OA+i}, 0")
        a(f"v_mov_b32 v{OB+i}, 0")
    a("s_waitcnt vmcnt(13)")
    a("s_barrier")
    stamp(a, 8)
    T = SA
    def ldK(buf, t):
        a(f"ds_read_b128 {vr(KB+4*buf,4)}, v{vK} offset:{(t % 32)*2048}") if t < 32 else a(f"ds_read_b128 {vr(KB+4*buf,4)}, v{vK2} offset:{(t % 32)*2048}")
    vK2, vV2 = 137, 138
    a(f"v_add_u32 v{vK2}, 0x10000, v{vK}")
    a(f"v_add_u32 v{vV2}, 0x10000, v{vV}")
    def ldV(buf, t):
        va = vV if t < 32 else vV2
        off = (t % 32) * 2048
        a("s_mov_b64 exec, s[60:61]")
        a(f"ds_read_b128 {vr(V0+4*buf,4)}, v{va} offset:{off}")
        a(f"ds_read_b128 {vr(V1+4*buf,4)}, v{va} offset:{off+512}")
        a("s_mov_b64 exec, -1")
    def neg_bcast(C, m):
        for i in range(16):
            a(f"v_mul_f32 v{C+i}, -1.0, v{m}")
    def crosshalf_max(m, t):
        a(f"v_mov_b32 v{t}, v{m}")
        a("s_nop 1")
        a(f"v_permlane32_swap_b32 v{m}, v{t}")
        a("s_nop 1")
        a(f"v_max_f32 v{m}, v{m}, v{t}")
    def rowmax(S, m):
        a(f"v_max3_f32 v{m}, v{S}, v{S+1}, v{S+2}")
        for i in range(3, 15, 2):
            a(f"v_max3_f32 v{m}, v{m}, v{S+i}, v{S+i+1}")
        a(f"v_max_f32 v{m}, v{m}, v{S+15}")
    ldK(0, 0)
    ldK(1, 1)
    ldV(0, 0)
    a("s_waitcnt lgkmcnt(3)")
    a(f"{MF} {vr(SA,16)}, {vr(KB,4)}, {vr(QA,4)}, 0")
    a(f"{MF} {vr(SB,16)}, {vr(KB,4)}, {vr(QB,4)}, 0")
    a("s_nop 15")
    rowmax(SA, vT0); rowmax(SB, vT2)
    crosshalf_max(vT0, vT1); crosshalf_max(vT2, vT3)
    neg_bcast(CA, vT0); neg_bcast(CB, vT2)
    a("s_branch L_go")
    a.label("L_restart")
    for i in range(16):
        a(f"v_mov_b32 v{OA+i}, 0")
        a(f"v_mov_b32 v{OB+i}, 0")
    ldK(0, 0)
    ldK(1, 1)
    ldV(0, 0)
    a.label("L_go")
    for i in range(8, 16):
        a(f"v_mov_b32 v{SB+i}, 0")
    a("s_waitcnt lgkmcnt(0)")
    a(f"{MF} {vr(SA,16)}, {vr(KB,4)}, {vr(QA,4)}, {vr(CA,16)}")
    if "noprio" not in EXPT:
        a(f"s_cmp_ge_u32 s{sW}, 4")
        a("s_cbranch_scc0 L_noprio0")
        a("s_setprio 1")
        a.label("L_noprio0")
    a("s_nop 7")
    a("s_nop 1")
    stamp(a, 9)
    def ex(S, i): a(f"v_exp_f32 v{S+i}, v{S+i}")
    main_start = len(a.lines)
    for t in range(64):
        p = t & 1
        if t == 6:
            a(f"s_cmp_eq_u32 s{sPASS}, 1")
            a("s_cbranch_scc0 L_nobar")
            a("s_waitcnt vmcnt(0)")
            a("s_barrier")
            a.label("L_nobar")
        if t == 56 and "noprio" not in EXPT:
            a("s_setprio 0")
        ex(SA, 0); ex(SA, 1)
        a(f"{SM} {vr(OB,16)}, {vr(V1+4*(p^1),4)}, {vr(SB+8,8)}, v{IDX}")
        ex(SA, 2); ex(SA, 3); ex(SA, 4)
        a(f"{MF} {vr(SB,16)}, {vr(KB+4*p,4)}, {vr(QB,4)}, {vr(CB,16)}")
        nld = 0
        if t + 2 < 64: ldK(p, t + 2); nld += 1
        if t + 1 < 64: ldV(p ^ 1, t + 1); nld += 2
        for i in range(5, 10): ex(SA, i)
        a(f"s_waitcnt lgkmcnt({nld})")
        a(f"{SM} {vr(OA,16)}, {vr(V0+4*p,4)}, {vr(SA,8)}, v{IDX}")
        for i in range(10, 16): ex(SA, i)
        ex(SB, 0); ex(SB, 1)
        a(f"{SM} {vr(OA,16)}, {vr(V1+4*p,4)}, {vr(SA+8,8)}, v{IDX}")
        ex(SB, 2); ex(SB, 3); ex(SB, 4)
        if t + 1 < 64:
            a(f"{MF} {vr(SA,16)}, {vr(KB+4*(p^1),4)}, {vr(QA,4)}, {vr(CA,16)}")
        else:
            a("s_nop 0")
        for i in range(5, 10): ex(SB, i)
        a(f"{SM} {vr(OB,16)}, {vr(V0+4*p,4)}, {vr(SB,8)}, v{IDX}")
        for i in range(10, 16): ex(SB, i)
    a("s_nop 1")
    a(f"{SM} {vr(OB,16)}, {vr(V1+4,4)}, {vr(SB+8,8)}, v{IDX}")
    a("s_nop 15")
    stamp_after_loop = True
    if PROF: a(f"s_memtime s[{sST+2*4}:{sST+2*4+1}]")
    a(f"v_mul_f32 v{SA}, 0, v{OA}")
    for i in range(1, 8): a(f"v_fma_f32 v{SA}, v{OA+i}, 0, v{SA}")
    for i in range(0, 8): a(f"v_fma_f32 v{SA}, v{OB+i}, 0, v{SA}")
    a(f"v_max_f32 v{SA+1}, v{OA+8}, v{OB+8}")
    a(f"v_add_f32 v{SA}, v{SA}, v{SA+1}")
    a(f"s_mov_b32 s{sT0}, {hex(f2u(2.0**60))}")
    a(f"v_cmp_gt_f32 vcc, s{sT0}, v{SA}")
    a(f"s_cmp_eq_u32 s{sPASS}, 2")
    a("s_cbranch_scc1 L_fin")
    a("s_cmp_eq_u64 vcc, exec")
    a("s_cbranch_scc1 L_fin")
    a(f"s_mov_b32 s{sPASS}, 2")
    a(f"v_mov_b32 v{vT0}, 0xff800000")
    a(f"v_mov_b32 v{vT2}, 0xff800000")
    a(f"v_mov_b32 v{vT1}, v{vK}")
    a(f"s_mov_b32 s{sT0}, 0")
    a.label("L_maxloop")
    a(f"ds_read_b128 {vr(KB,4)}, v{vT1}")
    a("s_waitcnt lgkmcnt(0)")
    a(f"{MF} {vr(SA,16)}, {vr(KB,4)}, {vr(QA,4)}, 0")
    a(f"{MF} {vr(SB,16)}, {vr(KB,4)}, {vr(QB,4)}, 0")
    a("s_nop 15")
    for i in range(0, 16, 2):
        a(f"v_max3_f32 v{vT0}, v{vT0}, v{SA+i}, v{SA+i+1}")
        a(f"v_max3_f32 v{vT2}, v{vT2}, v{SB+i}, v{SB+i+1}")
    a(f"v_add_u32 v{vT1}, 2048, v{vT1}")
    a(f"s_add_u32 s{sT0}, s{sT0}, 1")
    a(f"s_cmp_lt_u32 s{sT0}, 64")
    a("s_cbranch_scc1 L_maxloop")
    crosshalf_max(vT0, vT1); crosshalf_max(vT2, vT3)
    neg_bcast(CA, vT0); neg_bcast(CB, vT2)
    a("s_branch L_restart")
    a.label("L_fin")
    a(f"v_rcp_f32 v{vT0}, v{OA+8}")
    a(f"v_rcp_f32 v{vT1}, v{OB+8}")
    a("s_nop 0")
    for i in range(8):
        a(f"v_mul_f32 v{OA+i}, v{vT0}, v{OA+i}")
        a(f"v_mul_f32 v{OB+i}, v{vT1}, v{OB+i}")
    for j in range(4):
        a(f"v_cvt_pk_bf16_f32 v{SA+j}, v{OA+2*j}, v{OA+2*j+1}")
        a(f"v_cvt_pk_bf16_f32 v{SA+4+j}, v{OB+2*j}, v{OB+2*j+1}")
    a(f"s_lshl_b32 s{sT0}, s{sTB}, 1")
    a(f"s_add_u32 s{sT0}, s{sT0}, s{sTT}")
    a(f"s_lshl_b32 s{sT0}, s{sT0}, 6")
    a(f"s_lshl_b32 s{sT1}, s{sGI}, 3")
    a(f"s_add_u32 s{sT0}, s{sT0}, s{sT1}")
    a(f"s_lshl_b32 s{sT1}, s{sC}, 1")
    a(f"s_add_u32 s{sT0}, s{sT0}, s{sT1}")
    a(f"s_lshl_b32 s{sT0}, s{sT0}, 10")
    a(f"s_add_u32 s{sT0}, s{sT0}, {WS_O}")
    a(f"v_lshlrev_b32 v{vT0}, 4, v{vL}")
    sc = "sc1" if FUSE3 else ""
    a(f"buffer_store_dwordx4 {vr(SA,4)}, v{vT0}, s[{sWS}:{sWS+3}], s{sT0} offen {sc}")
    a(f"buffer_store_dwordx4 {vr(SA+4,4)}, v{vT0}, s[{sWS}:{sWS+3}], s{sT0} offen offset:1024 {sc}")
    a("s_waitcnt vmcnt(0)")
    if PROF: a(f"s_memtime s[{sST+2*3}:{sST+2*3+1}]")
    stamp_rt(a, NST + 1)
    stamp_flush(a, 0, 8, vT0, vT1)
    a.label("L_end")
    a("s_endpgm")
    return a, kdesc(name, 208)

def build(path):
    import gen as G
    ref = open("cdna_kernels/" + NAME + ".s.ref").read().split("\n")
    hdr = [l for l in ref if l.startswith(";") and "@launch" not in l and "Override launch" not in l and "grid=ceil" not in l][:16]
    k2, d2 = gen_fused()
    G.PROF = False
    k3, d3 = G.gen_oproj()
    errs = check(k2.lines, "fused") + check(k3.lines, "oproj")
    for e in errs[:10]: print("HAZARD", e)
    out = "\n".join(hdr) + "\n"
    out += "; @launch kernel=fused_kernel grid=(256,1,1) block=(512,1,1) lds=163840\n"
    out += "; @launch kernel=oproj_kernel grid=(256,1,1) block=(256,1,1) lds=131072\n"
    out += '.amdgcn_target "amdgcn-amd-amdhsa--gfx950"\n.text\n'
    out += k2.text() + k3.text()
    out += '.section .rodata,"a"\n.p2align 6\n' + d2 + ".p2align 6\n" + d3
    open(path, "w").write(out)
    return len(errs)

if __name__ == "__main__":
    for arg in list(sys.argv):
        if arg.startswith("--x="):
            EXPT.update(arg[4:].split(",")); sys.argv.remove(arg)
    if "--prof" in sys.argv:
        PROF = True; sys.argv.remove("--prof")
    p = sys.argv[1] if len(sys.argv) > 1 else "fused.s"
    n = build(p)
    print("written", p, "hazards:", n)
```

```python
import sys, math, struct
from asmlib import *

NAME = "gated_mix__grouped_kv_mqa__grouped_kv_mqa__prompt"
KNAME = NAME + "_kernel"
WS_KV = 0
WS_G = 256 << 10
WS_F = 512 << 10
WS_KF = WS_F + 8192
WS_O = 1 << 20
WS_SIZE = 16 << 20
WS_PROF = 13 << 20
CQ = 0.25 * math.log2(math.e)
def f2u(f): return struct.unpack("<I", struct.pack("<f", f))[0]
MF = "v_mfma_f32_32x32x16_bf16"
SM = "v_smfmac_f32_32x32x32_bf16"
MF16 = "v_mfma_f32_16x16x32_bf16"
PROF = False
EXPT = set()
def opt(name, default):
    for x in EXPT:
        if x.startswith(name + "="): return int(x[len(name) + 1:])
    return default

L_PART = 16 << 10
L_GW = L_PART
L_WKV = 32 << 10
L_X = 48 << 10
L_KV = 32 << 10
L_SLOT = [0, 112 << 10, 128 << 10, 144 << 10, L_WKV, L_PART, 0, 112 << 10]
L_WOST = 0
L_XCH = 0
L_CNT = L_PART + 4096 + 3072

sX, sWQ, sWKV, sWS, sDBG, sWO, sOUT, sGW = 32, 36, 40, 44, 48, 52, 56, 60
sW, sB, sHG, sTB, sGI, sTT, sC, sTTKV = 64, 65, 66, 67, 68, 69, 70, 71
sVM = 72
sPASS, sROLE, sTYPE, sNONCE = 74, 75, 76, 77
sT0, sT1, sT2, sT3, sT4, sT5 = 78, 79, 80, 81, 82, 83
sM0, sOFF = 84, 85
sTBOFF = 86
sSIG = 87
sPOLLER, sFOK = 92, 93
sPA, sPB = 94, 95
sLM = 88

def srd(a, d, base, nbytes):
    a(f"s_mov_b32 s{d}, s{base}")
    a(f"s_and_b32 s{d+1}, s{base+1}, 0xffff")
    a(f"s_mov_b32 s{d+2}, {nbytes}")
    a(f"s_mov_b32 s{d+3}, 0x20000")

def kdesc(name, vgpr, sgpr=100, accum=None):
    if accum is None: accum = (vgpr + 3) // 4 * 4
    return f""".amdhsa_kernel {name}
  .amdhsa_next_free_vgpr {vgpr}
  .amdhsa_next_free_sgpr {sgpr}
  .amdhsa_accum_offset {accum}
  .amdhsa_group_segment_fixed_size 0
  .amdhsa_kernarg_size 112
  .amdhsa_user_sgpr_count 2
  .amdhsa_user_sgpr_kernarg_segment_ptr 1
  .amdhsa_system_sgpr_workgroup_id_x 1
  .amdhsa_float_denorm_mode_32 3
.end_amdhsa_kernel
"""
def header(a, name):
    a.raw(f".globl {name}"); a.raw(".p2align 8"); a.raw(f".type {name},@function"); a.label(name)

VST = 0
def stamp(a, idx):
    if PROF:
        a("s_memtime s[90:91]")
        a("s_waitcnt lgkmcnt(0)")
        a(f"v_writelane_b32 v{VST}, s90, {idx}")
def stamp_rt(a, idx):
    if PROF:
        a("s_memrealtime s[90:91]")
        a("s_waitcnt lgkmcnt(0)")
        a(f"v_writelane_b32 v{VST}, s90, {idx}")
def stamp_flush(a, vL, vtmp0):
    if not PROF: return
    a(f"s_lshl_b32 s{sT0}, s2, 3")
    a(f"s_add_u32 s{sT0}, s{sT0}, s{sW}")
    a(f"s_lshl_b32 s{sT0}, s{sT0}, 7")
    a(f"s_add_u32 s{sT0}, s{sT0}, {WS_PROF}")
    a(f"v_lshlrev_b32 v{vtmp0}, 2, v{vL}")
    a(f"v_cmp_gt_u32 vcc, 32, v{vL}")
    a(f"s_and_saveexec_b64 s[{sT4}:{sT5}], vcc")
    a(f"buffer_store_dword v{VST}, v{vtmp0}, s[{sWS}:{sWS+3}], s{sT0} offen")
    a(f"s_mov_b64 exec, s[{sT4}:{sT5}]")
    a("s_waitcnt vmcnt(0)")

POLL_LIMIT = 0x40000

def gen_fused():
    a = Asm()
    header(a, KNAME)
    vL, vK, vV = 1, 2, 3
    QA, QB = 4, 8
    CA, CB = 12, 28
    SA, SB = 44, 60
    OA, OB = 76, 92
    KB = 108; V0 = 116; V1 = 124
    vK2, vV2, vWO, vWOr = 132, 133, 134, 135
    IDX = 0; NFR = 29; vG = 252
    WOA = 136
    if PROF:
        IDX = 255
    vT0, vT1, vT2, vT3 = 12, 13, 14, 15
    vH = 16; vN15 = 17; vXb = 18; vXt = 19
    vXa = 20
    vAa = 28
    vWq = 34; vE = 35; vGp = 36; vPw = 37
    ACC = 44
    EAC = 60
    AF = 76
    XF = 92
    WF, XFF = 136, 168
    vP0, vP1, vP2, vF = 240, 241, 242, 244
    RD = 200

    a("s_cmp_ge_u32 s2, 256")
    a("s_cbranch_scc1 L_end")
    a("s_load_dwordx8 s[4:11], s[0:1], 0")
    a("s_load_dwordx2 s[12:13], s[0:1], 32")
    a("s_load_dwordx8 s[16:23], s[0:1], 48")
    a("s_load_dwordx8 s[24:31], s[0:1], 80")
    a(f"v_lshrrev_b32 v{vT0}, 6, v0")
    a(f"v_and_b32 v{vL}, 63, v0")
    a(f"v_readfirstlane_b32 s{sW}, v{vT0}")
    if PROF:
        stamp(a, 0); stamp_rt(a, 30)
    a(f"s_lshr_b32 s{sT0}, s2, 3")
    a(f"s_and_b32 s{sGI}, s{sT0}, 7")
    a(f"s_lshr_b32 s{sT0}, s{sT0}, 3")
    a(f"s_and_b32 s{sT1}, s2, 7")
    a(f"s_lshl_b32 s{sT1}, s{sT1}, 2")
    a(f"s_add_u32 s{sTB}, s{sT1}, s{sT0}")
    a(f"s_lshr_b32 s{sB}, s{sGI}, 2")
    a(f"s_and_b32 s{sHG}, s{sGI}, 3")
    a(f"s_lshr_b32 s{sTYPE}, s{sHG}, 1")
    a(f"s_and_b32 s{sTTKV}, s{sHG}, 1")
    a(f"s_lshr_b32 s{sTT}, s{sW}, 2")
    a(f"s_and_b32 s{sC}, s{sW}, 3")
    a(f"s_cmp_eq_u32 s{sTT}, s{sTTKV}")
    a(f"s_cselect_b32 s{sROLE}, 1, 0")
    a(f"s_lshl_b32 s{sTBOFF}, s{sTB}, 16")
    a(f"s_lshl_b32 s{sT0}, s{sTTKV}, 2")
    a(f"s_add_u32 s{sT0}, s{sT0}, 3")
    a(f"s_cmp_eq_u32 s{sW}, s{sT0}")
    a(f"s_cselect_b32 s{sPOLLER}, 1, 0")
    a(f"s_mov_b32 s{sFOK}, 0")
    a(f"s_mov_b32 s{sSIG}, 0")
    a(f"s_mov_b32 s{sVM}, 0x0000ffff")
    a(f"s_mov_b32 s{sVM+1}, 0x0000ffff")
    a(f"s_mov_b32 s{sNONCE}, 0")
    a(f"v_lshlrev_b32 v{vK}, 4, v{vL}")
    a(f"v_lshrrev_b32 v{vH}, 5, v{vL}")
    a(f"v_mov_b32 v{vP0}, 0")
    a(f"v_mov_b32 v{vP2}, 0")
    a(f"s_mov_b32 s{sPA}, 0")
    a(f"s_mov_b32 s{sPB}, 0")
    a(f"v_and_b32 v{vT0}, 31, v{vL}")
    a(f"s_lshl_b32 s{sT0}, s{sTT}, 5")
    a(f"v_add_u32 v{vXb}, s{sT0}, v{vT0}")
    a(f"v_lshlrev_b32 v{vXb}, 10, v{vXb}")
    a(f"v_add_u32 v{vXb}, {L_X}, v{vXb}")
    a(f"v_and_b32 v{vN15}, 15, v{vL}")
    a(f"v_xor_b32 v{vXt}, v{vH}, v{vN15}")
    a(f"v_lshlrev_b32 v{vXt}, 4, v{vXt}")
    a("s_waitcnt lgkmcnt(0)")
    a(f"s_cmp_eq_u32 s{sB}, 0")
    a("s_cselect_b32 s6, s6, s16")
    a("s_cselect_b32 s7, s7, s17")
    a("s_cselect_b32 s8, s8, s18")
    a("s_cselect_b32 s9, s9, s19")
    a("s_cselect_b32 s10, s10, s20")
    a("s_cselect_b32 s11, s11, s21")
    a(f"s_cmp_eq_u32 s{sTYPE}, 0")
    a("s_cselect_b32 s8, s8, s10")
    a("s_cselect_b32 s9, s9, s11")
    srd(a, sX, 4, 2048 * 1024)
    srd(a, sWKV, 8, 16384)
    srd(a, sDBG, 28, 256)
    a(f"s_xor_b32 s{sT0}, s{sW}, 3")
    a(f"s_or_b32 s{sT0}, s2, s{sT0}")
    a(f"s_cmp_eq_u32 s{sT0}, 0")
    a("s_cbranch_scc0 L_nononce")
    a("s_memrealtime s[90:91]")
    a("s_waitcnt lgkmcnt(0)")
    a("s_or_b32 s90, s90, 1")
    a(f"v_mov_b32 v{vT1}, s90")
    a(f"v_mov_b32 v{vT3}, 128")
    a(f"buffer_store_dword v{vT1}, v{vT3}, s[{sDBG}:{sDBG+3}], 0 offen sc1")
    a.label("L_nononce")
    def xrow_dma(rowexpr, vt):
        rowexpr()
        a(f"s_and_b32 s{sT1}, s{sT0}, 15")
        a(f"v_xor_b32 v{vt}, s{sT1}, v{vL}")
        a(f"v_lshlrev_b32 v{vt}, 4, v{vt}")
        a(f"s_lshl_b32 s{sT1}, s{sT0}, 10")
        a(f"s_add_u32 m0, s{sT1}, {L_X}")
        a(f"s_add_u32 s{sT1}, s{sT1}, s{sTBOFF}")
        a(f"buffer_load_dwordx4 v{vt}, s[{sX}:{sX+3}], s{sT1} offen lds")
    a(f"s_lshl_b32 s{sT2}, s{sTTKV}, 5")
    a(f"s_add_u32 s{sT2}, s{sT2}, s{sW}")
    for i in range(4):
        xrow_dma(lambda: a(f"s_add_u32 s{sT0}, s{sT2}, {8*i}"), vT1)
    a(f"s_lshl_b32 s{sT1}, s{sW}, 11")
    a(f"s_add_u32 m0, s{sT1}, {L_WKV}")
    a(f"s_add_u32 s{sT3}, s{sT1}, 1024")
    a(f"buffer_load_dwordx4 v{vK}, s[{sWKV}:{sWKV+3}], s{sT1} offen lds")
    a(f"s_add_u32 m0, s{sT3}, {L_WKV}")
    srd(a, sGW, 24, 1024)
    a(f"buffer_load_dwordx4 v{vK}, s[{sWKV}:{sWKV+3}], s{sT3} offen lds")
    stamp(a, 1)
    srd(a, sWS, 30, WS_SIZE)
    def qaddr_setup():
        for sp in range(8):
            a(f"s_mov_b32 s{sT0}, {32*sp}")
            a(f"v_xad_u32 v{vXa+sp}, v{vXt}, s{sT0}, v{vXb}")
        a(f"v_lshrrev_b32 v{vT0}, 4, v{vL}")
        a(f"v_lshrrev_b32 v{vT3}, 2, v{vN15}")
        a(f"v_lshl_add_u32 v{vAa}, v{vH}, 3, v{vT3}")
        a(f"v_lshlrev_b32 v{vAa}, 8, v{vAa}")
        a(f"v_and_b32 v{vAa+1}, 1, v{vT0}")
        a(f"v_lshlrev_b32 v{vAa+1}, 1, v{vAa+1}")
        a(f"v_bfe_u32 v{vAa+2}, v{vN15}, 1, 1")
        a(f"v_add_u32 v{vAa+1}, v{vAa+1}, v{vAa+2}")
        a(f"s_lshl_b32 s{sT1}, s{sC}, 2")
        a(f"v_add_u32 v{vAa+1}, s{sT1}, v{vAa+1}")
        a(f"v_lshlrev_b32 v{vT3}, 2, v{vT3}")
        a(f"v_xor_b32 v{vAa+1}, v{vAa+1}, v{vT3}")
        a(f"v_lshl_add_u32 v{vAa}, v{vAa+1}, 4, v{vAa}")
        a(f"v_and_b32 v{vAa+2}, 1, v{vN15}")
        a(f"v_lshl_add_u32 v{vAa}, v{vAa+2}, 3, v{vAa}")
        for k in range(5, 0, -1):
            a(f"v_add_u32 v{vAa+k}, {L_SLOT[k]}, v{vAa}")
    def late_srds():
        a(f"s_cmp_eq_u32 s{sTT}, 0")
        a("s_cselect_b32 s12, s12, s22")
        a("s_cselect_b32 s13, s13, s23")
        srd(a, sOUT, 26, 2048 * 1024)
        srd(a, sWO, 12, 512 * 1024)
    a(f"s_cmp_eq_u32 s{sROLE}, 1")
    a("s_cbranch_scc0 L_wrole")
    if "kvprio" in EXPT: a("s_setprio 3")
    a(f"s_mov_b32 m0, {L_GW}")
    a(f"v_lshrrev_b32 v{vT0}, 4, v{vL}")
    a(f"buffer_load_dwordx4 v{vK}, s[{sGW}:{sGW+3}], 0 offen lds")
    vXk = vXa
    WF16, XF16 = 128, 192
    KAC = EAC
    a(f"s_and_b32 s{sT2}, s{sC}, 1")
    a(f"s_lshl_b32 s{sT0}, s{sTTKV}, 5")
    a(f"s_lshl_b32 s{sT1}, s{sT2}, 4")
    a(f"s_add_u32 s{sT0}, s{sT0}, s{sT1}")
    a(f"v_add_u32 v{vT2}, s{sT0}, v{vN15}")
    a(f"v_lshlrev_b32 v{vT2}, 10, v{vT2}")
    a(f"v_add_u32 v{vT2}, {L_X}, v{vT2}")
    a(f"v_xor_b32 v{vT3}, v{vT0}, v{vN15}")
    a(f"v_lshlrev_b32 v{vT3}, 4, v{vT3}")
    for sp in range(4):
        a(f"s_mov_b32 s{sT0}, {64*sp}")
        a(f"v_xad_u32 v{vXk+sp}, v{vT3}, s{sT0}, v{vT2}")
    a(f"v_lshrrev_b32 v{vE}, 2, v{vN15}")
    a(f"v_lshl_add_u32 v{vE}, v{vT0}, 3, v{vE}")
    a(f"v_lshlrev_b32 v{vE}, 5, v{vE}")
    a(f"v_and_b32 v{vT3}, 3, v{vN15}")
    a(f"v_lshl_add_u32 v{vE}, v{vT3}, 3, v{vE}")
    a(f"v_add_u32 v{vE}, {L_WKV}, v{vE}")
    a(f"v_lshlrev_b32 v{vGp}, 4, v{vT0}")
    a(f"v_add_u32 v{vGp}, {L_GW}, v{vGp}")
    a(f"v_and_b32 v{vT2}, 1, v{vT0}")
    a(f"v_lshrrev_b32 v{vT3}, 1, v{vT0}")
    a(f"s_cmp_eq_u32 s{sTYPE}, 0")
    a("s_cbranch_scc0 L_sa_v")
    a(f"v_and_b32 v{vPw}, 3, v{vN15}")
    a(f"v_and_b32 v{vT1}, 4, v{vN15}")
    a(f"v_lshl_add_u32 v{vPw}, v{vT1}, 1, v{vPw}")
    a(f"v_and_b32 v{vT1}, 8, v{vN15}")
    a(f"v_lshrrev_b32 v{vT1}, 1, v{vT1}")
    a(f"v_add_u32 v{vPw}, v{vPw}, v{vT1}")
    a(f"v_lshl_add_u32 v{vPw}, v{vT2}, 5, v{vPw}")
    a(f"s_lshl_b32 s{sT1}, s{sT2}, 4")
    a(f"v_add_u32 v{vPw}, s{sT1}, v{vPw}")
    a(f"v_lshlrev_b32 v{vPw}, 4, v{vPw}")
    a("s_branch L_sa_j")
    a.label("L_sa_v")
    a(f"v_lshl_add_u32 v{vPw}, v{vT2}, 4, v{vN15}")
    a(f"v_lshlrev_b32 v{vPw}, 4, v{vPw}")
    a(f"s_lshl_b32 s{sT1}, s{sT2}, 9")
    a(f"s_add_u32 s{sT1}, s{sT1}, 1024")
    a(f"v_add_u32 v{vPw}, s{sT1}, v{vPw}")
    a.label("L_sa_j")
    a(f"v_lshl_add_u32 v{vPw}, v{vT3}, 3, v{vPw}")
    a(f"s_lshl_b32 s{sT0}, s{sTB}, 1")
    a(f"s_add_u32 s{sT0}, s{sT0}, s{sTTKV}")
    a(f"s_lshl_b32 s{sOFF}, s{sT0}, 11")
    a(f"s_lshl_b32 s{sT3}, s{sB}, 17")
    a(f"s_add_u32 s{sOFF}, s{sOFF}, s{sT3}")
    if WS_KV: a(f"s_add_u32 s{sOFF}, s{sOFF}, {WS_KV}")
    a(f"s_lshl_b32 s{sM0}, s{sT0}, 7")
    a(f"s_add_u32 s{sM0}, s{sM0}, {WS_G}")
    vNon = 38
    a(f"v_mov_b32 v{vT3}, 128")
    a(f"buffer_load_dword v{vNon}, v{vT3}, s[{sDBG}:{sDBG+3}], 0 offen sc1")
    stamp(a, 2)
    a("s_waitcnt vmcnt(0)")
    a("s_barrier")
    stamp(a, 3)
    a(f"s_cmp_ge_u32 s{sC}, 2")
    a("s_cbranch_scc1 L_kv_gate")
    def kvreads(sx):
        a(f"ds_read_b64_tr_b16 {vr(WF16+4*sx,2)}, v{vE} offset:{sx*1024}")
        a(f"ds_read_b64_tr_b16 {vr(WF16+4*sx+2,2)}, v{vE} offset:{sx*1024+128}")
        a(f"ds_read_b128 {vr(XF16+4*sx,4)}, v{vXk+(sx%4)} offset:{(sx//4)*256}")
    D = 5
    for kind in ("k", "v"):
        if kind == "k":
            a(f"s_cmp_eq_u32 s{sTYPE}, 0")
            a("s_cbranch_scc0 L_kv_v")
        else:
            a.label("L_kv_v")
        for sx in range(D): kvreads(sx)
        for sx in range(16):
            rem = min(D - 1, 15 - sx)
            a(f"s_waitcnt lgkmcnt({3*rem})")
            c = vr(KAC, 4) if sx else "0"
            if kind == "k":
                a(f"{MF16} {vr(KAC,4)}, {vr(WF16+4*sx,4)}, {vr(XF16+4*sx,4)}, {c}")
            else:
                a(f"{MF16} {vr(KAC,4)}, {vr(XF16+4*sx,4)}, {vr(WF16+4*sx,4)}, {c}")
            if sx + D < 16: kvreads(sx + D)
        if kind == "k": a("s_branch L_kv_st")
    a.label("L_kv_st")
    a("s_nop 7")
    a(f"v_cvt_pk_bf16_f32 v{KAC+4}, v{KAC}, v{KAC+1}")
    a(f"v_cvt_pk_bf16_f32 v{KAC+5}, v{KAC+2}, v{KAC+3}")
    a(f"buffer_store_dwordx2 {vr(KAC+4,2)}, v{vPw}, s[{sWS}:{sWS+3}], s{sOFF} offen sc1")
    stamp(a, 12)
    a("s_branch L_kv_sig")
    a.label("L_kv_gate")
    a(f"s_or_b32 s{sT0}, s{sTYPE}, s{sB}")
    a(f"s_xor_b32 s{sT1}, s{sC}, 2")
    a(f"s_or_b32 s{sT0}, s{sT0}, s{sT1}")
    a(f"s_cmp_eq_u32 s{sT0}, 0")
    a("s_cbranch_scc0 L_kv_idle")
    for sp in range(4):
        a(f"v_add_u32 v{vXk+4+sp}, 16384, v{vXk+sp}")
    def greads(sx):
        a(f"ds_read_b128 {vr(WF16+4*(sx%8),4)}, v{vGp} offset:{sx*64}")
        a(f"ds_read_b128 {vr(XF16+8*(sx%8),4)}, v{vXk+(sx%4)} offset:{(sx//4)*256}")
        a(f"ds_read_b128 {vr(XF16+8*(sx%8)+4,4)}, v{vXk+4+(sx%4)} offset:{(sx//4)*256}")
    for sx in range(D): greads(sx)
    for sx in range(16):
        rem = min(D - 1, 15 - sx)
        a(f"s_waitcnt lgkmcnt({3*rem})")
        a(f"{MF16} {vr(KAC,4)}, {vr(WF16+4*(sx%8),4)}, {vr(XF16+8*(sx%8),4)}, {vr(KAC,4) if sx else '0'}")
        a(f"{MF16} {vr(KAC+4,4)}, {vr(WF16+4*(sx%8),4)}, {vr(XF16+8*(sx%8)+4,4)}, {vr(KAC+4,4) if sx else '0'}")
        if sx + D < 16: greads(sx + D)
    a(f"v_and_b32 v{vT1}, 16, v{vL}")
    a(f"v_cmp_eq_u32 vcc, 0, v{vT1}")
    a("s_nop 6")
    a(f"v_cndmask_b32 v{KAC+8}, v{KAC+4}, v{KAC}, vcc")
    a(f"v_cvt_pk_bf16_f32 v{KAC+8}, v{KAC+8}, v{KAC+8}")
    a(f"v_lshlrev_b32 v{KAC+8}, 16, v{KAC+8}")
    a(f"s_mov_b32 s{sT2}, {hex(f2u(-math.log2(math.e)))}")
    a(f"v_mul_f32 v{KAC+8}, s{sT2}, v{KAC+8}")
    a(f"v_exp_f32 v{KAC+8}, v{KAC+8}")
    a("s_nop 0")
    a(f"v_add_f32 v{KAC+8}, 1.0, v{KAC+8}")
    a(f"v_rcp_f32 v{KAC+8}, v{KAC+8}")
    a("s_nop 0")
    a(f"v_cvt_pk_bf16_f32 v{KAC+8}, v{KAC+8}, v{KAC+8}")
    a(f"v_lshlrev_b32 v{KAC+8}, 16, v{KAC+8}")
    a(f"v_lshlrev_b32 v{KAC+9}, 2, v{vL}")
    a(f"v_cmp_gt_u32 vcc, 32, v{vL}")
    a(f"s_and_saveexec_b64 s[{sT4}:{sT5}], vcc")
    a(f"buffer_store_dword v{KAC+8}, v{KAC+9}, s[{sWS}:{sWS+3}], s{sM0} offen sc1")
    a(f"s_mov_b64 exec, s[{sT4}:{sT5}]")
    a.label("L_kv_sig")
    qaddr_setup()
    late_srds()
    a(f"v_lshl_add_u32 v{vV}, v{vH}, 4, v{vN15}")
    a(f"v_lshlrev_b32 v{vV}, 4, v{vV}")
    a(f"s_mov_b32 s{sSIG}, 1")
    a("s_branch L_b1")
    a.label("L_kv_idle")
    qaddr_setup()
    late_srds()
    a(f"v_lshl_add_u32 v{vV}, v{vH}, 4, v{vN15}")
    a(f"v_lshlrev_b32 v{vV}, 4, v{vV}")
    a(f"v_lshrrev_b32 v{vP0}, 1, v{vL}")
    a(f"v_lshlrev_b32 v{vP0}, 7, v{vP0}")
    a(f"v_and_b32 v{vP2}, 1, v{vL}")
    a(f"v_lshl_add_u32 v{vP0}, v{vP2}, 4, v{vP0}")
    a(f"v_lshlrev_b32 v{vP2}, 2, v{vP2}")
    a(f"s_lshl_b32 s{sPA}, s{sB}, 12")
    a(f"s_add_u32 s{sPA}, s{sPA}, {WS_KF}")
    a(f"s_lshl_b32 s{sPB}, s{sTB}, 7")
    a(f"s_add_u32 s{sPB}, s{sPB}, {WS_KF + 8192}")
    a(f"v_readfirstlane_b32 s{sNONCE}, v{vNon}")
    a("s_branch L_b1")
    a.label("L_wrole")
    a(f"v_lshrrev_b32 v{vT0}, 4, v{vL}")
    a(f"v_lshlrev_b32 v{vWq}, 2, v{vT0}")
    a(f"v_xor_b32 v{vWq}, v{vWq}, v{vN15}")
    a(f"v_lshlrev_b32 v{vWq}, 4, v{vWq}")
    a(f"v_lshl_add_u32 v{vWq}, v{vT0}, 10, v{vWq}")
    a(f"s_lshl_b32 s{sT1}, s{sHG}, 8")
    a(f"v_add_u32 v{vWq}, s{sT1}, v{vWq}")
    srd(a, sWQ, 6, 512 * 1024)
    def wq_chunk(c):
        slot = L_SLOT[c]
        for i in range(4):
            a(f"s_lshl_b32 s{sT1}, s{sC}, 12")
            a(f"s_add_u32 m0, s{sT1}, {slot + i*1024}")
            a(f"s_lshl_b32 s{sT1}, s{sC}, 14")
            a(f"s_add_u32 s{sT1}, s{sT1}, {(64*c + 4*i)*1024}")
            a(f"buffer_load_dwordx4 v{vWq}, s[{sWQ}:{sWQ+3}], s{sT1} offen lds")
    def other_rows():
        a(f"s_xor_b32 s{sT2}, s{sTTKV}, 1")
        a(f"s_lshl_b32 s{sT2}, s{sT2}, 5")
        a(f"s_add_u32 s{sT2}, s{sT2}, s{sC}")
        for i in range(8):
            xrow_dma(lambda: a(f"s_add_u32 s{sT0}, s{sT2}, {4*i}"), vT1)
    EARLY = opt("early", 0)
    nbefore = 0
    if EARLY >= 1: other_rows(); nbefore += 8
    if EARLY >= 2: wq_chunk(0); nbefore += 4
    qaddr_setup()
    late_srds()
    a(f"v_lshl_add_u32 v{vV}, v{vH}, 4, v{vN15}")
    a(f"v_lshlrev_b32 v{vV}, 4, v{vV}")
    stamp(a, 2)
    a(f"s_waitcnt vmcnt({nbefore})")
    a("s_barrier")
    stamp(a, 3)
    if "wdelay" in EXPT:
        a(f"v_mov_b32 v{vT0}, {L_CNT}")
        a.label("L_wspin")
        a(f"ds_read_b32 v{vT1}, v{vT0}")
        a("s_waitcnt lgkmcnt(0)")
        a(f"v_readfirstlane_b32 s{sT0}, v{vT1}")
        a(f"s_cmp_ge_u32 s{sT0}, {opt('wd', 4)}")
        a("s_cbranch_scc0 L_wspin")
    if EARLY < 1: other_rows()
    if EARLY < 2: wq_chunk(0)
    for c in range(1, 4): wq_chunk(c)
    stamp(a, 4)
    a("s_waitcnt vmcnt(12)")
    a.label("L_b1")
    if "kvprio" in EXPT: a("s_setprio 0")
    a("s_barrier")
    stamp(a, 5)
    def signal_kv():
        a(f"s_cmp_eq_u32 s{sSIG}, 1")
        a("s_cbranch_scc0 L_nosig")
        a(f"v_readfirstlane_b32 s{sNONCE}, v{vNon}")
        a(f"s_mov_b32 s{sT1}, 0")
        a.label("L_nwait")
        a(f"s_cmp_lg_u32 s{sNONCE}, 0")
        a("s_cbranch_scc1 L_nok")
        a(f"v_mov_b32 v{vT3}, 128")
        a(f"buffer_load_dword v{vNon}, v{vT3}, s[{sDBG}:{sDBG+3}], 0 offen sc1")
        a("s_waitcnt vmcnt(0)")
        a(f"v_readfirstlane_b32 s{sNONCE}, v{vNon}")
        a(f"s_add_u32 s{sT1}, s{sT1}, 1")
        a(f"s_cmp_lt_u32 s{sT1}, {POLL_LIMIT}")
        a("s_cbranch_scc1 L_nwait")
        a.label("L_nok")
        a(f"s_cmp_eq_u32 s{sC}, 2")
        a("s_cbranch_scc1 L_fa_gate")
        a(f"s_lshl_b32 s{sT0}, s{sB}, 5")
        a(f"s_add_u32 s{sT0}, s{sT0}, s{sTB}")
        a(f"s_lshl_b32 s{sT0}, s{sT0}, 7")
        a(f"s_lshl_b32 s{sT1}, s{sTTKV}, 2")
        a(f"s_lshl_b32 s{sT2}, s{sTYPE}, 1")
        a(f"s_add_u32 s{sT1}, s{sT1}, s{sT2}")
        a(f"s_add_u32 s{sT1}, s{sT1}, s{sC}")
        a(f"s_lshl_b32 s{sT1}, s{sT1}, 2")
        a(f"s_add_u32 s{sT0}, s{sT0}, s{sT1}")
        a(f"s_add_u32 s{sT0}, s{sT0}, {WS_KF}")
        a("s_branch L_fa_j")
        a.label("L_fa_gate")
        a(f"s_lshl_b32 s{sT0}, s{sTB}, 7")
        a(f"s_lshl_b32 s{sT1}, s{sTTKV}, 2")
        a(f"s_add_u32 s{sT0}, s{sT0}, s{sT1}")
        a(f"s_add_u32 s{sT0}, s{sT0}, {WS_KF + 8192}")
        a.label("L_fa_j")
        a(f"v_mov_b32 v{RD}, 0")
        a(f"v_mov_b32 v{RD+1}, s{sNONCE}")
        a("s_waitcnt vmcnt(0)")
        a(f"v_cmp_eq_u32 vcc, 0, v{vL}")
        a(f"s_and_saveexec_b64 s[{sT4}:{sT5}], vcc")
        a(f"buffer_store_dword v{RD+1}, v{RD}, s[{sWS}:{sWS+3}], s{sT0} offen sc1")
        a(f"s_mov_b64 exec, s[{sT4}:{sT5}]")
        stamp(a, 13)
        a.label("L_nosig")
    def qreads(s):
        c, sp4 = s // 4, s % 4
        buf = s % 4
        va = vAa + [0, 1, 2, 3, 4, 5, 0, 1][c]
        a(f"ds_read_b64_tr_b16 {vr(AF+4*buf,2)}, v{va} offset:{sp4*4096}")
        a(f"ds_read_b64_tr_b16 {vr(AF+4*buf+2,2)}, v{va} offset:{sp4*4096+1024}")
        a(f"ds_read_b128 {vr(XF+4*buf,4)}, v{vXa + (s % 8)} offset:{(s//8)*256}")
    def qmf(s):
        buf = s % 4
        a(f"{MF} {vr(ACC,16)}, {vr(AF+4*buf,4)}, {vr(XF+4*buf,4)}, {vr(ACC,16) if s else '0'}")
    for s in range(4): qreads(s)
    a(f"s_cmp_eq_u32 s{sROLE}, 1")
    a("s_cbranch_scc1 L_c5_skip")
    wq_chunk(4)
    wq_chunk(5)
    a.label("L_c5_skip")
    WAITS = [16, 16, 16, 12, 8, 4, 0]
    def flag_loads():
        a(f"buffer_load_dwordx4 {vr(vF,4)}, v{vP0}, s[{sWS}:{sWS+3}], s{sPA} offen sc1")
        a(f"buffer_load_dword v{vF+4}, v{vP2}, s[{sWS}:{sWS+3}], s{sPB} offen sc1")
    def flag_cmp():
        a(f"v_cmp_eq_u32 vcc, s{sNONCE}, v{vF}")
        for k in range(1, 5):
            a(f"v_cmp_eq_u32 s[{sT2}:{sT3}], s{sNONCE}, v{vF+k}")
            a(f"s_and_b64 vcc, vcc, s[{sT2}:{sT3}]")
    def first_kv():
        a(f"s_lshl_b32 s{sOFF}, s{sB}, 17")
        if WS_KV: a(f"s_add_u32 s{sOFF}, s{sOFF}, {WS_KV}")
        a(f"s_mov_b32 s{sM0}, {L_KV}")
        for i in range(16):
            a(f"s_mov_b32 m0, s{sM0}")
            a(f"s_add_u32 s{sM0}, s{sM0}, 1024")
            a(f"buffer_load_dwordx4 v{vK}, s[{sWS}:{sWS+3}], s{sOFF} offen sc1 lds")
            a(f"s_add_u32 s{sOFF}, s{sOFF}, 1024")
        a(f"s_mov_b32 s{sFOK}, 2")
    def poller_step(c):
        lab = f"L_ps{c}"
        a(f"s_cmp_eq_u32 s{sPOLLER}, 1")
        a(f"s_cbranch_scc0 {lab}")
        a(f"s_cmp_lg_u32 s{sFOK}, 0")
        a(f"s_cbranch_scc1 {lab}")
        if c > 3:
            a("s_waitcnt vmcnt(0)")
            a(f"s_cmp_eq_u32 s{sNONCE}, 0")
            a(f"s_cbranch_scc1 {lab}_re")
            flag_cmp()
            a("s_cmp_eq_u64 vcc, exec")
            a(f"s_cbranch_scc0 {lab}_re")
            first_kv()
            a(f"s_branch {lab}")
            a.label(f"{lab}_re")
            a(f"s_cmp_lg_u32 s{sNONCE}, 0")
            a(f"s_cbranch_scc1 {lab}_ld")
            a(f"v_readfirstlane_b32 s{sNONCE}, v{vNon}")
            a.label(f"{lab}_ld")
        a(f"v_mov_b32 v{vP1}, 128")
        a(f"buffer_load_dword v{vNon}, v{vP1}, s[{sDBG}:{sDBG+3}], 0 offen sc1")
        flag_loads()
        a.label(lab)
    for c in range(8):
        for sp4 in range(3):
            a(f"s_waitcnt lgkmcnt({3*(3-sp4)})")
            qmf(4 * c + sp4)
        if c == 0: signal_kv()
        a("s_waitcnt lgkmcnt(0)")
        if c < 7:
            lab = f"L_q{c}"
            a(f"s_cmp_eq_u32 s{sROLE}, 1")
            a(f"s_cbranch_scc1 {lab}_kv")
            a(f"s_waitcnt vmcnt({WAITS[c]})")
            a("s_barrier")
            if c in (0, 1): wq_chunk(c + 6)
            a(f"s_branch {lab}_j")
            a.label(f"{lab}_kv")
            a("s_barrier")
            a.label(f"{lab}_j")
            for sp4 in range(3): qreads(4 * (c + 1) + sp4)
            qmf(4 * c + 3)
            qreads(4 * (c + 1) + 3)
            if c >= 3: poller_step(c)
            if "st3" in EXPT and c >= 1: stamp(a, 17 + c)
        else:
            qmf(4 * c + 3)
    stamp(a, 6)
    def poll(label, load, cmpcode):
        a(f"s_mov_b32 s{sT1}, 0")
        a.label(label)
        load()
        a("s_waitcnt vmcnt(0)")
        cmpcode()
        a("s_cmp_eq_u64 vcc, exec")
        a(f"s_cbranch_scc1 {label}_done")
        a(f"s_add_u32 s{sT1}, s{sT1}, 1")
        a(f"s_cmp_lt_u32 s{sT1}, {POLL_LIMIT}")
        a(f"s_cbranch_scc0 {label}_done")
        a("s_sleep 1")
        a(f"s_branch {label}")
        a.label(f"{label}_done")
    a(f"s_mov_b32 s{sT0}, {hex(f2u(CQ))}")
    a(f"v_add_u32 v{vV}, {L_KV+1024}, v{vV}")
    a(f"v_and_b32 v{vT0}, 27, v{vL}")
    a(f"v_cmp_eq_u32 vcc, 16, v{vT0}")
    a(f"v_mov_b32 v{vT1}, 0x3f803f80")
    a(f"v_add_u32 v{vV2}, 0x10000, v{vV}")
    for i in range(16):
        a(f"v_cndmask_b32 v{V0+i}, 0, v{vT1}, vcc")
    a(f"s_mov_b32 s{sT1}, s{sT0}")
    for i in range(0, 16, 2):
        a(f"v_pk_mul_f32 {vr(ACC+i,2)}, {vr(ACC+i,2)}, s[{sT0}:{sT1}]")
    for j in range(4):
        a(f"v_cvt_pk_bf16_f32 v{QA+j}, v{ACC+2*j}, v{ACC+2*j+1}")
        a(f"v_cvt_pk_bf16_f32 v{QB+j}, v{ACC+8+2*j}, v{ACC+8+2*j+1}")
    a(f"s_cmp_eq_u32 s{sPOLLER}, 1")
    a("s_cbranch_scc0 L_nopoll")
    a(f"s_cmp_eq_u32 s{sFOK}, 2")
    a("s_cbranch_scc1 L_nopoll")
    a("s_waitcnt vmcnt(0)")
    a(f"v_readfirstlane_b32 s{sNONCE}, v{vNon}")
    a(f"v_mov_b32 v{vP1}, 128")
    def ldn(): a(f"buffer_load_dword v{vNon}, v{vP1}, s[{sDBG}:{sDBG+3}], 0 offen sc1")
    def cmpn(): a(f"v_cmp_ne_u32 vcc, 0, v{vNon}")
    a(f"s_cmp_lg_u32 s{sNONCE}, 0")
    a("s_cbranch_scc1 L_havenonce")
    poll("L_polln", ldn, cmpn)
    a(f"v_readfirstlane_b32 s{sNONCE}, v{vNon}")
    a.label("L_havenonce")
    poll("L_poll", flag_loads, flag_cmp)
    first_kv()
    a.label("L_nopoll")
    for i in range(0, 16, 2):
        a(f"v_pk_mov_b32 {vr(OA+i,2)}, 0, 0")
        a(f"v_pk_mov_b32 {vr(OB+i,2)}, 0, 0")
    a(f"v_lshrrev_b32 v{vT0}, 2, v{vL}")
    a(f"v_and_b32 v{vT1}, 3, v{vL}")
    a(f"v_lshlrev_b32 v{vT1}, 4, v{vT1}")
    a(f"v_lshl_add_u32 v{vWO}, v{vT0}, 10, v{vT1}")
    a(f"s_lshr_b32 s{sT0}, s{sGI}, 1")
    a(f"s_lshl_b32 s{sT0}, s{sT0}, 8")
    a(f"s_lshl_b32 s{sT1}, s{sC}, 6")
    a(f"s_add_u32 s{sT0}, s{sT0}, s{sT1}")
    a(f"v_add_u32 v{vWO}, s{sT0}, v{vWO}")
    a(f"v_lshrrev_b32 v{vT1}, 2, v{vN15}")
    a(f"v_lshl_add_u32 v{vT1}, v{vH}, 2, v{vT1}")
    a(f"v_lshlrev_b32 v{vWOr}, 6, v{vT1}")
    a(f"v_bfe_u32 v{vT1}, v{vL}, 4, 1")
    a(f"v_lshl_add_u32 v{vWOr}, v{vT1}, 5, v{vWOr}")
    a(f"v_and_b32 v{vT0}, 3, v{vN15}")
    a(f"v_lshl_add_u32 v{vWOr}, v{vT0}, 3, v{vWOr}")
    a(f"s_lshl_b32 s{sT0}, s{sW}, 12")
    a(f"v_add_u32 v{vWOr}, s{sT0}, v{vWOr}")
    a(f"v_mov_b32 v{IDX}, 0xdddddddd")
    a(f"s_lshl_b32 s{sOFF}, s{sB}, 17")
    a(f"s_add_u32 s{sOFF}, s{sOFF}, {WS_KV + 2*8192}")
    a(f"s_lshl_b32 s{sM0}, s{sW}, 10")
    a(f"s_add_u32 s{sOFF}, s{sOFF}, s{sM0}")
    a(f"s_add_u32 s{sM0}, s{sM0}, {L_KV + 2*8192}")
    vKd = 253
    a(f"v_mov_b32 v{vKd}, v{vK}")
    a(f"v_add_u32 v{vK}, {L_KV}, v{vK}")
    a(f"v_add_u32 v{vK2}, 0x10000, v{vK}")
    a(f"s_mov_b32 s{sPASS}, 1")
    a(f"v_and_b32 v{vG}, 31, v{vL}")
    a(f"v_lshlrev_b32 v{vG}, 2, v{vG}")
    a(f"s_lshl_b32 s{sT2}, s{sTB}, 1")
    a(f"s_add_u32 s{sT2}, s{sT2}, s{sTT}")
    a(f"s_lshl_b32 s{sT2}, s{sT2}, 7")
    a(f"s_add_u32 s{sT2}, s{sT2}, {WS_G}")
    a("s_waitcnt vmcnt(0)")
    a("s_barrier")
    stamp(a, 7)
    def kv_dma():
        a(f"s_mov_b32 m0, s{sM0}")
        a(f"s_add_u32 s{sM0}, s{sM0}, 8192")
        a(f"buffer_load_dwordx4 v{vKd}, s[{sWS}:{sWS+3}], s{sOFF} offen sc1 lds")
        a(f"s_add_u32 s{sOFF}, s{sOFF}, 8192")
    a(f"buffer_load_dword v{vG}, v{vG}, s[{sWS}:{sWS+3}], s{sT2} offen sc1")
    def ldK(buf, t):
        va = vK if t < 32 else vK2
        a(f"ds_read_b128 {vr(KB+4*buf,4)}, v{va} offset:{(t % 32)*2048}")
    def ldV(buf, t):
        va = vV if t < 32 else vV2
        off = (t % 32) * 2048
        a(f"s_mov_b64 exec, s[{sVM}:{sVM+1}]")
        a(f"ds_read_b128 {vr(V0+4*buf,4)}, v{va} offset:{off}")
        a(f"ds_read_b128 {vr(V1+4*buf,4)}, v{va} offset:{off+512}")
        a("s_mov_b64 exec, -1")
    def neg_bcast(C, m):
        for i in range(0, 16, 2):
            a(f"v_pk_mul_f32 {vr(C+i,2)}, {vr(m,2)}, -1.0 op_sel_hi:[0,0]")
    def crosshalf_max(m, t):
        a(f"v_mov_b32 v{t}, v{m}")
        a("s_nop 1")
        a(f"v_permlane32_swap_b32 v{m}, v{t}")
        a("s_nop 1")
        a(f"v_max_f32 v{m}, v{m}, v{t}")
    def rowmax(S, m):
        a(f"v_max3_f32 v{m}, v{S}, v{S+1}, v{S+2}")
        for i in range(3, 15, 2):
            a(f"v_max3_f32 v{m}, v{m}, v{S+i}, v{S+i+1}")
        a(f"v_max_f32 v{m}, v{m}, v{S+15}")
    M0r, M1r, M2r, M3r = WOA, WOA + 1, WOA + 2, WOA + 3
    ldK(0, 0)
    ldK(1, 1)
    ldV(0, 0)
    a("s_waitcnt lgkmcnt(3)")
    a(f"{MF} {vr(SA,16)}, {vr(KB,4)}, {vr(QA,4)}, 0")
    a(f"{MF} {vr(SB,16)}, {vr(KB,4)}, {vr(QB,4)}, 0")
    for i in range(8, 16, 2):
        pass
    a("s_nop 10")
    rowmax(SA, M0r); rowmax(SB, M2r)
    crosshalf_max(M0r, M1r); crosshalf_max(M2r, M3r)
    neg_bcast(CA, M0r); neg_bcast(CB, M2r)
    a("s_branch L_go")
    a.label("L_restart")
    for i in range(0, 16, 2):
        a(f"v_pk_mov_b32 {vr(OA+i,2)}, 0, 0")
        a(f"v_pk_mov_b32 {vr(OB+i,2)}, 0, 0")
    ldK(0, 0)
    ldK(1, 1)
    ldV(0, 0)
    a.label("L_go")
    for i in range(8, 16, 2):
        a(f"v_pk_mov_b32 {vr(SB+i,2)}, 0, 0")
    a("s_waitcnt lgkmcnt(0)")
    a(f"{MF} {vr(SA,16)}, {vr(KB,4)}, {vr(QA,4)}, {vr(CA,16)}")
    if "noprio" not in EXPT:
        a(f"s_cmp_ge_u32 s{sW}, 4")
        a("s_cbranch_scc0 L_noprio0")
        a("s_setprio 1")
        a.label("L_noprio0")
    a("s_nop 7")
    a("s_nop 1")
    stamp(a, 9)
    def ex(S, i): a(f"v_exp_f32 v{S+i}, v{S+i}")
    T0W = 13
    def wo_dma(f):
        a(f"s_lshl_b32 s{sT0}, s{sW}, 12")
        a(f"s_add_u32 m0, s{sT0}, {L_WOST + (f % 4)*1024}")
        a(f"s_mov_b32 s{sT1}, {f*16384}")
        a(f"buffer_load_dwordx4 v{vWO}, s[{sWO}:{sWO+3}], s{sT1} offen lds")
    def wo_read(f, dst):
        a(f"ds_read_b64_tr_b16 {vr(dst,2)}, v{vWOr} offset:{L_WOST + (f % 4)*1024}")
        a(f"ds_read_b64_tr_b16 {vr(dst+2,2)}, v{vWOr} offset:{L_WOST + (f % 4)*1024 + 512}")
    PSW = opt("psw", 55)
    for t in range(64):
        p = t & 1
        def bar(name, n):
            a(f"s_cmp_eq_u32 s{sPASS}, 1")
            a(f"s_cbranch_scc0 {name}")
            a(f"s_waitcnt vmcnt({n})")
            a("s_barrier")
            a.label(name)
        if t == 6:  bar("L_nobar6", 10)
        if t == 12: bar("L_nobar12", 0)
        if t == PSW and "noprio" not in EXPT:
            a("s_setprio 0")
        ex(SA, 0); ex(SA, 1)
        a(f"{SM} {vr(OB,16)}, {vr(V1+4*(p^1),4)}, {vr(SB+8,8)}, v{IDX}")
        ex(SA, 2); ex(SA, 3); ex(SA, 4)
        a(f"{MF} {vr(SB,16)}, {vr(KB+4*p,4)}, {vr(QB,4)}, {vr(CB,16)}")
        nld = 0
        if t + 2 < 64: ldK(p, t + 2); nld += 1
        if t + 1 < 64: ldV(p ^ 1, t + 1); nld += 2
        for i in range(5, 10): ex(SA, i)
        a(f"s_waitcnt lgkmcnt({nld})")
        a(f"{SM} {vr(OA,16)}, {vr(V0+4*p,4)}, {vr(SA,8)}, v{IDX}")
        for i in range(10, 13): ex(SA, i)
        if t <= 6:
            a(f"s_cmp_eq_u32 s{sPASS}, 1")
            a(f"s_cbranch_scc0 L_nokv{t}")
            kv_dma(); kv_dma()
            a.label(f"L_nokv{t}")
        fd = t - T0W
        if 0 <= fd < NFR: wo_dma(fd)
        for i in range(13, 16): ex(SA, i)
        ex(SB, 0); ex(SB, 1)
        a(f"{SM} {vr(OA,16)}, {vr(V1+4*p,4)}, {vr(SA+8,8)}, v{IDX}")
        ex(SB, 2); ex(SB, 3); ex(SB, 4)
        if t + 1 < 64:
            a(f"{MF} {vr(SA,16)}, {vr(KB+4*(p^1),4)}, {vr(QA,4)}, {vr(CA,16)}")
        else:
            a("s_nop 0")
        for i in range(5, 8): ex(SB, i)
        fr = t - T0W - 3
        if 0 <= fr < NFR:
            outstanding_after = min(fd, NFR - 1) - fr
            a(f"s_waitcnt vmcnt({outstanding_after})")
            wo_read(fr, WOA + 4 * fr)
        for i in range(8, 10): ex(SB, i)
        a(f"{SM} {vr(OB,16)}, {vr(V0+4*p,4)}, {vr(SB,8)}, v{IDX}")
        for i in range(10, 16): ex(SB, i)
    a("s_nop 1")
    a(f"{SM} {vr(OB,16)}, {vr(V1+4,4)}, {vr(SB+8,8)}, v{IDX}")
    for f in range(NFR, 32): wo_dma(f)
    TT = SA
    a(f"v_sub_f32 v{TT+2}, 1.0, v{vG}")
    a(f"v_cvt_pk_bf16_f32 v{TT+2}, v{TT+2}, v{TT+2}")
    a(f"v_lshlrev_b32 v{TT+2}, 16, v{TT+2}")
    a(f"s_cmp_eq_u32 s{sB}, 0")
    a(f"s_cselect_b64 s[{sLM}:{sLM+1}], -1, 0")
    a(f"v_cndmask_b32 v{TT+2}, v{TT+2}, v{vG}, s[{sLM}:{sLM+1}]")
    stamp(a, 10)
    a(f"v_mul_f32 v{TT}, 0, v{OA}")
    for i in range(1, 8): a(f"v_fma_f32 v{TT}, v{OA+i}, 0, v{TT}")
    for i in range(0, 8): a(f"v_fma_f32 v{TT}, v{OB+i}, 0, v{TT}")
    a(f"v_max_f32 v{TT+1}, v{OA+8}, v{OB+8}")
    a(f"v_add_f32 v{TT}, v{TT}, v{TT+1}")
    a(f"s_mov_b32 s{sT0}, {hex(f2u(2.0**60))}")
    a(f"v_cmp_gt_f32 vcc, s{sT0}, v{TT}")
    a(f"s_cmp_eq_u32 s{sPASS}, 2")
    a("s_cbranch_scc1 L_fin")
    a("s_cmp_eq_u64 vcc, exec")
    a("s_cbranch_scc1 L_fin")
    a(f"s_mov_b32 s{sPASS}, 2")
    FM0, FM1, FM2, FM3 = KB + 4, KB + 5, KB + 6, KB + 7
    a(f"v_mov_b32 v{FM0}, 0xff800000")
    a(f"v_mov_b32 v{FM2}, 0xff800000")
    a(f"v_mov_b32 v{FM1}, v{vK}")
    a(f"s_mov_b32 s{sT0}, 0")
    a.label("L_maxloop")
    a(f"ds_read_b128 {vr(KB,4)}, v{FM1}")
    a("s_waitcnt lgkmcnt(0)")
    a(f"{MF} {vr(SA,16)}, {vr(KB,4)}, {vr(QA,4)}, 0")
    a(f"{MF} {vr(SB,16)}, {vr(KB,4)}, {vr(QB,4)}, 0")
    a("s_nop 15")
    for i in range(0, 16, 2):
        a(f"v_max3_f32 v{FM0}, v{FM0}, v{SA+i}, v{SA+i+1}")
        a(f"v_max3_f32 v{FM2}, v{FM2}, v{SB+i}, v{SB+i+1}")
    a(f"v_add_u32 v{FM1}, 2048, v{FM1}")
    a(f"s_add_u32 s{sT0}, s{sT0}, 1")
    a(f"s_cmp_lt_u32 s{sT0}, 64")
    a("s_cbranch_scc1 L_maxloop")
    crosshalf_max(FM0, FM1); crosshalf_max(FM2, FM3)
    neg_bcast(CA, FM0); neg_bcast(CB, FM2)
    a("s_waitcnt vmcnt(0)")
    a("s_branch L_restart")
    a.label("L_fin")
    a(f"v_rcp_f32 v{TT}, v{OA+8}")
    a(f"v_rcp_f32 v{TT+1}, v{OB+8}")
    a("s_nop 0")
    a(f"v_mul_f32 v{TT}, v{TT}, v{TT+2}")
    a(f"v_mul_f32 v{TT+1}, v{TT+1}, v{TT+2}")
    for i in range(8):
        a(f"v_mul_f32 v{OA+i}, v{TT}, v{OA+i}")
        a(f"v_mul_f32 v{OB+i}, v{TT+1}, v{OB+i}")
    for j in range(4):
        a(f"v_cvt_pk_bf16_f32 v{SA+4+j}, v{OA+2*j}, v{OA+2*j+1}")
        a(f"v_cvt_pk_bf16_f32 v{SA+8+j}, v{OB+2*j}, v{OB+2*j+1}")
    a(f"s_lshl_b32 s{sT0}, s{sTB}, 1")
    a(f"s_add_u32 s{sT0}, s{sT0}, s{sTT}")
    a(f"s_lshl_b32 s{sT0}, s{sT0}, 6")
    a(f"s_lshl_b32 s{sT1}, s{sGI}, 3")
    a(f"s_add_u32 s{sT0}, s{sT0}, s{sT1}")
    a(f"s_lshl_b32 s{sT1}, s{sC}, 1")
    a(f"s_add_u32 s{sT0}, s{sT0}, s{sT1}")
    a(f"s_lshl_b32 s{sT0}, s{sT0}, 10")
    a(f"s_add_u32 s{sT0}, s{sT0}, {WS_O}")
    vS = SB
    a(f"v_lshlrev_b32 v{vS}, 4, v{vL}")
    a(f"buffer_store_dwordx4 {vr(SA+4,4)}, v{vS}, s[{sWS}:{sWS+3}], s{sT0} offen sc1")
    a(f"buffer_store_dwordx4 {vr(SA+8,4)}, v{vS}, s[{sWS}:{sWS+3}], s{sT0} offen offset:1024 sc1")
    a("s_waitcnt vmcnt(2)")
    XFR = {}
    for k, f in enumerate(range(NFR, 32)):
        XFR[f] = [KB, KB + 4, V0][k]
        wo_read(f, XFR[f])
    a(f"s_and_b32 s{sT2}, s{sGI}, 1")
    a(f"s_lshl_b32 s{sT3}, s{sTB}, 1")
    a(f"s_add_u32 s{sT3}, s{sT3}, s{sT2}")
    a(f"s_lshl_b32 s{sT4}, s{sTT}, 5")
    a(f"s_lshl_b32 s{sT5}, s{sC}, 1")
    a(f"s_add_u32 s{sT4}, s{sT4}, s{sT5}")
    a(f"s_lshl_b32 s{sM0}, s{sT4}, 10")
    a(f"s_lshl_b32 s{sOFF}, s{sT3}, 16")
    a(f"s_add_u32 s{sOFF}, s{sOFF}, s{sM0}")
    a(f"s_add_u32 s{sOFF}, s{sOFF}, {WS_O}")
    a(f"s_add_u32 s{sM0}, s{sM0}, {L_KV}")
    vB = SB + 6
    a(f"s_lshl_b32 s{sT4}, s{sTT}, 15")
    a(f"s_add_u32 s{sT4}, s{sT4}, {L_KV}")
    a(f"v_add_u32 v{vB}, s{sT4}, v{vS}")
    vO = SB + 7
    a(f"v_and_b32 v{vO}, 31, v{vL}")
    a(f"s_lshl_b32 s{sT3}, s{sT3}, 5")
    a(f"v_add_u32 v{vO}, s{sT3}, v{vO}")
    a(f"v_lshlrev_b32 v{vO}, 10, v{vO}")
    a(f"v_lshrrev_b32 v{SB+3}, 5, v{vL}")
    a(f"v_lshl_add_u32 v{vO}, v{SB+3}, 4, v{vO}")
    a(f"s_lshr_b32 s{sT2}, s{sGI}, 1")
    a(f"s_lshl_b32 s{sT2}, s{sT2}, 8")
    a(f"s_lshl_b32 s{sT3}, s{sC}, 6")
    a(f"s_add_u32 s{sT2}, s{sT2}, s{sT3}")
    a(f"s_lshl_b32 s{sT3}, s{sTT}, 5")
    a(f"s_add_u32 s{sT2}, s{sT2}, s{sT3}")
    a(f"v_add_u32 v{vO}, s{sT2}, v{vO}")
    vXw, vXr = SB + 3, SB + 4
    a(f"s_lshl_b32 s{sT0}, s{sW}, 11")
    a(f"v_add_u32 v{vXw}, s{sT0}, v{vS}")
    a(f"s_xor_b32 s{sT1}, s{sW}, 4")
    a(f"s_lshl_b32 s{sT1}, s{sT1}, 11")
    a(f"v_add_u32 v{vXr}, s{sT1}, v{vS}")
    a("s_waitcnt vmcnt(0)")
    a("s_barrier")
    stamp(a, 11)
    a(f"s_cmp_eq_u32 s{sPOLLER}, 1")
    a("s_cbranch_scc0 L_nosig2")
    a(f"s_lshl_b32 s{sT0}, s{sTB}, 7")
    a(f"s_add_u32 s{sT0}, s{sT0}, {WS_F}")
    a(f"s_lshl_b32 s{sT1}, s{sGI}, 2")
    a(f"v_mov_b32 v{SB+1}, s{sT1}")
    a(f"v_mov_b32 v{SB+2}, s{sNONCE}")
    a(f"v_cmp_eq_u32 vcc, 0, v{vL}")
    a(f"s_and_saveexec_b64 s[{sT4}:{sT5}], vcc")
    a(f"buffer_store_dword v{SB+2}, v{SB+1}, s[{sWS}:{sWS+3}], s{sT0} offen sc1")
    a(f"s_mov_b64 exec, s[{sT4}:{sT5}]")
    a(f"v_and_b32 v{SB+1}, 7, v{vL}")
    a(f"v_lshlrev_b32 v{SB+1}, 2, v{SB+1}")
    def ld2(): a(f"buffer_load_dword v{SB+2}, v{SB+1}, s[{sWS}:{sWS+3}], s{sT0} offen sc1")
    def cmp2(): a(f"v_cmp_eq_u32 vcc, s{sNONCE}, v{SB+2}")
    poll("L_poll2", ld2, cmp2)
    a.label("L_nosig2")
    a("s_barrier")
    stamp(a, 14)
    def o_dma(q):
        for i in range(2):
            a(f"s_add_u32 m0, s{sM0}, {(8*q+i)*1024}")
            a(f"s_add_u32 s{sT0}, s{sOFF}, {(8*q+i)*1024}")
            a(f"buffer_load_dwordx4 v{vS}, s[{sWS}:{sWS+3}], s{sT0} offen sc1 lds")
    o_dma(0); o_dma(1)
    ACC3 = OA
    BF = CA
    def afr(s): return XFR[s] if s in XFR else WOA + 4 * s
    for q in range(4):
        a(f"s_waitcnt vmcnt({[2, 4, 2, 0][q]})")
        if q == 0:
            pass
        a("s_barrier")
        if q == 0:
            stamp(a, 15)
        for i in range(8):
            a(f"ds_read_b128 {vr(BF+4*i,4)}, v{vB} offset:{(8*q+i)*1024}")
        if q == 0:
            o_dma(2); o_dma(3)
        for i in range(8):
            a(f"s_waitcnt lgkmcnt({7-i})")
            a(f"{MF} {vr(ACC3,16)}, {vr(afr(8*q+i),4)}, {vr(BF+4*i,4)}, {vr(ACC3,16) if (q or i) else '0'}")
    stamp(a, 16)
    a("s_nop 15")
    a(f"s_cmp_eq_u32 s{sTT}, 0")
    a("s_cbranch_scc0 L_x_b1")
    a(f"ds_write_b128 v{vXw}, {vr(ACC3+8,4)} offset:{L_XCH}")
    a(f"ds_write_b128 v{vXw}, {vr(ACC3+12,4)} offset:{L_XCH+1024}")
    a("s_waitcnt lgkmcnt(0)")
    a("s_barrier")
    a(f"ds_read_b128 {vr(CB,4)}, v{vXr} offset:{L_XCH}")
    a(f"ds_read_b128 {vr(CB+4,4)}, v{vXr} offset:{L_XCH+1024}")
    a("s_waitcnt lgkmcnt(0)")
    for i in range(0, 8, 2):
        a(f"v_pk_add_f32 {vr(CB+i,2)}, {vr(CB+i,2)}, {vr(ACC3+i,2)}")
    a("s_branch L_x_j")
    a.label("L_x_b1")
    a(f"ds_write_b128 v{vXw}, {vr(ACC3,4)} offset:{L_XCH}")
    a(f"ds_write_b128 v{vXw}, {vr(ACC3+4,4)} offset:{L_XCH+1024}")
    a("s_waitcnt lgkmcnt(0)")
    a("s_barrier")
    a(f"ds_read_b128 {vr(CB,4)}, v{vXr} offset:{L_XCH}")
    a(f"ds_read_b128 {vr(CB+4,4)}, v{vXr} offset:{L_XCH+1024}")
    a("s_waitcnt lgkmcnt(0)")
    for i in range(0, 8, 2):
        a(f"v_pk_add_f32 {vr(CB+i,2)}, {vr(CB+i,2)}, {vr(ACC3+8+i,2)}")
    a.label("L_x_j")
    R = SA + 4
    for i in range(0, 8, 2):
        a(f"v_cvt_pk_bf16_f32 v{R+i//2}, v{CB+i}, v{CB+i+1}")
    a("s_nop 1")
    a(f"v_permlane32_swap_b32 v{R}, v{R+2}")
    a(f"v_permlane32_swap_b32 v{R+1}, v{R+3}")
    a(f"buffer_store_dwordx4 {vr(R,4)}, v{vO}, s[{sOUT}:{sOUT+3}], 0 offen")
    if PROF:
        a("s_waitcnt vmcnt(0)")
        stamp(a, 17)
        stamp_rt(a, 31)
        stamp_flush(a, vL, SB + 3)
    a.label("L_end")
    a("s_endpgm")
    return a, kdesc(KNAME, 256)

def build(path):
    ref = open("cdna_kernels/" + NAME + ".s.ref").read().split("\n")
    hdr = [l for l in ref if l.startswith(";") and "@launch" not in l and "Override launch" not in l and "grid=ceil" not in l][:16]
    k, d = gen_fused()
    errs = check(k.lines, "fused")
    for e in errs[:10]: print("HAZARD", e)
    out = "\n".join(hdr) + "\n"
    out += "; @launch grid=(256,1,1) block=(512,1,1) lds=163840\n"
    out += '.amdgcn_target "amdgcn-amd-amdhsa--gfx950"\n.text\n'
    out += k.text()
    out += '.section .rodata,"a"\n.p2align 6\n' + d
    open(path, "w").write(out)
    return len(errs)

if __name__ == "__main__":
    for arg in list(sys.argv):
        if arg.startswith("--x="):
            EXPT.update(arg[4:].split(",")); sys.argv.remove(arg)
    if "--prof" in sys.argv:
        PROF = True; sys.argv.remove("--prof")
    p = sys.argv[1] if len(sys.argv) > 1 else "f4.s"
    n = build(p)
    print("written", p, "hazards:", n)
```

```python
import sys, math, struct
from asmlib import *

NAME = "gated_mix__grouped_kv_mqa__grouped_kv_mqa__prompt"
KNAME = NAME + "_kernel"
WS_KV = 0
WS_G = 256 << 10
WS_F = 512 << 10
WS_KF = WS_F + 8192
WS_O = 1 << 20
WS_SIZE = 16 << 20
WS_PROF = 13 << 20
CQ = 0.25 * math.log2(math.e)
def f2u(f): return struct.unpack("<I", struct.pack("<f", f))[0]
MF = "v_mfma_f32_32x32x16_bf16"
SM = "v_smfmac_f32_32x32x32_bf16"
MF16 = "v_mfma_f32_16x16x32_bf16"
PROF = False
EXPT = set()
def opt(name, default):
    for x in EXPT:
        if x.startswith(name + "="): return int(x[len(name) + 1:])
    return default

L_PART = 16 << 10
L_GW = L_PART
L_WKV = 32 << 10
L_X = 48 << 10
L_KV = 32 << 10
L_SLOT = [0, 112 << 10, 128 << 10, 144 << 10, L_WKV, L_PART, 0, 112 << 10]
L_WOST = 0
L_XCH = 0
L_CNT3 = 7 * 4096 + 3072
L_CNT = L_PART + 4096 + 3072

sX, sWQ, sWKV, sWS, sDBG, sWO, sOUT, sGW = 32, 36, 40, 44, 48, 52, 56, 60
sW, sB, sHG, sTB, sGI, sTT, sC, sTTKV = 64, 65, 66, 67, 68, 69, 70, 71
sVM = 72
sPASS, sROLE, sTYPE, sNONCE = 74, 75, 76, 77
sT0, sT1, sT2, sT3, sT4, sT5 = 78, 79, 80, 81, 82, 83
sM0, sOFF = 84, 85
sTBOFF = 86
sSIG = 87
sPOLLER, sFOK = 92, 93
sPA, sPB = 94, 95
sKVI = 96
sLM = 88

def srd(a, d, base, nbytes):
    a(f"s_mov_b32 s{d}, s{base}")
    a(f"s_and_b32 s{d+1}, s{base+1}, 0xffff")
    a(f"s_mov_b32 s{d+2}, {nbytes}")
    a(f"s_mov_b32 s{d+3}, 0x20000")

def kdesc(name, vgpr, sgpr=100, accum=None):
    if accum is None: accum = (vgpr + 3) // 4 * 4
    return f""".amdhsa_kernel {name}
  .amdhsa_next_free_vgpr {vgpr}
  .amdhsa_next_free_sgpr {sgpr}
  .amdhsa_accum_offset {accum}
  .amdhsa_group_segment_fixed_size 0
  .amdhsa_kernarg_size 112
  .amdhsa_user_sgpr_count 2
  .amdhsa_user_sgpr_kernarg_segment_ptr 1
  .amdhsa_system_sgpr_workgroup_id_x 1
  .amdhsa_float_denorm_mode_32 3
.end_amdhsa_kernel
"""
def header(a, name):
    a.raw(f".globl {name}"); a.raw(".p2align 8"); a.raw(f".type {name},@function"); a.label(name)

VST = 0
def stamp(a, idx):
    if PROF:
        a("s_memtime s[90:91]")
        a("s_waitcnt lgkmcnt(0)")
        a(f"v_writelane_b32 v{VST}, s90, {idx}")
def stamp_rt(a, idx):
    if PROF:
        a("s_memrealtime s[90:91]")
        a("s_waitcnt lgkmcnt(0)")
        a(f"v_writelane_b32 v{VST}, s90, {idx}")
def stamp_flush(a, vL, vtmp0):
    if not PROF: return
    a(f"s_lshl_b32 s{sT0}, s2, 3")
    a(f"s_add_u32 s{sT0}, s{sT0}, s{sW}")
    a(f"s_lshl_b32 s{sT0}, s{sT0}, 7")
    a(f"s_add_u32 s{sT0}, s{sT0}, {WS_PROF}")
    a(f"v_lshlrev_b32 v{vtmp0}, 2, v{vL}")
    a(f"v_cmp_gt_u32 vcc, 32, v{vL}")
    a(f"s_and_saveexec_b64 s[{sT4}:{sT5}], vcc")
    a(f"buffer_store_dword v{VST}, v{vtmp0}, s[{sWS}:{sWS+3}], s{sT0} offen")
    a(f"s_mov_b64 exec, s[{sT4}:{sT5}]")
    a("s_waitcnt vmcnt(0)")

POLL_LIMIT = 0x40000

def gen_fused():
    a = Asm()
    header(a, KNAME)
    vL, vK, vV = 1, 2, 3
    QA, QB = 4, 8
    CA, CB = 12, 28
    SA, SB = 44, 60
    OA, OB = 76, 92
    KB = 108; V0 = 116; V1 = 124
    vK2, vV2, vWO, vWOr = 132, 133, 134, 135
    IDX = 0; NFR = 29; vG = 252
    WOA = 136
    if PROF:
        IDX = 255
    vT0, vT1, vT2, vT3 = 12, 13, 14, 15
    vH = 16; vN15 = 17; vXb = 18; vXt = 19
    vXa = 20
    vAa = 28
    vWq = 34; vE = 35; vGp = 36; vPw = 37
    ACC = 44
    EAC = 60
    AF = 76
    XF = 92
    WF, XFF = 136, 168
    vP0, vP1, vP2, vF = 240, 241, 242, 244
    RD = 200

    a("s_cmp_ge_u32 s2, 256")
    a("s_cbranch_scc1 L_end")
    a("s_load_dwordx8 s[4:11], s[0:1], 0")
    a("s_load_dwordx2 s[12:13], s[0:1], 32")
    a("s_load_dwordx8 s[16:23], s[0:1], 48")
    a("s_load_dwordx8 s[24:31], s[0:1], 80")
    a(f"v_lshrrev_b32 v{vT0}, 6, v0")
    a(f"v_and_b32 v{vL}, 63, v0")
    a(f"v_readfirstlane_b32 s{sW}, v{vT0}")
    if PROF:
        stamp(a, 0); stamp_rt(a, 30)
    a(f"s_lshr_b32 s{sT0}, s2, 3")
    a(f"s_and_b32 s{sGI}, s{sT0}, 7")
    a(f"s_lshr_b32 s{sT0}, s{sT0}, 3")
    a(f"s_and_b32 s{sT1}, s2, 7")
    a(f"s_lshl_b32 s{sT1}, s{sT1}, 2")
    a(f"s_add_u32 s{sTB}, s{sT1}, s{sT0}")
    a(f"s_lshr_b32 s{sB}, s{sGI}, 2")
    a(f"s_and_b32 s{sHG}, s{sGI}, 3")
    a(f"s_lshr_b32 s{sTYPE}, s{sHG}, 1")
    a(f"s_and_b32 s{sTTKV}, s{sHG}, 1")
    a(f"s_lshr_b32 s{sTT}, s{sW}, 2")
    a(f"s_and_b32 s{sC}, s{sW}, 3")
    a(f"s_cmp_eq_u32 s{sTT}, s{sTTKV}")
    a(f"s_cselect_b32 s{sROLE}, 1, 0")
    a(f"s_lshl_b32 s{sTBOFF}, s{sTB}, 16")
    a(f"s_lshl_b32 s{sT0}, s{sTTKV}, 2")
    a(f"s_add_u32 s{sT0}, s{sT0}, 3")
    a(f"s_cmp_eq_u32 s{sW}, s{sT0}")
    a(f"s_cselect_b32 s{sPOLLER}, 1, 0")
    a(f"s_mov_b32 s{sFOK}, 0")
    a(f"s_mov_b32 s{sSIG}, 0")
    a(f"s_mov_b32 s{sVM}, 0x0000ffff")
    a(f"s_mov_b32 s{sVM+1}, 0x0000ffff")
    a(f"s_mov_b32 s{sNONCE}, 0")
    a(f"v_lshlrev_b32 v{vK}, 4, v{vL}")
    a(f"v_lshrrev_b32 v{vH}, 5, v{vL}")
    a(f"v_mov_b32 v{vP0}, 0")
    a(f"v_mov_b32 v{vP2}, 0")
    a(f"s_mov_b32 s{sPA}, 0")
    a(f"s_mov_b32 s{sPB}, 0")
    a(f"v_and_b32 v{vT0}, 31, v{vL}")
    a(f"s_lshl_b32 s{sT0}, s{sTT}, 5")
    a(f"v_add_u32 v{vXb}, s{sT0}, v{vT0}")
    a(f"v_lshlrev_b32 v{vXb}, 10, v{vXb}")
    a(f"v_add_u32 v{vXb}, {L_X}, v{vXb}")
    a(f"v_and_b32 v{vN15}, 15, v{vL}")
    a(f"v_xor_b32 v{vXt}, v{vH}, v{vN15}")
    a(f"v_lshlrev_b32 v{vXt}, 4, v{vXt}")
    a("s_waitcnt lgkmcnt(0)")
    a(f"s_cmp_eq_u32 s{sB}, 0")
    a("s_cselect_b32 s6, s6, s16")
    a("s_cselect_b32 s7, s7, s17")
    a("s_cselect_b32 s8, s8, s18")
    a("s_cselect_b32 s9, s9, s19")
    a("s_cselect_b32 s10, s10, s20")
    a("s_cselect_b32 s11, s11, s21")
    a(f"s_cmp_eq_u32 s{sTYPE}, 0")
    a("s_cselect_b32 s8, s8, s10")
    a("s_cselect_b32 s9, s9, s11")
    srd(a, sX, 4, 2048 * 1024)
    srd(a, sWKV, 8, 16384)
    srd(a, sDBG, 28, 256)
    a(f"s_xor_b32 s{sT0}, s{sW}, 3")
    a(f"s_or_b32 s{sT0}, s2, s{sT0}")
    a(f"s_cmp_eq_u32 s{sT0}, 0")
    a("s_cbranch_scc0 L_nononce")
    a("s_memrealtime s[90:91]")
    a("s_waitcnt lgkmcnt(0)")
    a("s_or_b32 s90, s90, 1")
    a(f"v_mov_b32 v{vT1}, s90")
    a(f"v_mov_b32 v{vT3}, 128")
    a(f"buffer_store_dword v{vT1}, v{vT3}, s[{sDBG}:{sDBG+3}], 0 offen sc1")
    a.label("L_nononce")
    def xrow_dma(rowexpr, vt):
        rowexpr()
        a(f"s_and_b32 s{sT1}, s{sT0}, 15")
        a(f"v_xor_b32 v{vt}, s{sT1}, v{vL}")
        a(f"v_lshlrev_b32 v{vt}, 4, v{vt}")
        a(f"s_lshl_b32 s{sT1}, s{sT0}, 10")
        a(f"s_add_u32 m0, s{sT1}, {L_X}")
        a(f"s_add_u32 s{sT1}, s{sT1}, s{sTBOFF}")
        a(f"buffer_load_dwordx4 v{vt}, s[{sX}:{sX+3}], s{sT1} offen lds")
    a(f"s_lshl_b32 s{sT2}, s{sTTKV}, 5")
    a(f"s_add_u32 s{sT2}, s{sT2}, s{sW}")
    for i in range(4):
        xrow_dma(lambda: a(f"s_add_u32 s{sT0}, s{sT2}, {8*i}"), vT1)
    a(f"s_lshl_b32 s{sT1}, s{sW}, 11")
    a(f"s_add_u32 m0, s{sT1}, {L_WKV}")
    a(f"s_add_u32 s{sT3}, s{sT1}, 1024")
    a(f"buffer_load_dwordx4 v{vK}, s[{sWKV}:{sWKV+3}], s{sT1} offen lds")
    a(f"s_add_u32 m0, s{sT3}, {L_WKV}")
    srd(a, sGW, 24, 1024)
    a(f"buffer_load_dwordx4 v{vK}, s[{sWKV}:{sWKV+3}], s{sT3} offen lds")
    stamp(a, 1)
    srd(a, sWS, 30, WS_SIZE)
    def qaddr_setup():
        for sp in range(8):
            a(f"s_mov_b32 s{sT0}, {32*sp}")
            a(f"v_xad_u32 v{vXa+sp}, v{vXt}, s{sT0}, v{vXb}")
        a(f"v_lshrrev_b32 v{vT0}, 4, v{vL}")
        a(f"v_lshrrev_b32 v{vT3}, 2, v{vN15}")
        a(f"v_lshl_add_u32 v{vAa}, v{vH}, 3, v{vT3}")
        a(f"v_lshlrev_b32 v{vAa}, 8, v{vAa}")
        a(f"v_and_b32 v{vAa+1}, 1, v{vT0}")
        a(f"v_lshlrev_b32 v{vAa+1}, 1, v{vAa+1}")
        a(f"v_bfe_u32 v{vAa+2}, v{vN15}, 1, 1")
        a(f"v_add_u32 v{vAa+1}, v{vAa+1}, v{vAa+2}")
        a(f"s_lshl_b32 s{sT1}, s{sC}, 2")
        a(f"v_add_u32 v{vAa+1}, s{sT1}, v{vAa+1}")
        a(f"v_lshlrev_b32 v{vT3}, 2, v{vT3}")
        a(f"v_xor_b32 v{vAa+1}, v{vAa+1}, v{vT3}")
        a(f"v_lshl_add_u32 v{vAa}, v{vAa+1}, 4, v{vAa}")
        a(f"v_and_b32 v{vAa+2}, 1, v{vN15}")
        a(f"v_lshl_add_u32 v{vAa}, v{vAa+2}, 3, v{vAa}")
        for k in range(5, 0, -1):
            a(f"v_add_u32 v{vAa+k}, {L_SLOT[k]}, v{vAa}")
    def late_srds():
        a(f"s_cmp_eq_u32 s{sTT}, 0")
        a("s_cselect_b32 s12, s12, s22")
        a("s_cselect_b32 s13, s13, s23")
        srd(a, sOUT, 26, 2048 * 1024)
        srd(a, sWO, 12, 512 * 1024)
    a(f"s_cmp_eq_u32 s{sROLE}, 1")
    a("s_cbranch_scc0 L_wrole")
    if "kvprio" in EXPT: a("s_setprio 3")
    a(f"s_mov_b32 m0, {L_GW}")
    a(f"v_lshrrev_b32 v{vT0}, 4, v{vL}")
    a(f"buffer_load_dwordx4 v{vK}, s[{sGW}:{sGW+3}], 0 offen lds")
    vXk = vXa
    WF16, XF16 = 128, 192
    KAC = EAC
    a(f"s_and_b32 s{sT2}, s{sC}, 1")
    a(f"s_lshl_b32 s{sT0}, s{sTTKV}, 5")
    a(f"s_lshl_b32 s{sT1}, s{sT2}, 4")
    a(f"s_add_u32 s{sT0}, s{sT0}, s{sT1}")
    a(f"v_add_u32 v{vT2}, s{sT0}, v{vN15}")
    a(f"v_lshlrev_b32 v{vT2}, 10, v{vT2}")
    a(f"v_add_u32 v{vT2}, {L_X}, v{vT2}")
    a(f"v_xor_b32 v{vT3}, v{vT0}, v{vN15}")
    a(f"v_lshlrev_b32 v{vT3}, 4, v{vT3}")
    for sp in range(4):
        a(f"s_mov_b32 s{sT0}, {64*sp}")
        a(f"v_xad_u32 v{vXk+sp}, v{vT3}, s{sT0}, v{vT2}")
    a(f"v_lshrrev_b32 v{vE}, 2, v{vN15}")
    a(f"v_lshl_add_u32 v{vE}, v{vT0}, 3, v{vE}")
    a(f"v_lshlrev_b32 v{vE}, 5, v{vE}")
    a(f"v_and_b32 v{vT3}, 3, v{vN15}")
    a(f"v_lshl_add_u32 v{vE}, v{vT3}, 3, v{vE}")
    a(f"v_add_u32 v{vE}, {L_WKV}, v{vE}")
    a(f"v_lshlrev_b32 v{vGp}, 4, v{vT0}")
    a(f"v_add_u32 v{vGp}, {L_GW}, v{vGp}")
    a(f"v_and_b32 v{vT2}, 1, v{vT0}")
    a(f"v_lshrrev_b32 v{vT3}, 1, v{vT0}")
    a(f"s_cmp_eq_u32 s{sTYPE}, 0")
    a("s_cbranch_scc0 L_sa_v")
    a(f"v_and_b32 v{vPw}, 3, v{vN15}")
    a(f"v_and_b32 v{vT1}, 4, v{vN15}")
    a(f"v_lshl_add_u32 v{vPw}, v{vT1}, 1, v{vPw}")
    a(f"v_and_b32 v{vT1}, 8, v{vN15}")
    a(f"v_lshrrev_b32 v{vT1}, 1, v{vT1}")
    a(f"v_add_u32 v{vPw}, v{vPw}, v{vT1}")
    a(f"v_lshl_add_u32 v{vPw}, v{vT2}, 5, v{vPw}")
    a(f"s_lshl_b32 s{sT1}, s{sT2}, 4")
    a(f"v_add_u32 v{vPw}, s{sT1}, v{vPw}")
    a(f"v_lshlrev_b32 v{vPw}, 4, v{vPw}")
    a("s_branch L_sa_j")
    a.label("L_sa_v")
    a(f"v_lshl_add_u32 v{vPw}, v{vT2}, 4, v{vN15}")
    a(f"v_lshlrev_b32 v{vPw}, 4, v{vPw}")
    a(f"s_lshl_b32 s{sT1}, s{sT2}, 9")
    a(f"s_add_u32 s{sT1}, s{sT1}, 1024")
    a(f"v_add_u32 v{vPw}, s{sT1}, v{vPw}")
    a.label("L_sa_j")
    a(f"v_lshl_add_u32 v{vPw}, v{vT3}, 3, v{vPw}")
    a(f"s_lshl_b32 s{sT0}, s{sTB}, 1")
    a(f"s_add_u32 s{sT0}, s{sT0}, s{sTTKV}")
    a(f"s_lshl_b32 s{sOFF}, s{sT0}, 11")
    a(f"s_lshl_b32 s{sT3}, s{sB}, 17")
    a(f"s_add_u32 s{sOFF}, s{sOFF}, s{sT3}")
    if WS_KV: a(f"s_add_u32 s{sOFF}, s{sOFF}, {WS_KV}")
    a(f"s_lshl_b32 s{sM0}, s{sT0}, 7")
    a(f"s_add_u32 s{sM0}, s{sM0}, {WS_G}")
    vNon = 38
    a(f"v_mov_b32 v{vT3}, 128")
    a(f"buffer_load_dword v{vNon}, v{vT3}, s[{sDBG}:{sDBG+3}], 0 offen sc1")
    stamp(a, 2)
    a("s_waitcnt vmcnt(0)")
    a("s_barrier")
    stamp(a, 3)
    a(f"s_cmp_ge_u32 s{sC}, 2")
    a("s_cbranch_scc1 L_kv_gate")
    def kvreads(sx):
        a(f"ds_read_b64_tr_b16 {vr(WF16+4*sx,2)}, v{vE} offset:{sx*1024}")
        a(f"ds_read_b64_tr_b16 {vr(WF16+4*sx+2,2)}, v{vE} offset:{sx*1024+128}")
        a(f"ds_read_b128 {vr(XF16+4*sx,4)}, v{vXk+(sx%4)} offset:{(sx//4)*256}")
    D = 5
    for kind in ("k", "v"):
        if kind == "k":
            a(f"s_cmp_eq_u32 s{sTYPE}, 0")
            a("s_cbranch_scc0 L_kv_v")
        else:
            a.label("L_kv_v")
        for sx in range(D): kvreads(sx)
        for sx in range(16):
            rem = min(D - 1, 15 - sx)
            a(f"s_waitcnt lgkmcnt({3*rem})")
            c = vr(KAC, 4) if sx else "0"
            if kind == "k":
                a(f"{MF16} {vr(KAC,4)}, {vr(WF16+4*sx,4)}, {vr(XF16+4*sx,4)}, {c}")
            else:
                a(f"{MF16} {vr(KAC,4)}, {vr(XF16+4*sx,4)}, {vr(WF16+4*sx,4)}, {c}")
            if sx + D < 16: kvreads(sx + D)
        if kind == "k": a("s_branch L_kv_st")
    a.label("L_kv_st")
    a("s_nop 7")
    a(f"v_cvt_pk_bf16_f32 v{KAC+4}, v{KAC}, v{KAC+1}")
    a(f"v_cvt_pk_bf16_f32 v{KAC+5}, v{KAC+2}, v{KAC+3}")
    a(f"buffer_store_dwordx2 {vr(KAC+4,2)}, v{vPw}, s[{sWS}:{sWS+3}], s{sOFF} offen sc1")
    stamp(a, 12)
    a("s_branch L_kv_sig")
    a.label("L_kv_gate")
    a(f"s_or_b32 s{sT0}, s{sTYPE}, s{sB}")
    a(f"s_xor_b32 s{sT1}, s{sC}, 2")
    a(f"s_or_b32 s{sT0}, s{sT0}, s{sT1}")
    a(f"s_cmp_eq_u32 s{sT0}, 0")
    a("s_cbranch_scc0 L_kv_idle")
    for sp in range(4):
        a(f"v_add_u32 v{vXk+4+sp}, 16384, v{vXk+sp}")
    def greads(sx):
        a(f"ds_read_b128 {vr(WF16+4*(sx%8),4)}, v{vGp} offset:{sx*64}")
        a(f"ds_read_b128 {vr(XF16+8*(sx%8),4)}, v{vXk+(sx%4)} offset:{(sx//4)*256}")
        a(f"ds_read_b128 {vr(XF16+8*(sx%8)+4,4)}, v{vXk+4+(sx%4)} offset:{(sx//4)*256}")
    for sx in range(D): greads(sx)
    for sx in range(16):
        rem = min(D - 1, 15 - sx)
        a(f"s_waitcnt lgkmcnt({3*rem})")
        a(f"{MF16} {vr(KAC,4)}, {vr(WF16+4*(sx%8),4)}, {vr(XF16+8*(sx%8),4)}, {vr(KAC,4) if sx else '0'}")
        a(f"{MF16} {vr(KAC+4,4)}, {vr(WF16+4*(sx%8),4)}, {vr(XF16+8*(sx%8)+4,4)}, {vr(KAC+4,4) if sx else '0'}")
        if sx + D < 16: greads(sx + D)
    a(f"v_and_b32 v{vT1}, 16, v{vL}")
    a(f"v_cmp_eq_u32 vcc, 0, v{vT1}")
    a("s_nop 6")
    a(f"v_cndmask_b32 v{KAC+8}, v{KAC+4}, v{KAC}, vcc")
    a(f"v_cvt_pk_bf16_f32 v{KAC+8}, v{KAC+8}, v{KAC+8}")
    a(f"v_lshlrev_b32 v{KAC+8}, 16, v{KAC+8}")
    a(f"s_mov_b32 s{sT2}, {hex(f2u(-math.log2(math.e)))}")
    a(f"v_mul_f32 v{KAC+8}, s{sT2}, v{KAC+8}")
    a(f"v_exp_f32 v{KAC+8}, v{KAC+8}")
    a("s_nop 0")
    a(f"v_add_f32 v{KAC+8}, 1.0, v{KAC+8}")
    a(f"v_rcp_f32 v{KAC+8}, v{KAC+8}")
    a("s_nop 0")
    a(f"v_cvt_pk_bf16_f32 v{KAC+8}, v{KAC+8}, v{KAC+8}")
    a(f"v_lshlrev_b32 v{KAC+8}, 16, v{KAC+8}")
    a(f"v_lshlrev_b32 v{KAC+9}, 2, v{vL}")
    a(f"v_cmp_gt_u32 vcc, 32, v{vL}")
    a(f"s_and_saveexec_b64 s[{sT4}:{sT5}], vcc")
    a(f"buffer_store_dword v{KAC+8}, v{KAC+9}, s[{sWS}:{sWS+3}], s{sM0} offen sc1")
    a(f"s_mov_b64 exec, s[{sT4}:{sT5}]")
    a.label("L_kv_sig")
    qaddr_setup()
    late_srds()
    a(f"v_lshl_add_u32 v{vV}, v{vH}, 4, v{vN15}")
    a(f"v_lshlrev_b32 v{vV}, 4, v{vV}")
    a(f"s_mov_b32 s{sSIG}, 1")
    a("s_branch L_sigcode")
    a.label("L_kv_idle")
    if "notlb" not in EXPT:
        a(f"s_lshl_b32 s{sT0}, s{sTB}, 16")
        a(f"v_mov_b32 v{vP1}, s{sT0}")
        a(f"global_load_dword v{vF}, v{vP1}, s[26:27]")
        a(f"s_lshl_b32 s{sT0}, s{sTB}, 17")
        a(f"s_add_u32 s{sT0}, s{sT0}, {WS_O}")
        a(f"v_mov_b32 v{vP1}, s{sT0}")
        a(f"global_load_dword v{vF+1}, v{vP1}, s[30:31]")
        a(f"s_lshr_b32 s{sT0}, s{sGI}, 1")
        a(f"s_lshl_b32 s{sT0}, s{sT0}, 8")
        a(f"v_mov_b32 v{vP1}, s{sT0}")
        a(f"global_load_dword v{vF+2}, v{vP1}, s[12:13]")
        a(f"global_load_dword v{vF+3}, v{vP1}, s[22:23]")
    qaddr_setup()
    late_srds()
    a(f"v_lshl_add_u32 v{vV}, v{vH}, 4, v{vN15}")
    a(f"v_lshlrev_b32 v{vV}, 4, v{vV}")
    a(f"v_lshrrev_b32 v{vP0}, 1, v{vL}")
    a(f"v_lshlrev_b32 v{vP0}, 7, v{vP0}")
    a(f"v_and_b32 v{vP2}, 1, v{vL}")
    a(f"v_lshl_add_u32 v{vP0}, v{vP2}, 4, v{vP0}")
    a(f"v_lshlrev_b32 v{vP2}, 2, v{vP2}")
    a(f"s_lshl_b32 s{sPA}, s{sB}, 12")
    a(f"s_add_u32 s{sPA}, s{sPA}, {WS_KF}")
    a(f"s_lshl_b32 s{sPB}, s{sTB}, 7")
    a(f"s_add_u32 s{sPB}, s{sPB}, {WS_KF + 8192}")
    a(f"v_readfirstlane_b32 s{sNONCE}, v{vNon}")
    a("s_branch L_b1")
    def signal_kv():
        a(f"s_cmp_eq_u32 s{sSIG}, 1")
        a("s_cbranch_scc0 L_nosig")
        a(f"v_readfirstlane_b32 s{sNONCE}, v{vNon}")
        a(f"s_mov_b32 s{sT1}, 0")
        a.label("L_nwait")
        a(f"s_cmp_lg_u32 s{sNONCE}, 0")
        a("s_cbranch_scc1 L_nok")
        a(f"v_mov_b32 v{vT3}, 128")
        a(f"buffer_load_dword v{vNon}, v{vT3}, s[{sDBG}:{sDBG+3}], 0 offen sc1")
        a("s_waitcnt vmcnt(0)")
        a(f"v_readfirstlane_b32 s{sNONCE}, v{vNon}")
        a(f"s_add_u32 s{sT1}, s{sT1}, 1")
        a(f"s_cmp_lt_u32 s{sT1}, {POLL_LIMIT}")
        a("s_cbranch_scc1 L_nwait")
        a.label("L_nok")
        a(f"s_cmp_eq_u32 s{sC}, 2")
        a("s_cbranch_scc1 L_fa_gate")
        a(f"s_lshl_b32 s{sT0}, s{sB}, 5")
        a(f"s_add_u32 s{sT0}, s{sT0}, s{sTB}")
        a(f"s_lshl_b32 s{sT0}, s{sT0}, 7")
        a(f"s_lshl_b32 s{sT1}, s{sTTKV}, 2")
        a(f"s_lshl_b32 s{sT2}, s{sTYPE}, 1")
        a(f"s_add_u32 s{sT1}, s{sT1}, s{sT2}")
        a(f"s_add_u32 s{sT1}, s{sT1}, s{sC}")
        a(f"s_lshl_b32 s{sT1}, s{sT1}, 2")
        a(f"s_add_u32 s{sT0}, s{sT0}, s{sT1}")
        a(f"s_add_u32 s{sT0}, s{sT0}, {WS_KF}")
        a("s_branch L_fa_j")
        a.label("L_fa_gate")
        a(f"s_lshl_b32 s{sT0}, s{sTB}, 7")
        a(f"s_lshl_b32 s{sT1}, s{sTTKV}, 2")
        a(f"s_add_u32 s{sT0}, s{sT0}, s{sT1}")
        a(f"s_add_u32 s{sT0}, s{sT0}, {WS_KF + 8192}")
        a.label("L_fa_j")
        a(f"v_mov_b32 v{RD}, 0")
        a(f"v_mov_b32 v{RD+1}, s{sNONCE}")
        a("s_waitcnt vmcnt(0)")
        a(f"v_cmp_eq_u32 vcc, 0, v{vL}")
        a(f"s_and_saveexec_b64 s[{sT4}:{sT5}], vcc")
        a(f"buffer_store_dword v{RD+1}, v{RD}, s[{sWS}:{sWS+3}], s{sT0} offen sc1")
        a(f"s_mov_b64 exec, s[{sT4}:{sT5}]")
        stamp(a, 13)
        a.label("L_nosig")
    a.label("L_sigcode")
    signal_kv()
    a("s_branch L_b1")
    a.label("L_wrole")
    a(f"v_lshrrev_b32 v{vT0}, 4, v{vL}")
    a(f"v_lshlrev_b32 v{vWq}, 2, v{vT0}")
    a(f"v_xor_b32 v{vWq}, v{vWq}, v{vN15}")
    a(f"v_lshlrev_b32 v{vWq}, 4, v{vWq}")
    a(f"v_lshl_add_u32 v{vWq}, v{vT0}, 10, v{vWq}")
    a(f"s_lshl_b32 s{sT1}, s{sHG}, 8")
    a(f"v_add_u32 v{vWq}, s{sT1}, v{vWq}")
    srd(a, sWQ, 6, 512 * 1024)
    def wq_chunk(c):
        slot = L_SLOT[c]
        for i in range(4):
            a(f"s_lshl_b32 s{sT1}, s{sC}, 12")
            a(f"s_add_u32 m0, s{sT1}, {slot + i*1024}")
            a(f"s_lshl_b32 s{sT1}, s{sC}, 14")
            a(f"s_add_u32 s{sT1}, s{sT1}, {(64*c + 4*i)*1024}")
            a(f"buffer_load_dwordx4 v{vWq}, s[{sWQ}:{sWQ+3}], s{sT1} offen lds")
    def other_rows():
        a(f"s_xor_b32 s{sT2}, s{sTTKV}, 1")
        a(f"s_lshl_b32 s{sT2}, s{sT2}, 5")
        a(f"s_add_u32 s{sT2}, s{sT2}, s{sC}")
        for i in range(8):
            xrow_dma(lambda: a(f"s_add_u32 s{sT0}, s{sT2}, {4*i}"), vT1)
    EARLY = opt("early", 0)
    nbefore = 0
    if EARLY >= 1: other_rows(); nbefore += 8
    if EARLY >= 2: wq_chunk(0); nbefore += 4
    qaddr_setup()
    late_srds()
    a(f"v_lshl_add_u32 v{vV}, v{vH}, 4, v{vN15}")
    a(f"v_lshlrev_b32 v{vV}, 4, v{vV}")
    stamp(a, 2)
    a(f"s_waitcnt vmcnt({nbefore})")
    a("s_barrier")
    stamp(a, 3)
    if "wdelay" in EXPT:
        a(f"v_mov_b32 v{vT0}, {L_CNT}")
        a.label("L_wspin")
        a(f"ds_read_b32 v{vT1}, v{vT0}")
        a("s_waitcnt lgkmcnt(0)")
        a(f"v_readfirstlane_b32 s{sT0}, v{vT1}")
        a(f"s_cmp_ge_u32 s{sT0}, {opt('wd', 4)}")
        a("s_cbranch_scc0 L_wspin")
    if EARLY < 1: other_rows()
    if EARLY < 2: wq_chunk(0)
    for c in range(1, 4): wq_chunk(c)
    stamp(a, 4)
    a("s_waitcnt vmcnt(8)")
    a.label("L_b1")
    if "kvprio" in EXPT: a("s_setprio 0")
    a("s_barrier")
    stamp(a, 5)
    def qreads(s):
        c, sp4 = s // 4, s % 4
        buf = s % 4
        va = vAa + [0, 1, 2, 3, 4, 5, 0, 1][c]
        a(f"ds_read_b64_tr_b16 {vr(AF+4*buf,2)}, v{va} offset:{sp4*4096}")
        a(f"ds_read_b64_tr_b16 {vr(AF+4*buf+2,2)}, v{va} offset:{sp4*4096+1024}")
        a(f"ds_read_b128 {vr(XF+4*buf,4)}, v{vXa + (s % 8)} offset:{(s//8)*256}")
    def qmf(s):
        buf = s % 4
        a(f"{MF} {vr(ACC,16)}, {vr(AF+4*buf,4)}, {vr(XF+4*buf,4)}, {vr(ACC,16) if s else '0'}")
    def flag_loads():
        a(f"buffer_load_dwordx4 {vr(vF,4)}, v{vP0}, s[{sWS}:{sWS+3}], s{sPA} offen sc1")
        a(f"buffer_load_dword v{vF+4}, v{vP2}, s[{sWS}:{sWS+3}], s{sPB} offen sc1")
    def flag_cmp():
        a(f"v_cmp_eq_u32 vcc, s{sNONCE}, v{vF}")
        for k in range(1, 5):
            a(f"v_cmp_eq_u32 s[{sT2}:{sT3}], s{sNONCE}, v{vF+k}")
            a(f"s_and_b64 vcc, vcc, s[{sT2}:{sT3}]")
    def first_kv():
        a(f"s_lshl_b32 s{sOFF}, s{sB}, 17")
        if WS_KV: a(f"s_add_u32 s{sOFF}, s{sOFF}, {WS_KV}")
        a(f"s_mov_b32 s{sM0}, {L_KV}")
        for i in range(8):
            a(f"s_mov_b32 m0, s{sM0}")
            a(f"s_add_u32 s{sM0}, s{sM0}, 1024")
            a(f"buffer_load_dwordx4 v{vK}, s[{sWS}:{sWS+3}], s{sOFF} offen sc1 lds")
            a(f"s_add_u32 s{sOFF}, s{sOFF}, 1024")
        a(f"s_mov_b32 s{sFOK}, 2")
    def poller_step(p, check, can_first):
        lab = f"L_ps{p}"
        a(f"s_cmp_eq_u32 s{sPOLLER}, 1")
        a(f"s_cbranch_scc0 {lab}")
        a(f"s_cmp_lg_u32 s{sFOK}, 0")
        a(f"s_cbranch_scc1 {lab}_fok")
        if check:
            a("s_waitcnt vmcnt(0)")
            a(f"s_cmp_eq_u32 s{sNONCE}, 0")
            a(f"s_cbranch_scc1 {lab}_re")
            flag_cmp()
            a("s_cmp_eq_u64 vcc, exec")
            a(f"s_cbranch_scc0 {lab}_re")
            a(f"s_mov_b32 s{sFOK}, 1")
            a(f"s_branch {lab}_fok")
            a.label(f"{lab}_re")
            a(f"s_cmp_lg_u32 s{sNONCE}, 0")
            a(f"s_cbranch_scc1 {lab}_ld")
            a(f"v_readfirstlane_b32 s{sNONCE}, v{vNon}")
            a.label(f"{lab}_ld")
        a(f"v_mov_b32 v{vP1}, 128")
        a(f"buffer_load_dword v{vNon}, v{vP1}, s[{sDBG}:{sDBG+3}], 0 offen sc1")
        flag_loads()
        a(f"s_branch {lab}")
        a.label(f"{lab}_fok")
        if can_first:
            a(f"s_cmp_eq_u32 s{sFOK}, 1")
            a(f"s_cbranch_scc0 {lab}")
            first_kv()
        a.label(lab)
    for s_ in range(4): qreads(s_)
    a(f"s_cmp_eq_u32 s{sROLE}, 1")
    a("s_cbranch_scc1 L_c5_skip")
    wq_chunk(4)
    wq_chunk(5)
    a.label("L_c5_skip")
    for p in range(4):
        for j in range(8):
            s_ = 8 * p + j
            if j < 7:
                nxt = min(3, 7 - j)
                a(f"s_waitcnt lgkmcnt({3*nxt})")
                qmf(s_)
                if j + 4 < 8: qreads(s_ + 4)
            else:
                a("s_waitcnt lgkmcnt(0)")
                if p < 3:
                    lab = f"L_q{p}"
                    a(f"s_cmp_eq_u32 s{sROLE}, 1")
                    a(f"s_cbranch_scc1 {lab}_kv")
                    a(f"s_waitcnt vmcnt({[8, 8, 0][p]})")
                    a("s_barrier")
                    if p == 0:
                        wq_chunk(6); wq_chunk(7)
                    a(f"s_branch {lab}_j")
                    a.label(f"{lab}_kv")
                    a("s_barrier")
                    a.label(f"{lab}_j")
                    for k in range(3): qreads(8 * (p + 1) + k)
                    qmf(s_)
                    qreads(8 * (p + 1) + 3)
                    poller_step(p, check=(p > 0), can_first=(p == 2))
                    if p == 2:
                        a(f"s_cmp_eq_u32 s{sW}, 0")
                        a("s_cbranch_scc0 L_nocz")
                        a(f"v_mov_b32 v{RD}, 0")
                        a(f"ds_write_b32 v{RD}, v{RD} offset:{L_CNT3}")
                        a.label("L_nocz")
                    if "st3" in EXPT: stamp(a, 18 + p)
                else:
                    qmf(s_)
    stamp(a, 6)
    def poll(label, load, cmpcode):
        a(f"s_mov_b32 s{sT1}, 0")
        a.label(label)
        load()
        a("s_waitcnt vmcnt(0)")
        cmpcode()
        a("s_cmp_eq_u64 vcc, exec")
        a(f"s_cbranch_scc1 {label}_done")
        a(f"s_add_u32 s{sT1}, s{sT1}, 1")
        a(f"s_cmp_lt_u32 s{sT1}, {POLL_LIMIT}")
        a(f"s_cbranch_scc0 {label}_done")
        a("s_sleep 1")
        a(f"s_branch {label}")
        a.label(f"{label}_done")
    a(f"s_mov_b32 s{sT0}, {hex(f2u(CQ))}")
    a(f"v_add_u32 v{vV}, {L_KV+1024}, v{vV}")
    a(f"v_and_b32 v{vT0}, 27, v{vL}")
    a(f"v_cmp_eq_u32 vcc, 16, v{vT0}")
    a(f"v_mov_b32 v{vT1}, 0x3f803f80")
    a(f"v_add_u32 v{vV2}, 0x10000, v{vV}")
    for i in range(16):
        a(f"v_cndmask_b32 v{V0+i}, 0, v{vT1}, vcc")
    a(f"s_mov_b32 s{sT1}, s{sT0}")
    for i in range(0, 16, 2):
        a(f"v_pk_mul_f32 {vr(ACC+i,2)}, {vr(ACC+i,2)}, s[{sT0}:{sT1}]")
    for j in range(4):
        a(f"v_cvt_pk_bf16_f32 v{QA+j}, v{ACC+2*j}, v{ACC+2*j+1}")
        a(f"v_cvt_pk_bf16_f32 v{QB+j}, v{ACC+8+2*j}, v{ACC+8+2*j+1}")
    a(f"s_cmp_eq_u32 s{sPOLLER}, 1")
    a("s_cbranch_scc0 L_nopoll")
    a(f"s_cmp_eq_u32 s{sFOK}, 2")
    a("s_cbranch_scc1 L_nopoll")
    a(f"s_cmp_eq_u32 s{sFOK}, 1")
    a("s_cbranch_scc1 L_dofirst")
    a("s_waitcnt vmcnt(0)")
    a(f"s_cmp_lg_u32 s{sNONCE}, 0")
    a("s_cbranch_scc0 L_getnonce")
    flag_cmp()
    a("s_cmp_eq_u64 vcc, exec")
    a("s_cbranch_scc1 L_dofirst")
    a("s_branch L_havenonce")
    a.label("L_getnonce")
    a(f"v_readfirstlane_b32 s{sNONCE}, v{vNon}")
    a(f"v_mov_b32 v{vP1}, 128")
    def ldn(): a(f"buffer_load_dword v{vNon}, v{vP1}, s[{sDBG}:{sDBG+3}], 0 offen sc1")
    def cmpn(): a(f"v_cmp_ne_u32 vcc, 0, v{vNon}")
    a(f"s_cmp_lg_u32 s{sNONCE}, 0")
    a("s_cbranch_scc1 L_havenonce")
    poll("L_polln", ldn, cmpn)
    a(f"v_readfirstlane_b32 s{sNONCE}, v{vNon}")
    a.label("L_havenonce")
    poll("L_poll", flag_loads, flag_cmp)
    a.label("L_dofirst")
    first_kv()
    a.label("L_nopoll")
    for i in range(0, 16, 2):
        a(f"v_pk_mov_b32 {vr(OA+i,2)}, 0, 0")
        a(f"v_pk_mov_b32 {vr(OB+i,2)}, 0, 0")
    a(f"v_lshrrev_b32 v{vT0}, 2, v{vL}")
    a(f"v_and_b32 v{vT1}, 3, v{vL}")
    a(f"v_lshlrev_b32 v{vT1}, 4, v{vT1}")
    a(f"v_lshl_add_u32 v{vWO}, v{vT0}, 10, v{vT1}")
    a(f"s_lshr_b32 s{sT0}, s{sGI}, 1")
    a(f"s_lshl_b32 s{sT0}, s{sT0}, 8")
    a(f"s_lshl_b32 s{sT1}, s{sC}, 6")
    a(f"s_add_u32 s{sT0}, s{sT0}, s{sT1}")
    a(f"v_add_u32 v{vWO}, s{sT0}, v{vWO}")
    a(f"v_lshrrev_b32 v{vT1}, 2, v{vN15}")
    a(f"v_lshl_add_u32 v{vT1}, v{vH}, 2, v{vT1}")
    a(f"v_lshlrev_b32 v{vWOr}, 6, v{vT1}")
    a(f"v_bfe_u32 v{vT1}, v{vL}, 4, 1")
    a(f"v_lshl_add_u32 v{vWOr}, v{vT1}, 5, v{vWOr}")
    a(f"v_and_b32 v{vT0}, 3, v{vN15}")
    a(f"v_lshl_add_u32 v{vWOr}, v{vT0}, 3, v{vWOr}")
    a(f"s_lshl_b32 s{sT0}, s{sW}, 12")
    a(f"v_add_u32 v{vWOr}, s{sT0}, v{vWOr}")
    a(f"v_mov_b32 v{IDX}, 0xdddddddd")
    a(f"s_lshl_b32 s{sOFF}, s{sB}, 17")
    a(f"s_add_u32 s{sOFF}, s{sOFF}, {WS_KV + 8192}")
    a(f"s_lshl_b32 s{sM0}, s{sC}, 11")
    a(f"s_add_u32 s{sOFF}, s{sOFF}, s{sM0}")
    a(f"s_add_u32 s{sM0}, s{sM0}, {L_KV + 8192}")
    vKd = 253
    a(f"v_mov_b32 v{vKd}, v{vK}")
    a(f"v_add_u32 v{vK}, {L_KV}, v{vK}")
    a(f"v_add_u32 v{vK2}, 0x10000, v{vK}")
    a(f"s_mov_b32 s{sPASS}, 1")
    a(f"s_lshr_b32 s{sKVI}, s{sW}, 2")
    a(f"v_and_b32 v{vG}, 31, v{vL}")
    a(f"v_lshlrev_b32 v{vG}, 2, v{vG}")
    a(f"s_lshl_b32 s{sT2}, s{sTB}, 1")
    a(f"s_add_u32 s{sT2}, s{sT2}, s{sTT}")
    a(f"s_lshl_b32 s{sT2}, s{sT2}, 7")
    a(f"s_add_u32 s{sT2}, s{sT2}, {WS_G}")
    a("s_waitcnt vmcnt(0)")
    a("s_barrier")
    stamp(a, 7)
    def kv_step():
        a(f"s_mov_b32 m0, s{sM0}")
        a(f"s_add_u32 s{sT0}, s{sOFF}, 1024")
        a(f"buffer_load_dwordx4 v{vKd}, s[{sWS}:{sWS+3}], s{sOFF} offen sc1 lds")
        a(f"s_add_u32 m0, s{sM0}, 1024")
        a(f"s_add_u32 s{sM0}, s{sM0}, 8192")
        a(f"buffer_load_dwordx4 v{vKd}, s[{sWS}:{sWS+3}], s{sT0} offen sc1 lds")
        a(f"s_add_u32 s{sOFF}, s{sOFF}, 8192")
    a(f"buffer_load_dword v{vG}, v{vG}, s[{sWS}:{sWS+3}], s{sT2} offen sc1")
    def ldK(buf, t):
        va = vK if t < 32 else vK2
        a(f"ds_read_b128 {vr(KB+4*buf,4)}, v{va} offset:{(t % 32)*2048}")
    def ldV(buf, t):
        va = vV if t < 32 else vV2
        off = (t % 32) * 2048
        a(f"s_mov_b64 exec, s[{sVM}:{sVM+1}]")
        a(f"ds_read_b128 {vr(V0+4*buf,4)}, v{va} offset:{off}")
        a(f"ds_read_b128 {vr(V1+4*buf,4)}, v{va} offset:{off+512}")
        a("s_mov_b64 exec, -1")
    def neg_bcast(C, m):
        for i in range(0, 16, 2):
            a(f"v_pk_mul_f32 {vr(C+i,2)}, {vr(m,2)}, -1.0 op_sel_hi:[0,0]")
    def crosshalf_max(m, t):
        a(f"v_mov_b32 v{t}, v{m}")
        a("s_nop 1")
        a(f"v_permlane32_swap_b32 v{m}, v{t}")
        a("s_nop 1")
        a(f"v_max_f32 v{m}, v{m}, v{t}")
    def rowmax(S, m):
        a(f"v_max3_f32 v{m}, v{S}, v{S+1}, v{S+2}")
        for i in range(3, 15, 2):
            a(f"v_max3_f32 v{m}, v{m}, v{S+i}, v{S+i+1}")
        a(f"v_max_f32 v{m}, v{m}, v{S+15}")
    M0r, M1r, M2r, M3r = WOA, WOA + 1, WOA + 2, WOA + 3
    ldK(0, 0)
    ldK(1, 1)
    ldV(0, 0)
    a("s_waitcnt lgkmcnt(3)")
    a(f"{MF} {vr(SA,16)}, {vr(KB,4)}, {vr(QA,4)}, 0")
    a(f"{MF} {vr(SB,16)}, {vr(KB,4)}, {vr(QB,4)}, 0")
    for i in range(8, 16, 2):
        pass
    a("s_nop 10")
    rowmax(SA, M0r); rowmax(SB, M2r)
    crosshalf_max(M0r, M1r); crosshalf_max(M2r, M3r)
    neg_bcast(CA, M0r); neg_bcast(CB, M2r)
    a("s_branch L_go")
    a.label("L_restart")
    for i in range(0, 16, 2):
        a(f"v_pk_mov_b32 {vr(OA+i,2)}, 0, 0")
        a(f"v_pk_mov_b32 {vr(OB+i,2)}, 0, 0")
    ldK(0, 0)
    ldK(1, 1)
    ldV(0, 0)
    a.label("L_go")
    for i in range(8, 16, 2):
        a(f"v_pk_mov_b32 {vr(SB+i,2)}, 0, 0")
    a("s_waitcnt lgkmcnt(0)")
    a(f"{MF} {vr(SA,16)}, {vr(KB,4)}, {vr(QA,4)}, {vr(CA,16)}")
    if "noprio" not in EXPT:
        a(f"s_cmp_ge_u32 s{sW}, 4")
        a("s_cbranch_scc0 L_noprio0")
        a("s_setprio 1")
        a.label("L_noprio0")
    a("s_nop 7")
    a("s_nop 1")
    stamp(a, 9)
    def ex(S, i): a(f"v_exp_f32 v{S+i}, v{S+i}")
    T0W = 16
    def wo_dma(f):
        a(f"s_lshl_b32 s{sT0}, s{sW}, 12")
        a(f"s_add_u32 m0, s{sT0}, {L_WOST + (f % 3)*1024}")
        a(f"s_mov_b32 s{sT1}, {f*16384}")
        a(f"buffer_load_dwordx4 v{vWO}, s[{sWO}:{sWO+3}], s{sT1} offen lds")
    def wo_read(f, dst):
        a(f"ds_read_b64_tr_b16 {vr(dst,2)}, v{vWOr} offset:{L_WOST + (f % 3)*1024}")
        a(f"ds_read_b64_tr_b16 {vr(dst+2,2)}, v{vWOr} offset:{L_WOST + (f % 3)*1024 + 512}")
    PSW = opt("psw", 53)
    for t in range(64):
        p = t & 1
        def sync(k, n):
            a(f"s_cmp_eq_u32 s{sPASS}, 1")
            a(f"s_cbranch_scc0 L_sy{k}_done")
            a(f"s_cmp_ge_u32 s{sW}, 4")
            a(f"s_cbranch_scc0 L_sy{k}_spin")
            if n is not None: a(f"s_waitcnt vmcnt({n})")
            a(f"v_mov_b32 v254, 1")
            a("s_mov_b64 exec, 1")
            a(f"ds_add_u32 v{vKd}, v254 offset:{L_CNT3}")
            a("s_mov_b64 exec, -1")
            a.label(f"L_sy{k}_spin")
            a(f"ds_read_b32 v254, v{vKd} offset:{L_CNT3}")
            a("s_waitcnt lgkmcnt(0)")
            a(f"v_readfirstlane_b32 s{sT0}, v254")
            a(f"s_cmp_ge_u32 s{sT0}, {4*k}")
            a(f"s_cbranch_scc0 L_sy{k}_spin")
            a.label(f"L_sy{k}_done")
        if t == 2:  sync(1, 2)
        if t == 6:  sync(2, 6)
        if t == 14: sync(3, 14)
        if t == 30: sync(4, None)
        if t == PSW and "noprio" not in EXPT:
            a("s_setprio 0")
        ex(SA, 0); ex(SA, 1)
        a(f"{SM} {vr(OB,16)}, {vr(V1+4*(p^1),4)}, {vr(SB+8,8)}, v{IDX}")
        ex(SA, 2); ex(SA, 3); ex(SA, 4)
        a(f"{MF} {vr(SB,16)}, {vr(KB+4*p,4)}, {vr(QB,4)}, {vr(CB,16)}")
        nld = 0
        if t + 2 < 64: ldK(p, t + 2); nld += 1
        if t + 1 < 64: ldV(p ^ 1, t + 1); nld += 2
        for i in range(5, 10): ex(SA, i)
        a(f"s_waitcnt lgkmcnt({nld})")
        a(f"{SM} {vr(OA,16)}, {vr(V0+4*p,4)}, {vr(SA,8)}, v{IDX}")
        for i in range(10, 13): ex(SA, i)
        if t <= 14:
            a(f"s_cmp_eq_u32 s{sKVI}, 1")
            a(f"s_cbranch_scc0 L_nokv{t}")
            kv_step()
            a.label(f"L_nokv{t}")
        fd = t - T0W
        if 0 <= fd < NFR: wo_dma(fd)
        for i in range(13, 16): ex(SA, i)
        ex(SB, 0); ex(SB, 1)
        a(f"{SM} {vr(OA,16)}, {vr(V1+4*p,4)}, {vr(SA+8,8)}, v{IDX}")
        ex(SB, 2); ex(SB, 3); ex(SB, 4)
        if t + 1 < 64:
            a(f"{MF} {vr(SA,16)}, {vr(KB+4*(p^1),4)}, {vr(QA,4)}, {vr(CA,16)}")
        else:
            a("s_nop 0")
        for i in range(5, 8): ex(SB, i)
        fr = t - T0W - 2
        if 0 <= fr < NFR:
            outstanding_after = min(fd, NFR - 1) - fr
            a(f"s_waitcnt vmcnt({outstanding_after})")
            wo_read(fr, WOA + 4 * fr)
        for i in range(8, 10): ex(SB, i)
        a(f"{SM} {vr(OB,16)}, {vr(V0+4*p,4)}, {vr(SB,8)}, v{IDX}")
        for i in range(10, 16): ex(SB, i)
    a("s_nop 1")
    a(f"{SM} {vr(OB,16)}, {vr(V1+4,4)}, {vr(SB+8,8)}, v{IDX}")
    for f in range(NFR, 32): wo_dma(f)
    TT = SA
    a(f"v_sub_f32 v{TT+2}, 1.0, v{vG}")
    a(f"v_cvt_pk_bf16_f32 v{TT+2}, v{TT+2}, v{TT+2}")
    a(f"v_lshlrev_b32 v{TT+2}, 16, v{TT+2}")
    a(f"s_cmp_eq_u32 s{sB}, 0")
    a(f"s_cselect_b64 s[{sLM}:{sLM+1}], -1, 0")
    a(f"v_cndmask_b32 v{TT+2}, v{TT+2}, v{vG}, s[{sLM}:{sLM+1}]")
    stamp(a, 10)
    a(f"v_mul_f32 v{TT}, 0, v{OA}")
    for i in range(1, 8): a(f"v_fma_f32 v{TT}, v{OA+i}, 0, v{TT}")
    for i in range(0, 8): a(f"v_fma_f32 v{TT}, v{OB+i}, 0, v{TT}")
    a(f"v_max_f32 v{TT+1}, v{OA+8}, v{OB+8}")
    a(f"v_add_f32 v{TT}, v{TT}, v{TT+1}")
    a(f"s_mov_b32 s{sT0}, {hex(f2u(2.0**60))}")
    a(f"v_cmp_gt_f32 vcc, s{sT0}, v{TT}")
    a(f"s_cmp_eq_u32 s{sPASS}, 2")
    a("s_cbranch_scc1 L_fin")
    a("s_cmp_eq_u64 vcc, exec")
    a("s_cbranch_scc1 L_fin")
    a(f"s_mov_b32 s{sPASS}, 2")
    a(f"s_mov_b32 s{sKVI}, 0")
    FM0, FM1, FM2, FM3 = KB + 4, KB + 5, KB + 6, KB + 7
    a(f"v_mov_b32 v{FM0}, 0xff800000")
    a(f"v_mov_b32 v{FM2}, 0xff800000")
    a(f"v_mov_b32 v{FM1}, v{vK}")
    a(f"s_mov_b32 s{sT0}, 0")
    a.label("L_maxloop")
    a(f"ds_read_b128 {vr(KB,4)}, v{FM1}")
    a("s_waitcnt lgkmcnt(0)")
    a(f"{MF} {vr(SA,16)}, {vr(KB,4)}, {vr(QA,4)}, 0")
    a(f"{MF} {vr(SB,16)}, {vr(KB,4)}, {vr(QB,4)}, 0")
    a("s_nop 15")
    for i in range(0, 16, 2):
        a(f"v_max3_f32 v{FM0}, v{FM0}, v{SA+i}, v{SA+i+1}")
        a(f"v_max3_f32 v{FM2}, v{FM2}, v{SB+i}, v{SB+i+1}")
    a(f"v_add_u32 v{FM1}, 2048, v{FM1}")
    a(f"s_add_u32 s{sT0}, s{sT0}, 1")
    a(f"s_cmp_lt_u32 s{sT0}, 64")
    a("s_cbranch_scc1 L_maxloop")
    crosshalf_max(FM0, FM1); crosshalf_max(FM2, FM3)
    neg_bcast(CA, FM0); neg_bcast(CB, FM2)
    a("s_waitcnt vmcnt(0)")
    a("s_branch L_restart")
    a.label("L_fin")
    a(f"v_rcp_f32 v{TT}, v{OA+8}")
    a(f"v_rcp_f32 v{TT+1}, v{OB+8}")
    a("s_nop 0")
    a(f"v_mul_f32 v{TT}, v{TT}, v{TT+2}")
    a(f"v_mul_f32 v{TT+1}, v{TT+1}, v{TT+2}")
    for i in range(8):
        a(f"v_mul_f32 v{OA+i}, v{TT}, v{OA+i}")
        a(f"v_mul_f32 v{OB+i}, v{TT+1}, v{OB+i}")
    for j in range(4):
        a(f"v_cvt_pk_bf16_f32 v{SA+4+j}, v{OA+2*j}, v{OA+2*j+1}")
        a(f"v_cvt_pk_bf16_f32 v{SA+8+j}, v{OB+2*j}, v{OB+2*j+1}")
    a(f"s_lshl_b32 s{sT0}, s{sTB}, 1")
    a(f"s_add_u32 s{sT0}, s{sT0}, s{sTT}")
    a(f"s_lshl_b32 s{sT0}, s{sT0}, 6")
    a(f"s_lshl_b32 s{sT1}, s{sGI}, 3")
    a(f"s_add_u32 s{sT0}, s{sT0}, s{sT1}")
    a(f"s_lshl_b32 s{sT1}, s{sC}, 1")
    a(f"s_add_u32 s{sT0}, s{sT0}, s{sT1}")
    a(f"s_lshl_b32 s{sT0}, s{sT0}, 10")
    a(f"s_add_u32 s{sT0}, s{sT0}, {WS_O}")
    vS = SB
    a(f"v_lshlrev_b32 v{vS}, 4, v{vL}")
    a(f"buffer_store_dwordx4 {vr(SA+4,4)}, v{vS}, s[{sWS}:{sWS+3}], s{sT0} offen sc1")
    a(f"buffer_store_dwordx4 {vr(SA+8,4)}, v{vS}, s[{sWS}:{sWS+3}], s{sT0} offen offset:1024 sc1")
    a("s_waitcnt vmcnt(2)")
    XFR = {}
    for k, f in enumerate(range(NFR, 32)):
        XFR[f] = [KB, KB + 4, V0][k]
        wo_read(f, XFR[f])
    a(f"s_and_b32 s{sT2}, s{sGI}, 1")
    a(f"s_lshl_b32 s{sT3}, s{sTB}, 1")
    a(f"s_add_u32 s{sT3}, s{sT3}, s{sT2}")
    a(f"s_lshl_b32 s{sT4}, s{sTT}, 5")
    a(f"s_lshl_b32 s{sT5}, s{sC}, 1")
    a(f"s_add_u32 s{sT4}, s{sT4}, s{sT5}")
    a(f"s_lshl_b32 s{sM0}, s{sT4}, 10")
    a(f"s_lshl_b32 s{sOFF}, s{sT3}, 16")
    a(f"s_add_u32 s{sOFF}, s{sOFF}, s{sM0}")
    a(f"s_add_u32 s{sOFF}, s{sOFF}, {WS_O}")
    a(f"s_add_u32 s{sM0}, s{sM0}, {L_KV}")
    vB = SB + 6
    a(f"s_lshl_b32 s{sT4}, s{sTT}, 15")
    a(f"s_add_u32 s{sT4}, s{sT4}, {L_KV}")
    a(f"v_add_u32 v{vB}, s{sT4}, v{vS}")
    vO = SB + 7
    a(f"v_and_b32 v{vO}, 31, v{vL}")
    a(f"s_lshl_b32 s{sT3}, s{sT3}, 5")
    a(f"v_add_u32 v{vO}, s{sT3}, v{vO}")
    a(f"v_lshlrev_b32 v{vO}, 10, v{vO}")
    a(f"v_lshrrev_b32 v{SB+3}, 5, v{vL}")
    a(f"v_lshl_add_u32 v{vO}, v{SB+3}, 4, v{vO}")
    a(f"s_lshr_b32 s{sT2}, s{sGI}, 1")
    a(f"s_lshl_b32 s{sT2}, s{sT2}, 8")
    a(f"s_lshl_b32 s{sT3}, s{sC}, 6")
    a(f"s_add_u32 s{sT2}, s{sT2}, s{sT3}")
    a(f"s_lshl_b32 s{sT3}, s{sTT}, 5")
    a(f"s_add_u32 s{sT2}, s{sT2}, s{sT3}")
    a(f"v_add_u32 v{vO}, s{sT2}, v{vO}")
    vXw, vXr = SB + 3, SB + 4
    a(f"s_lshl_b32 s{sT0}, s{sW}, 11")
    a(f"v_add_u32 v{vXw}, s{sT0}, v{vS}")
    a(f"s_xor_b32 s{sT1}, s{sW}, 4")
    a(f"s_lshl_b32 s{sT1}, s{sT1}, 11")
    a(f"v_add_u32 v{vXr}, s{sT1}, v{vS}")
    a("s_waitcnt vmcnt(0)")
    a("s_barrier")
    stamp(a, 11)
    a(f"s_cmp_eq_u32 s{sPOLLER}, 1")
    a("s_cbranch_scc0 L_nosig2")
    a(f"s_lshl_b32 s{sT0}, s{sTB}, 7")
    a(f"s_add_u32 s{sT0}, s{sT0}, {WS_F}")
    a(f"s_lshl_b32 s{sT1}, s{sGI}, 2")
    a(f"v_mov_b32 v{SB+1}, s{sT1}")
    a(f"v_mov_b32 v{SB+2}, s{sNONCE}")
    a(f"v_cmp_eq_u32 vcc, 0, v{vL}")
    a(f"s_and_saveexec_b64 s[{sT4}:{sT5}], vcc")
    a(f"buffer_store_dword v{SB+2}, v{SB+1}, s[{sWS}:{sWS+3}], s{sT0} offen sc1")
    a(f"s_mov_b64 exec, s[{sT4}:{sT5}]")
    a(f"v_and_b32 v{SB+1}, 7, v{vL}")
    a(f"v_lshlrev_b32 v{SB+1}, 2, v{SB+1}")
    def ld2(): a(f"buffer_load_dword v{SB+2}, v{SB+1}, s[{sWS}:{sWS+3}], s{sT0} offen sc1")
    def cmp2(): a(f"v_cmp_eq_u32 vcc, s{sNONCE}, v{SB+2}")
    poll("L_poll2", ld2, cmp2)
    a.label("L_nosig2")
    a("s_barrier")
    stamp(a, 14)
    def o_dma(q):
        for i in range(2):
            a(f"s_add_u32 m0, s{sM0}, {(8*q+i)*1024}")
            a(f"s_add_u32 s{sT0}, s{sOFF}, {(8*q+i)*1024}")
            a(f"buffer_load_dwordx4 v{vS}, s[{sWS}:{sWS+3}], s{sT0} offen sc1 lds")
    o_dma(0); o_dma(1)
    ACC3 = OA
    BF = CA
    def afr(s): return XFR[s] if s in XFR else WOA + 4 * s
    for q in range(4):
        a(f"s_waitcnt vmcnt({[2, 4, 2, 0][q]})")
        if q == 0:
            pass
        a("s_barrier")
        if q == 0:
            stamp(a, 15)
        for i in range(8):
            a(f"ds_read_b128 {vr(BF+4*i,4)}, v{vB} offset:{(8*q+i)*1024}")
        if q == 0:
            o_dma(2); o_dma(3)
        for i in range(8):
            a(f"s_waitcnt lgkmcnt({7-i})")
            a(f"{MF} {vr(ACC3,16)}, {vr(afr(8*q+i),4)}, {vr(BF+4*i,4)}, {vr(ACC3,16) if (q or i) else '0'}")
    stamp(a, 16)
    a("s_nop 15")
    a(f"s_cmp_eq_u32 s{sTT}, 0")
    a("s_cbranch_scc0 L_x_b1")
    a(f"ds_write_b128 v{vXw}, {vr(ACC3+8,4)} offset:{L_XCH}")
    a(f"ds_write_b128 v{vXw}, {vr(ACC3+12,4)} offset:{L_XCH+1024}")
    a("s_waitcnt lgkmcnt(0)")
    a("s_barrier")
    a(f"ds_read_b128 {vr(CB,4)}, v{vXr} offset:{L_XCH}")
    a(f"ds_read_b128 {vr(CB+4,4)}, v{vXr} offset:{L_XCH+1024}")
    a("s_waitcnt lgkmcnt(0)")
    for i in range(0, 8, 2):
        a(f"v_pk_add_f32 {vr(CB+i,2)}, {vr(CB+i,2)}, {vr(ACC3+i,2)}")
    a("s_branch L_x_j")
    a.label("L_x_b1")
    a(f"ds_write_b128 v{vXw}, {vr(ACC3,4)} offset:{L_XCH}")
    a(f"ds_write_b128 v{vXw}, {vr(ACC3+4,4)} offset:{L_XCH+1024}")
    a("s_waitcnt lgkmcnt(0)")
    a("s_barrier")
    a(f"ds_read_b128 {vr(CB,4)}, v{vXr} offset:{L_XCH}")
    a(f"ds_read_b128 {vr(CB+4,4)}, v{vXr} offset:{L_XCH+1024}")
    a("s_waitcnt lgkmcnt(0)")
    for i in range(0, 8, 2):
        a(f"v_pk_add_f32 {vr(CB+i,2)}, {vr(CB+i,2)}, {vr(ACC3+8+i,2)}")
    a.label("L_x_j")
    R = SA + 4
    for i in range(0, 8, 2):
        a(f"v_cvt_pk_bf16_f32 v{R+i//2}, v{CB+i}, v{CB+i+1}")
    a("s_nop 1")
    a(f"v_permlane32_swap_b32 v{R}, v{R+2}")
    a(f"v_permlane32_swap_b32 v{R+1}, v{R+3}")
    a(f"buffer_store_dwordx4 {vr(R,4)}, v{vO}, s[{sOUT}:{sOUT+3}], 0 offen {'sc1' if 'osc1' in EXPT else ''} {'nt' if 'ont' in EXPT else ''} {'sc0 sc1' if 'osys' in EXPT else ''}")
    if PROF:
        a("s_waitcnt vmcnt(0)")
        stamp(a, 17)
        stamp_rt(a, 31)
        stamp_flush(a, vL, SB + 3)
    a.label("L_end")
    a("s_endpgm")
    return a, kdesc(KNAME, 256)

def build(path):
    ref = open("cdna_kernels/" + NAME + ".s.ref").read().split("\n")
    hdr = [l for l in ref if l.startswith(";") and "@launch" not in l and "Override launch" not in l and "grid=ceil" not in l][:16]
    k, d = gen_fused()
    errs = check(k.lines, "fused")
    for e in errs[:10]: print("HAZARD", e)
    out = "\n".join(hdr) + "\n"
    out += "; @launch grid=(256,1,1) block=(512,1,1) lds=163840\n"
    out += '.amdgcn_target "amdgcn-amd-amdhsa--gfx950"\n.text\n'
    out += k.text()
    out += '.section .rodata,"a"\n.p2align 6\n' + d
    open(path, "w").write(out)
    return len(errs)

if __name__ == "__main__":
    for arg in list(sys.argv):
        if arg.startswith("--x="):
            EXPT.update(arg[4:].split(",")); sys.argv.remove(arg)
    if "--prof" in sys.argv:
        PROF = True; sys.argv.remove("--prof")
    p = sys.argv[1] if len(sys.argv) > 1 else "f4.s"
    n = build(p)
    print("written", p, "hazards:", n)
```

```python
import sys, math, struct
from asmlib import *

NAME = "gated_mix__grouped_kv_mqa__grouped_kv_mqa__prompt"
KNAME = NAME + "_kernel"
WS_KV = 0
WS_G = 256 << 10
WS_F = 512 << 10
WS_KF = WS_F + 8192
WS_O = 1 << 20
WS_SIZE = 16 << 20
WS_PROF = 13 << 20
CQ = 0.25 * math.log2(math.e)
def f2u(f): return struct.unpack("<I", struct.pack("<f", f))[0]
MF = "v_mfma_f32_32x32x16_bf16"
SM = "v_smfmac_f32_32x32x32_bf16"
MF16 = "v_mfma_f32_16x16x32_bf16"
PROF = False
EXPT = set()
def opt(name, default):
    for x in EXPT:
        if x.startswith(name + "="): return int(x[len(name) + 1:])
    return default

L_PART = 16 << 10
L_GW = L_PART
L_WKV = 32 << 10
L_X = 48 << 10
L_KV = 32 << 10
L_SLOT = [0, 112 << 10, 128 << 10, 144 << 10, L_WKV, L_PART, 0, 112 << 10]
L_WOST = 0
L_XCH = 0
L_CNT3 = 7 * 4096 + 3072
L_CNT = L_PART + 4096 + 3072

sX, sWQ, sWKV, sWS, sDBG, sWO, sOUT, sGW = 32, 36, 40, 44, 48, 52, 56, 60
sW, sB, sHG, sTB, sGI, sTT, sC, sTTKV = 64, 65, 66, 67, 68, 69, 70, 71
sVM = 72
sPASS, sROLE, sTYPE, sNONCE = 74, 75, 76, 77
sT0, sT1, sT2, sT3, sT4, sT5 = 78, 79, 80, 81, 82, 83
sM0, sOFF = 84, 85
sTBOFF = 86
sSIG = 87
sPOLLER, sFOK = 92, 93
sPA, sPB = 94, 95
sKVI = 96
sLM = 88

def srd(a, d, base, nbytes):
    a(f"s_mov_b32 s{d}, s{base}")
    a(f"s_and_b32 s{d+1}, s{base+1}, 0xffff")
    a(f"s_mov_b32 s{d+2}, {nbytes}")
    a(f"s_mov_b32 s{d+3}, 0x20000")

def kdesc(name, vgpr, sgpr=100, accum=None):
    if accum is None: accum = (vgpr + 3) // 4 * 4
    return f""".amdhsa_kernel {name}
  .amdhsa_next_free_vgpr {vgpr}
  .amdhsa_next_free_sgpr {sgpr}
  .amdhsa_accum_offset {accum}
  .amdhsa_group_segment_fixed_size 0
  .amdhsa_kernarg_size 112
  .amdhsa_user_sgpr_count 2
  .amdhsa_user_sgpr_kernarg_segment_ptr 1
  .amdhsa_system_sgpr_workgroup_id_x 1
  .amdhsa_float_denorm_mode_32 3
.end_amdhsa_kernel
"""
def header(a, name):
    a.raw(f".globl {name}"); a.raw(".p2align 8"); a.raw(f".type {name},@function"); a.label(name)

VST = 0
def stamp(a, idx):
    if PROF:
        a("s_memtime s[90:91]")
        a("s_waitcnt lgkmcnt(0)")
        a(f"v_writelane_b32 v{VST}, s90, {idx}")
def stamp_rt(a, idx):
    if PROF:
        a("s_memrealtime s[90:91]")
        a("s_waitcnt lgkmcnt(0)")
        a(f"v_writelane_b32 v{VST}, s90, {idx}")
def stamp_flush(a, vL, vtmp0):
    if not PROF: return
    a(f"s_lshl_b32 s{sT0}, s2, 3")
    a(f"s_add_u32 s{sT0}, s{sT0}, s{sW}")
    a(f"s_lshl_b32 s{sT0}, s{sT0}, 7")
    a(f"s_add_u32 s{sT0}, s{sT0}, {WS_PROF}")
    a(f"v_lshlrev_b32 v{vtmp0}, 2, v{vL}")
    a(f"v_cmp_gt_u32 vcc, 32, v{vL}")
    a(f"s_and_saveexec_b64 s[{sT4}:{sT5}], vcc")
    a(f"buffer_store_dword v{VST}, v{vtmp0}, s[{sWS}:{sWS+3}], s{sT0} offen")
    a(f"s_mov_b64 exec, s[{sT4}:{sT5}]")
    a("s_waitcnt vmcnt(0)")

POLL_LIMIT = 0x40000

def gen_fused():
    a = Asm()
    header(a, KNAME)
    vL, vK, vV = 1, 2, 3
    QA, QB = 4, 8
    CA, CB = 12, 28
    SA, SB = 44, 60
    OA, OB = 76, 92
    KB = 108; V0 = 116; V1 = 124
    vK2, vV2, vWO, vWOr = 132, 133, 134, 135
    IDX = 0; NFR = 29; vG = 252
    WOA = 136
    if PROF:
        IDX = 255
    vT0, vT1, vT2, vT3 = 12, 13, 14, 15
    vH = 16; vN15 = 17; vXb = 18; vXt = 19
    vXa = 20
    vAa = 28
    vWq = 34; vE = 35; vGp = 36; vPw = 37
    ACC = 44
    EAC = 60
    AF = 76
    XF = 92
    WF, XFF = 136, 168
    vP0, vP1, vP2, vF = 240, 241, 242, 244
    RD = 200

    a("s_cmp_ge_u32 s2, 256")
    a("s_cbranch_scc1 L_end")
    a("s_load_dwordx8 s[4:11], s[0:1], 0")
    a("s_load_dwordx2 s[12:13], s[0:1], 32")
    a("s_load_dwordx8 s[16:23], s[0:1], 48")
    a("s_load_dwordx8 s[24:31], s[0:1], 80")
    a(f"v_lshrrev_b32 v{vT0}, 6, v0")
    a(f"v_and_b32 v{vL}, 63, v0")
    a(f"v_readfirstlane_b32 s{sW}, v{vT0}")
    if "cpf" in EXPT:
        a("s_lshr_b32 s90, s2, 4")
        a(f"s_xor_b32 s91, s{sW}, 7")
        a("s_or_b32 s90, s90, s91")
        a("s_cmp_eq_u32 s90, 0")
        a("s_cbranch_scc0 L_nocpf")
        a("s_getpc_b64 s[90:91]")
        a.label("L_cpf")
        a(f"v_lshlrev_b32 v{vT1}, 7, v{vL}")
        a(f"s_mov_b32 s{sT0}, L_end-L_cpf")
        for k in range(4):
            a(f"v_min_u32 v{vT2}, s{sT0}, v{vT1}")
            a(f"global_load_dword v{vT3}, v{vT2}, s[90:91]")
            a(f"v_add_u32 v{vT1}, 8192, v{vT1}")
        a.label("L_nocpf")
    if PROF:
        stamp(a, 0); stamp_rt(a, 30)
    a(f"s_lshr_b32 s{sT0}, s2, 3")
    a(f"s_and_b32 s{sGI}, s{sT0}, 7")
    a(f"s_lshr_b32 s{sT0}, s{sT0}, 3")
    a(f"s_and_b32 s{sT1}, s2, 7")
    a(f"s_lshl_b32 s{sT1}, s{sT1}, 2")
    a(f"s_add_u32 s{sTB}, s{sT1}, s{sT0}")
    a(f"s_lshr_b32 s{sB}, s{sGI}, 2")
    a(f"s_and_b32 s{sHG}, s{sGI}, 3")
    a(f"s_lshr_b32 s{sTYPE}, s{sHG}, 1")
    a(f"s_and_b32 s{sTTKV}, s{sHG}, 1")
    a(f"s_lshr_b32 s{sTT}, s{sW}, 2")
    a(f"s_and_b32 s{sC}, s{sW}, 3")
    a(f"s_cmp_eq_u32 s{sTT}, s{sTTKV}")
    a(f"s_cselect_b32 s{sROLE}, 1, 0")
    a(f"s_lshl_b32 s{sTBOFF}, s{sTB}, 16")
    a(f"s_lshl_b32 s{sT0}, s{sTTKV}, 2")
    a(f"s_add_u32 s{sT0}, s{sT0}, 3")
    a(f"s_cmp_eq_u32 s{sW}, s{sT0}")
    a(f"s_cselect_b32 s{sPOLLER}, 1, 0")
    a(f"s_mov_b32 s{sFOK}, 0")
    a(f"s_mov_b32 s{sSIG}, 0")
    a(f"s_mov_b32 s{sVM}, 0x0000ffff")
    a(f"s_mov_b32 s{sVM+1}, 0x0000ffff")
    a(f"s_mov_b32 s{sNONCE}, 0")
    a(f"v_lshlrev_b32 v{vK}, 4, v{vL}")
    a(f"v_lshrrev_b32 v{vH}, 5, v{vL}")
    a(f"v_mov_b32 v{vP0}, 0")
    a(f"v_mov_b32 v{vP2}, 0")
    a(f"s_mov_b32 s{sPA}, 0")
    a(f"s_mov_b32 s{sPB}, 0")
    a(f"v_and_b32 v{vT0}, 31, v{vL}")
    a(f"s_lshl_b32 s{sT0}, s{sTT}, 5")
    a(f"v_add_u32 v{vXb}, s{sT0}, v{vT0}")
    a(f"v_lshlrev_b32 v{vXb}, 10, v{vXb}")
    a(f"v_add_u32 v{vXb}, {L_X}, v{vXb}")
    a(f"v_and_b32 v{vN15}, 15, v{vL}")
    a(f"v_xor_b32 v{vXt}, v{vH}, v{vN15}")
    a(f"v_lshlrev_b32 v{vXt}, 4, v{vXt}")
    a("s_waitcnt lgkmcnt(0)")
    a(f"s_cmp_eq_u32 s{sB}, 0")
    a("s_cselect_b32 s6, s6, s16")
    a("s_cselect_b32 s7, s7, s17")
    a("s_cselect_b32 s8, s8, s18")
    a("s_cselect_b32 s9, s9, s19")
    a("s_cselect_b32 s10, s10, s20")
    a("s_cselect_b32 s11, s11, s21")
    a(f"s_cmp_eq_u32 s{sTYPE}, 0")
    a("s_cselect_b32 s8, s8, s10")
    a("s_cselect_b32 s9, s9, s11")
    srd(a, sX, 4, 2048 * 1024)
    srd(a, sWKV, 8, 16384)
    srd(a, sDBG, 28, 256)
    a(f"s_xor_b32 s{sT0}, s{sW}, 3")
    a(f"s_or_b32 s{sT0}, s2, s{sT0}")
    a(f"s_cmp_eq_u32 s{sT0}, 0")
    a("s_cbranch_scc0 L_nononce")
    a("s_memrealtime s[90:91]")
    a("s_waitcnt lgkmcnt(0)")
    a("s_or_b32 s90, s90, 1")
    a(f"v_mov_b32 v{vT1}, s90")
    a(f"v_mov_b32 v{vT3}, 128")
    a(f"buffer_store_dword v{vT1}, v{vT3}, s[{sDBG}:{sDBG+3}], 0 offen sc1")
    a.label("L_nononce")
    def xrow_dma(rowexpr, vt):
        rowexpr()
        a(f"s_and_b32 s{sT1}, s{sT0}, 15")
        a(f"v_xor_b32 v{vt}, s{sT1}, v{vL}")
        a(f"v_lshlrev_b32 v{vt}, 4, v{vt}")
        a(f"s_lshl_b32 s{sT1}, s{sT0}, 10")
        a(f"s_add_u32 m0, s{sT1}, {L_X}")
        a(f"s_add_u32 s{sT1}, s{sT1}, s{sTBOFF}")
        a(f"buffer_load_dwordx4 v{vt}, s[{sX}:{sX+3}], s{sT1} offen lds")
    a(f"s_lshl_b32 s{sT2}, s{sTTKV}, 5")
    a(f"s_add_u32 s{sT2}, s{sT2}, s{sW}")
    for i in range(4):
        xrow_dma(lambda: a(f"s_add_u32 s{sT0}, s{sT2}, {8*i}"), vT1)
    a(f"s_lshl_b32 s{sT1}, s{sW}, 11")
    a(f"s_add_u32 m0, s{sT1}, {L_WKV}")
    a(f"s_add_u32 s{sT3}, s{sT1}, 1024")
    a(f"buffer_load_dwordx4 v{vK}, s[{sWKV}:{sWKV+3}], s{sT1} offen lds")
    a(f"s_add_u32 m0, s{sT3}, {L_WKV}")
    srd(a, sGW, 24, 1024)
    a(f"buffer_load_dwordx4 v{vK}, s[{sWKV}:{sWKV+3}], s{sT3} offen lds")
    stamp(a, 1)
    srd(a, sWS, 30, WS_SIZE)
    def qaddr_setup():
        for sp in range(8):
            a(f"s_mov_b32 s{sT0}, {32*sp}")
            a(f"v_xad_u32 v{vXa+sp}, v{vXt}, s{sT0}, v{vXb}")
        a(f"v_lshrrev_b32 v{vT0}, 4, v{vL}")
        a(f"v_lshrrev_b32 v{vT3}, 2, v{vN15}")
        a(f"v_lshl_add_u32 v{vAa}, v{vH}, 3, v{vT3}")
        a(f"v_lshlrev_b32 v{vAa}, 8, v{vAa}")
        a(f"v_and_b32 v{vAa+1}, 1, v{vT0}")
        a(f"v_lshlrev_b32 v{vAa+1}, 1, v{vAa+1}")
        a(f"v_bfe_u32 v{vAa+2}, v{vN15}, 1, 1")
        a(f"v_add_u32 v{vAa+1}, v{vAa+1}, v{vAa+2}")
        a(f"s_lshl_b32 s{sT1}, s{sC}, 2")
        a(f"v_add_u32 v{vAa+1}, s{sT1}, v{vAa+1}")
        a(f"v_lshlrev_b32 v{vT3}, 2, v{vT3}")
        a(f"v_xor_b32 v{vAa+1}, v{vAa+1}, v{vT3}")
        a(f"v_lshl_add_u32 v{vAa}, v{vAa+1}, 4, v{vAa}")
        a(f"v_and_b32 v{vAa+2}, 1, v{vN15}")
        a(f"v_lshl_add_u32 v{vAa}, v{vAa+2}, 3, v{vAa}")
        for k in range(5, 0, -1):
            a(f"v_add_u32 v{vAa+k}, {L_SLOT[k]}, v{vAa}")
    def late_srds():
        a(f"s_cmp_eq_u32 s{sTT}, 0")
        a("s_cselect_b32 s12, s12, s22")
        a("s_cselect_b32 s13, s13, s23")
        srd(a, sOUT, 26, 2048 * 1024)
        srd(a, sWO, 12, 512 * 1024)
    a(f"s_cmp_eq_u32 s{sROLE}, 1")
    a("s_cbranch_scc0 L_wrole")
    if "kvprio" in EXPT: a("s_setprio 3")
    a(f"s_mov_b32 m0, {L_GW}")
    a(f"v_lshrrev_b32 v{vT0}, 4, v{vL}")
    a(f"buffer_load_dwordx4 v{vK}, s[{sGW}:{sGW+3}], 0 offen lds")
    vXk = vXa
    WF16, XF16 = 128, 192
    KAC = EAC
    a(f"s_and_b32 s{sT2}, s{sC}, 1")
    a(f"s_lshl_b32 s{sT0}, s{sTTKV}, 5")
    a(f"s_lshl_b32 s{sT1}, s{sT2}, 4")
    a(f"s_add_u32 s{sT0}, s{sT0}, s{sT1}")
    a(f"v_add_u32 v{vT2}, s{sT0}, v{vN15}")
    a(f"v_lshlrev_b32 v{vT2}, 10, v{vT2}")
    a(f"v_add_u32 v{vT2}, {L_X}, v{vT2}")
    a(f"v_xor_b32 v{vT3}, v{vT0}, v{vN15}")
    a(f"v_lshlrev_b32 v{vT3}, 4, v{vT3}")
    for sp in range(4):
        a(f"s_mov_b32 s{sT0}, {64*sp}")
        a(f"v_xad_u32 v{vXk+sp}, v{vT3}, s{sT0}, v{vT2}")
    a(f"v_lshrrev_b32 v{vE}, 2, v{vN15}")
    a(f"v_lshl_add_u32 v{vE}, v{vT0}, 3, v{vE}")
    a(f"v_lshlrev_b32 v{vE}, 5, v{vE}")
    a(f"v_and_b32 v{vT3}, 3, v{vN15}")
    a(f"v_lshl_add_u32 v{vE}, v{vT3}, 3, v{vE}")
    a(f"v_add_u32 v{vE}, {L_WKV}, v{vE}")
    a(f"v_lshlrev_b32 v{vGp}, 4, v{vT0}")
    a(f"v_add_u32 v{vGp}, {L_GW}, v{vGp}")
    a(f"v_and_b32 v{vT2}, 1, v{vT0}")
    a(f"v_lshrrev_b32 v{vT3}, 1, v{vT0}")
    a(f"s_cmp_eq_u32 s{sTYPE}, 0")
    a("s_cbranch_scc0 L_sa_v")
    a(f"v_and_b32 v{vPw}, 3, v{vN15}")
    a(f"v_and_b32 v{vT1}, 4, v{vN15}")
    a(f"v_lshl_add_u32 v{vPw}, v{vT1}, 1, v{vPw}")
    a(f"v_and_b32 v{vT1}, 8, v{vN15}")
    a(f"v_lshrrev_b32 v{vT1}, 1, v{vT1}")
    a(f"v_add_u32 v{vPw}, v{vPw}, v{vT1}")
    a(f"v_lshl_add_u32 v{vPw}, v{vT2}, 5, v{vPw}")
    a(f"s_lshl_b32 s{sT1}, s{sT2}, 4")
    a(f"v_add_u32 v{vPw}, s{sT1}, v{vPw}")
    a(f"v_lshlrev_b32 v{vPw}, 4, v{vPw}")
    a("s_branch L_sa_j")
    a.label("L_sa_v")
    a(f"v_lshl_add_u32 v{vPw}, v{vT2}, 4, v{vN15}")
    a(f"v_lshlrev_b32 v{vPw}, 4, v{vPw}")
    a(f"s_lshl_b32 s{sT1}, s{sT2}, 9")
    a(f"s_add_u32 s{sT1}, s{sT1}, 1024")
    a(f"v_add_u32 v{vPw}, s{sT1}, v{vPw}")
    a.label("L_sa_j")
    a(f"v_lshl_add_u32 v{vPw}, v{vT3}, 3, v{vPw}")
    a(f"s_lshl_b32 s{sT0}, s{sTB}, 1")
    a(f"s_add_u32 s{sT0}, s{sT0}, s{sTTKV}")
    a(f"s_lshl_b32 s{sOFF}, s{sT0}, 11")
    a(f"s_lshl_b32 s{sT3}, s{sB}, 17")
    a(f"s_add_u32 s{sOFF}, s{sOFF}, s{sT3}")
    if WS_KV: a(f"s_add_u32 s{sOFF}, s{sOFF}, {WS_KV}")
    a(f"s_lshl_b32 s{sM0}, s{sT0}, 7")
    a(f"s_add_u32 s{sM0}, s{sM0}, {WS_G}")
    vNon = 38
    a(f"v_mov_b32 v{vT3}, 128")
    a(f"buffer_load_dword v{vNon}, v{vT3}, s[{sDBG}:{sDBG+3}], 0 offen sc1")
    stamp(a, 2)
    a("s_waitcnt vmcnt(0)")
    a("s_barrier")
    stamp(a, 3)
    a(f"s_cmp_ge_u32 s{sC}, 2")
    a("s_cbranch_scc1 L_kv_gate")
    def kvreads(sx):
        a(f"ds_read_b64_tr_b16 {vr(WF16+4*sx,2)}, v{vE} offset:{sx*1024}")
        a(f"ds_read_b64_tr_b16 {vr(WF16+4*sx+2,2)}, v{vE} offset:{sx*1024+128}")
        a(f"ds_read_b128 {vr(XF16+4*sx,4)}, v{vXk+(sx%4)} offset:{(sx//4)*256}")
    D = 5
    for kind in ("k", "v"):
        if kind == "k":
            a(f"s_cmp_eq_u32 s{sTYPE}, 0")
            a("s_cbranch_scc0 L_kv_v")
        else:
            a.label("L_kv_v")
        for sx in range(D): kvreads(sx)
        for sx in range(16):
            rem = min(D - 1, 15 - sx)
            a(f"s_waitcnt lgkmcnt({3*rem})")
            c = vr(KAC, 4) if sx else "0"
            if kind == "k":
                a(f"{MF16} {vr(KAC,4)}, {vr(WF16+4*sx,4)}, {vr(XF16+4*sx,4)}, {c}")
            else:
                a(f"{MF16} {vr(KAC,4)}, {vr(XF16+4*sx,4)}, {vr(WF16+4*sx,4)}, {c}")
            if sx + D < 16: kvreads(sx + D)
        if kind == "k": a("s_branch L_kv_st")
    a.label("L_kv_st")
    a("s_nop 7")
    a(f"v_cvt_pk_bf16_f32 v{KAC+4}, v{KAC}, v{KAC+1}")
    a(f"v_cvt_pk_bf16_f32 v{KAC+5}, v{KAC+2}, v{KAC+3}")
    a(f"buffer_store_dwordx2 {vr(KAC+4,2)}, v{vPw}, s[{sWS}:{sWS+3}], s{sOFF} offen sc1")
    stamp(a, 12)
    a("s_branch L_kv_sig")
    a.label("L_kv_gate")
    a(f"s_or_b32 s{sT0}, s{sTYPE}, s{sB}")
    a(f"s_xor_b32 s{sT1}, s{sC}, 2")
    a(f"s_or_b32 s{sT0}, s{sT0}, s{sT1}")
    a(f"s_cmp_eq_u32 s{sT0}, 0")
    a("s_cbranch_scc0 L_kv_idle")
    for sp in range(4):
        a(f"v_add_u32 v{vXk+4+sp}, 16384, v{vXk+sp}")
    def greads(sx):
        a(f"ds_read_b128 {vr(WF16+4*(sx%8),4)}, v{vGp} offset:{sx*64}")
        a(f"ds_read_b128 {vr(XF16+8*(sx%8),4)}, v{vXk+(sx%4)} offset:{(sx//4)*256}")
        a(f"ds_read_b128 {vr(XF16+8*(sx%8)+4,4)}, v{vXk+4+(sx%4)} offset:{(sx//4)*256}")
    for sx in range(D): greads(sx)
    for sx in range(16):
        rem = min(D - 1, 15 - sx)
        a(f"s_waitcnt lgkmcnt({3*rem})")
        a(f"{MF16} {vr(KAC,4)}, {vr(WF16+4*(sx%8),4)}, {vr(XF16+8*(sx%8),4)}, {vr(KAC,4) if sx else '0'}")
        a(f"{MF16} {vr(KAC+4,4)}, {vr(WF16+4*(sx%8),4)}, {vr(XF16+8*(sx%8)+4,4)}, {vr(KAC+4,4) if sx else '0'}")
        if sx + D < 16: greads(sx + D)
    a(f"v_and_b32 v{vT1}, 16, v{vL}")
    a(f"v_cmp_eq_u32 vcc, 0, v{vT1}")
    a("s_nop 6")
    a(f"v_cndmask_b32 v{KAC+8}, v{KAC+4}, v{KAC}, vcc")
    a(f"v_cvt_pk_bf16_f32 v{KAC+8}, v{KAC+8}, v{KAC+8}")
    a(f"v_lshlrev_b32 v{KAC+8}, 16, v{KAC+8}")
    a(f"s_mov_b32 s{sT2}, {hex(f2u(-math.log2(math.e)))}")
    a(f"v_mul_f32 v{KAC+8}, s{sT2}, v{KAC+8}")
    a(f"v_exp_f32 v{KAC+8}, v{KAC+8}")
    a("s_nop 0")
    a(f"v_add_f32 v{KAC+8}, 1.0, v{KAC+8}")
    a(f"v_rcp_f32 v{KAC+8}, v{KAC+8}")
    a("s_nop 0")
    a(f"v_cvt_pk_bf16_f32 v{KAC+8}, v{KAC+8}, v{KAC+8}")
    a(f"v_lshlrev_b32 v{KAC+8}, 16, v{KAC+8}")
    a(f"v_lshlrev_b32 v{KAC+9}, 2, v{vL}")
    a(f"v_cmp_gt_u32 vcc, 32, v{vL}")
    a(f"s_and_saveexec_b64 s[{sT4}:{sT5}], vcc")
    a(f"buffer_store_dword v{KAC+8}, v{KAC+9}, s[{sWS}:{sWS+3}], s{sM0} offen sc1")
    a(f"s_mov_b64 exec, s[{sT4}:{sT5}]")
    a.label("L_kv_sig")
    qaddr_setup()
    late_srds()
    a(f"v_lshl_add_u32 v{vV}, v{vH}, 4, v{vN15}")
    a(f"v_lshlrev_b32 v{vV}, 4, v{vV}")
    a(f"s_mov_b32 s{sSIG}, 1")
    a("s_branch L_sigcode")
    a.label("L_kv_idle")
    if "notlb" not in EXPT:
        a(f"s_lshl_b32 s{sT0}, s{sTB}, 16")
        a(f"v_mov_b32 v{vP1}, s{sT0}")
        a(f"global_load_dword v{vF}, v{vP1}, s[26:27]")
        a(f"s_lshl_b32 s{sT0}, s{sTB}, 17")
        a(f"s_add_u32 s{sT0}, s{sT0}, {WS_O}")
        a(f"v_mov_b32 v{vP1}, s{sT0}")
        a(f"global_load_dword v{vF+1}, v{vP1}, s[30:31]")
        a(f"s_lshr_b32 s{sT0}, s{sGI}, 1")
        a(f"s_lshl_b32 s{sT0}, s{sT0}, 8")
        a(f"v_mov_b32 v{vP1}, s{sT0}")
        a(f"global_load_dword v{vF+2}, v{vP1}, s[12:13]")
        a(f"global_load_dword v{vF+3}, v{vP1}, s[22:23]")
    qaddr_setup()
    late_srds()
    a(f"v_lshl_add_u32 v{vV}, v{vH}, 4, v{vN15}")
    a(f"v_lshlrev_b32 v{vV}, 4, v{vV}")
    a(f"v_lshrrev_b32 v{vP0}, 1, v{vL}")
    a(f"v_lshlrev_b32 v{vP0}, 7, v{vP0}")
    a(f"v_and_b32 v{vP2}, 1, v{vL}")
    a(f"v_lshl_add_u32 v{vP0}, v{vP2}, 4, v{vP0}")
    a(f"v_lshlrev_b32 v{vP2}, 2, v{vP2}")
    a(f"s_lshl_b32 s{sPA}, s{sB}, 12")
    a(f"s_add_u32 s{sPA}, s{sPA}, {WS_KF}")
    a(f"s_lshl_b32 s{sPB}, s{sTB}, 7")
    a(f"s_add_u32 s{sPB}, s{sPB}, {WS_KF + 8192}")
    a(f"v_readfirstlane_b32 s{sNONCE}, v{vNon}")
    a("s_branch L_b1")
    def signal_kv():
        a(f"s_cmp_eq_u32 s{sSIG}, 1")
        a("s_cbranch_scc0 L_nosig")
        a(f"v_readfirstlane_b32 s{sNONCE}, v{vNon}")
        a(f"s_mov_b32 s{sT1}, 0")
        a.label("L_nwait")
        a(f"s_cmp_lg_u32 s{sNONCE}, 0")
        a("s_cbranch_scc1 L_nok")
        a(f"v_mov_b32 v{vT3}, 128")
        a(f"buffer_load_dword v{vNon}, v{vT3}, s[{sDBG}:{sDBG+3}], 0 offen sc1")
        a("s_waitcnt vmcnt(0)")
        a(f"v_readfirstlane_b32 s{sNONCE}, v{vNon}")
        a(f"s_add_u32 s{sT1}, s{sT1}, 1")
        a(f"s_cmp_lt_u32 s{sT1}, {POLL_LIMIT}")
        a("s_cbranch_scc1 L_nwait")
        a.label("L_nok")
        a(f"s_cmp_eq_u32 s{sC}, 2")
        a("s_cbranch_scc1 L_fa_gate")
        a(f"s_lshl_b32 s{sT0}, s{sB}, 5")
        a(f"s_add_u32 s{sT0}, s{sT0}, s{sTB}")
        a(f"s_lshl_b32 s{sT0}, s{sT0}, 7")
        a(f"s_lshl_b32 s{sT1}, s{sTTKV}, 2")
        a(f"s_lshl_b32 s{sT2}, s{sTYPE}, 1")
        a(f"s_add_u32 s{sT1}, s{sT1}, s{sT2}")
        a(f"s_add_u32 s{sT1}, s{sT1}, s{sC}")
        a(f"s_lshl_b32 s{sT1}, s{sT1}, 2")
        a(f"s_add_u32 s{sT0}, s{sT0}, s{sT1}")
        a(f"s_add_u32 s{sT0}, s{sT0}, {WS_KF}")
        a("s_branch L_fa_j")
        a.label("L_fa_gate")
        a(f"s_lshl_b32 s{sT0}, s{sTB}, 7")
        a(f"s_lshl_b32 s{sT1}, s{sTTKV}, 2")
        a(f"s_add_u32 s{sT0}, s{sT0}, s{sT1}")
        a(f"s_add_u32 s{sT0}, s{sT0}, {WS_KF + 8192}")
        a.label("L_fa_j")
        a(f"v_mov_b32 v{RD}, 0")
        a(f"v_mov_b32 v{RD+1}, s{sNONCE}")
        a("s_waitcnt vmcnt(0)")
        a(f"v_cmp_eq_u32 vcc, 0, v{vL}")
        a(f"s_and_saveexec_b64 s[{sT4}:{sT5}], vcc")
        a(f"buffer_store_dword v{RD+1}, v{RD}, s[{sWS}:{sWS+3}], s{sT0} offen sc1")
        a(f"s_mov_b64 exec, s[{sT4}:{sT5}]")
        stamp(a, 13)
        a.label("L_nosig")
    a.label("L_sigcode")
    signal_kv()
    a("s_branch L_b1")
    a.label("L_wrole")
    a(f"v_lshrrev_b32 v{vT0}, 4, v{vL}")
    a(f"v_lshlrev_b32 v{vWq}, 2, v{vT0}")
    a(f"v_xor_b32 v{vWq}, v{vWq}, v{vN15}")
    a(f"v_lshlrev_b32 v{vWq}, 4, v{vWq}")
    a(f"v_lshl_add_u32 v{vWq}, v{vT0}, 10, v{vWq}")
    a(f"s_lshl_b32 s{sT1}, s{sHG}, 8")
    a(f"v_add_u32 v{vWq}, s{sT1}, v{vWq}")
    srd(a, sWQ, 6, 512 * 1024)
    def wq_chunk(c):
        slot = L_SLOT[c]
        for i in range(4):
            a(f"s_lshl_b32 s{sT1}, s{sC}, 12")
            a(f"s_add_u32 m0, s{sT1}, {slot + i*1024}")
            a(f"s_lshl_b32 s{sT1}, s{sC}, 14")
            a(f"s_add_u32 s{sT1}, s{sT1}, {(64*c + 4*i)*1024}")
            a(f"buffer_load_dwordx4 v{vWq}, s[{sWQ}:{sWQ+3}], s{sT1} offen lds")
    def other_rows():
        a(f"s_xor_b32 s{sT2}, s{sTTKV}, 1")
        a(f"s_lshl_b32 s{sT2}, s{sT2}, 5")
        a(f"s_add_u32 s{sT2}, s{sT2}, s{sC}")
        for i in range(8):
            xrow_dma(lambda: a(f"s_add_u32 s{sT0}, s{sT2}, {4*i}"), vT1)
    EARLY = opt("early", 0)
    nbefore = 0
    if EARLY >= 1: other_rows(); nbefore += 8
    if EARLY >= 2: wq_chunk(0); nbefore += 4
    qaddr_setup()
    late_srds()
    a(f"v_lshl_add_u32 v{vV}, v{vH}, 4, v{vN15}")
    a(f"v_lshlrev_b32 v{vV}, 4, v{vV}")
    stamp(a, 2)
    a(f"s_waitcnt vmcnt({nbefore})")
    a("s_barrier")
    stamp(a, 3)
    if "wdelay" in EXPT:
        a(f"v_mov_b32 v{vT0}, {L_CNT}")
        a.label("L_wspin")
        a(f"ds_read_b32 v{vT1}, v{vT0}")
        a("s_waitcnt lgkmcnt(0)")
        a(f"v_readfirstlane_b32 s{sT0}, v{vT1}")
        a(f"s_cmp_ge_u32 s{sT0}, {opt('wd', 4)}")
        a("s_cbranch_scc0 L_wspin")
    if EARLY < 1: other_rows()
    if EARLY < 2: wq_chunk(0)
    for c in range(1, 4): wq_chunk(c)
    stamp(a, 4)
    a("s_waitcnt vmcnt(8)")
    a.label("L_b1")
    if "kvprio" in EXPT: a("s_setprio 0")
    a("s_barrier")
    stamp(a, 5)
    def qreads(s):
        c, sp4 = s // 4, s % 4
        buf = s % 4
        va = vAa + [0, 1, 2, 3, 4, 5, 0, 1][c]
        a(f"ds_read_b64_tr_b16 {vr(AF+4*buf,2)}, v{va} offset:{sp4*4096}")
        a(f"ds_read_b64_tr_b16 {vr(AF+4*buf+2,2)}, v{va} offset:{sp4*4096+1024}")
        a(f"ds_read_b128 {vr(XF+4*buf,4)}, v{vXa + (s % 8)} offset:{(s//8)*256}")
    def qmf(s):
        buf = s % 4
        a(f"{MF} {vr(ACC,16)}, {vr(AF+4*buf,4)}, {vr(XF+4*buf,4)}, {vr(ACC,16) if s else '0'}")
    def flag_loads():
        a(f"buffer_load_dwordx4 {vr(vF,4)}, v{vP0}, s[{sWS}:{sWS+3}], s{sPA} offen sc1")
        a(f"buffer_load_dword v{vF+4}, v{vP2}, s[{sWS}:{sWS+3}], s{sPB} offen sc1")
    def flag_cmp():
        a(f"v_cmp_eq_u32 vcc, s{sNONCE}, v{vF}")
        for k in range(1, 5):
            a(f"v_cmp_eq_u32 s[{sT2}:{sT3}], s{sNONCE}, v{vF+k}")
            a(f"s_and_b64 vcc, vcc, s[{sT2}:{sT3}]")
    def first_kv():
        a(f"s_lshl_b32 s{sOFF}, s{sB}, 17")
        if WS_KV: a(f"s_add_u32 s{sOFF}, s{sOFF}, {WS_KV}")
        a(f"s_mov_b32 s{sM0}, {L_KV}")
        for i in range(8):
            a(f"s_mov_b32 m0, s{sM0}")
            a(f"s_add_u32 s{sM0}, s{sM0}, 1024")
            a(f"buffer_load_dwordx4 v{vK}, s[{sWS}:{sWS+3}], s{sOFF} offen sc1 lds")
            a(f"s_add_u32 s{sOFF}, s{sOFF}, 1024")
        a(f"s_mov_b32 s{sFOK}, 2")
    def poller_step(p, check, can_first):
        lab = f"L_ps{p}"
        a(f"s_cmp_eq_u32 s{sPOLLER}, 1")
        a(f"s_cbranch_scc0 {lab}")
        a(f"s_cmp_lg_u32 s{sFOK}, 0")
        a(f"s_cbranch_scc1 {lab}_fok")
        if check:
            a("s_waitcnt vmcnt(0)")
            a(f"s_cmp_eq_u32 s{sNONCE}, 0")
            a(f"s_cbranch_scc1 {lab}_re")
            flag_cmp()
            a("s_cmp_eq_u64 vcc, exec")
            a(f"s_cbranch_scc0 {lab}_re")
            a(f"s_mov_b32 s{sFOK}, 1")
            a(f"s_branch {lab}_fok")
            a.label(f"{lab}_re")
            a(f"s_cmp_lg_u32 s{sNONCE}, 0")
            a(f"s_cbranch_scc1 {lab}_ld")
            a(f"v_readfirstlane_b32 s{sNONCE}, v{vNon}")
            a.label(f"{lab}_ld")
        a(f"v_mov_b32 v{vP1}, 128")
        a(f"buffer_load_dword v{vNon}, v{vP1}, s[{sDBG}:{sDBG+3}], 0 offen sc1")
        flag_loads()
        a(f"s_branch {lab}")
        a.label(f"{lab}_fok")
        if can_first:
            a(f"s_cmp_eq_u32 s{sFOK}, 1")
            a(f"s_cbranch_scc0 {lab}")
            first_kv()
        a.label(lab)
    for s_ in range(4): qreads(s_)
    a(f"s_cmp_eq_u32 s{sROLE}, 1")
    a("s_cbranch_scc1 L_c5_skip")
    wq_chunk(4)
    wq_chunk(5)
    a.label("L_c5_skip")
    for p in range(4):
        for j in range(8):
            s_ = 8 * p + j
            if j < 7:
                nxt = min(3, 7 - j)
                a(f"s_waitcnt lgkmcnt({3*nxt})")
                qmf(s_)
                if j + 4 < 8: qreads(s_ + 4)
            else:
                a("s_waitcnt lgkmcnt(0)")
                if p < 3:
                    lab = f"L_q{p}"
                    a(f"s_cmp_eq_u32 s{sROLE}, 1")
                    a(f"s_cbranch_scc1 {lab}_kv")
                    a(f"s_waitcnt vmcnt({[8, 8, 0][p]})")
                    a("s_barrier")
                    if p == 0:
                        wq_chunk(6); wq_chunk(7)
                    a(f"s_branch {lab}_j")
                    a.label(f"{lab}_kv")
                    a("s_barrier")
                    a.label(f"{lab}_j")
                    for k in range(3): qreads(8 * (p + 1) + k)
                    qmf(s_)
                    qreads(8 * (p + 1) + 3)
                    poller_step(p, check=(p > 0), can_first=(p == 2))
                    if p == 2:
                        a(f"s_cmp_eq_u32 s{sW}, 0")
                        a("s_cbranch_scc0 L_nocz")
                        a(f"v_mov_b32 v{RD}, 0")
                        a(f"ds_write_b32 v{RD}, v{RD} offset:{L_CNT3}")
                        a.label("L_nocz")
                    if "st3" in EXPT: stamp(a, 18 + p)
                else:
                    qmf(s_)
    stamp(a, 6)
    def poll(label, load, cmpcode):
        a(f"s_mov_b32 s{sT1}, 0")
        a.label(label)
        load()
        a("s_waitcnt vmcnt(0)")
        cmpcode()
        a("s_cmp_eq_u64 vcc, exec")
        a(f"s_cbranch_scc1 {label}_done")
        a(f"s_add_u32 s{sT1}, s{sT1}, 1")
        a(f"s_cmp_lt_u32 s{sT1}, {POLL_LIMIT}")
        a(f"s_cbranch_scc0 {label}_done")
        a("s_sleep 1")
        a(f"s_branch {label}")
        a.label(f"{label}_done")
    a(f"s_mov_b32 s{sT0}, {hex(f2u(CQ))}")
    a(f"v_add_u32 v{vV}, {L_KV+1024}, v{vV}")
    a(f"v_and_b32 v{vT0}, 27, v{vL}")
    a(f"v_cmp_eq_u32 vcc, 16, v{vT0}")
    a(f"v_mov_b32 v{vT1}, 0x3f803f80")
    a(f"v_add_u32 v{vV2}, 0x10000, v{vV}")
    for i in range(16):
        a(f"v_cndmask_b32 v{V0+i}, 0, v{vT1}, vcc")
    a(f"s_mov_b32 s{sT1}, s{sT0}")
    for i in range(0, 16, 2):
        a(f"v_pk_mul_f32 {vr(ACC+i,2)}, {vr(ACC+i,2)}, s[{sT0}:{sT1}]")
    for j in range(4):
        a(f"v_cvt_pk_bf16_f32 v{QA+j}, v{ACC+2*j}, v{ACC+2*j+1}")
        a(f"v_cvt_pk_bf16_f32 v{QB+j}, v{ACC+8+2*j}, v{ACC+8+2*j+1}")
    a(f"s_cmp_eq_u32 s{sPOLLER}, 1")
    a("s_cbranch_scc0 L_nopoll")
    a(f"s_cmp_eq_u32 s{sFOK}, 2")
    a("s_cbranch_scc1 L_nopoll")
    a(f"s_cmp_eq_u32 s{sFOK}, 1")
    a("s_cbranch_scc1 L_dofirst")
    a("s_waitcnt vmcnt(0)")
    a(f"s_cmp_lg_u32 s{sNONCE}, 0")
    a("s_cbranch_scc0 L_getnonce")
    flag_cmp()
    a("s_cmp_eq_u64 vcc, exec")
    a("s_cbranch_scc1 L_dofirst")
    a("s_branch L_havenonce")
    a.label("L_getnonce")
    a(f"v_readfirstlane_b32 s{sNONCE}, v{vNon}")
    a(f"v_mov_b32 v{vP1}, 128")
    def ldn(): a(f"buffer_load_dword v{vNon}, v{vP1}, s[{sDBG}:{sDBG+3}], 0 offen sc1")
    def cmpn(): a(f"v_cmp_ne_u32 vcc, 0, v{vNon}")
    a(f"s_cmp_lg_u32 s{sNONCE}, 0")
    a("s_cbranch_scc1 L_havenonce")
    poll("L_polln", ldn, cmpn)
    a(f"v_readfirstlane_b32 s{sNONCE}, v{vNon}")
    a.label("L_havenonce")
    poll("L_poll", flag_loads, flag_cmp)
    a.label("L_dofirst")
    first_kv()
    a.label("L_nopoll")
    for i in range(0, 16, 2):
        a(f"v_pk_mov_b32 {vr(OA+i,2)}, 0, 0")
        a(f"v_pk_mov_b32 {vr(OB+i,2)}, 0, 0")
    a(f"v_lshrrev_b32 v{vT0}, 2, v{vL}")
    a(f"v_and_b32 v{vT1}, 3, v{vL}")
    a(f"v_lshlrev_b32 v{vT1}, 4, v{vT1}")
    a(f"v_lshl_add_u32 v{vWO}, v{vT0}, 10, v{vT1}")
    a(f"s_lshr_b32 s{sT0}, s{sGI}, 1")
    a(f"s_lshl_b32 s{sT0}, s{sT0}, 8")
    a(f"s_lshl_b32 s{sT1}, s{sC}, 6")
    a(f"s_add_u32 s{sT0}, s{sT0}, s{sT1}")
    a(f"v_add_u32 v{vWO}, s{sT0}, v{vWO}")
    a(f"v_lshrrev_b32 v{vT1}, 2, v{vN15}")
    a(f"v_lshl_add_u32 v{vT1}, v{vH}, 2, v{vT1}")
    a(f"v_lshlrev_b32 v{vWOr}, 6, v{vT1}")
    a(f"v_bfe_u32 v{vT1}, v{vL}, 4, 1")
    a(f"v_lshl_add_u32 v{vWOr}, v{vT1}, 5, v{vWOr}")
    a(f"v_and_b32 v{vT0}, 3, v{vN15}")
    a(f"v_lshl_add_u32 v{vWOr}, v{vT0}, 3, v{vWOr}")
    a(f"s_lshl_b32 s{sT0}, s{sW}, 12")
    a(f"v_add_u32 v{vWOr}, s{sT0}, v{vWOr}")
    a(f"v_mov_b32 v{IDX}, 0xdddddddd")
    a(f"s_lshl_b32 s{sOFF}, s{sB}, 17")
    a(f"s_add_u32 s{sOFF}, s{sOFF}, {WS_KV + 8192}")
    a(f"s_lshl_b32 s{sM0}, s{sC}, 11")
    a(f"s_add_u32 s{sOFF}, s{sOFF}, s{sM0}")
    a(f"s_add_u32 s{sM0}, s{sM0}, {L_KV + 8192}")
    vKd = 253
    a(f"v_mov_b32 v{vKd}, v{vK}")
    a(f"v_add_u32 v{vK}, {L_KV}, v{vK}")
    a(f"v_add_u32 v{vK2}, 0x10000, v{vK}")
    a(f"s_mov_b32 s{sPASS}, 1")
    a(f"s_lshr_b32 s{sKVI}, s{sW}, 2")
    a(f"v_and_b32 v{vG}, 31, v{vL}")
    a(f"v_lshlrev_b32 v{vG}, 2, v{vG}")
    a(f"s_lshl_b32 s{sT2}, s{sTB}, 1")
    a(f"s_add_u32 s{sT2}, s{sT2}, s{sTT}")
    a(f"s_lshl_b32 s{sT2}, s{sT2}, 7")
    a(f"s_add_u32 s{sT2}, s{sT2}, {WS_G}")
    a("s_waitcnt vmcnt(0)")
    a("s_barrier")
    stamp(a, 7)
    def kv_step():
        a(f"s_mov_b32 m0, s{sM0}")
        a(f"s_add_u32 s{sT0}, s{sOFF}, 1024")
        a(f"buffer_load_dwordx4 v{vKd}, s[{sWS}:{sWS+3}], s{sOFF} offen sc1 lds")
        a(f"s_add_u32 m0, s{sM0}, 1024")
        a(f"s_add_u32 s{sM0}, s{sM0}, 8192")
        a(f"buffer_load_dwordx4 v{vKd}, s[{sWS}:{sWS+3}], s{sT0} offen sc1 lds")
        a(f"s_add_u32 s{sOFF}, s{sOFF}, 8192")
    a(f"buffer_load_dword v{vG}, v{vG}, s[{sWS}:{sWS+3}], s{sT2} offen sc1")
    def ldK(buf, t):
        va = vK if t < 32 else vK2
        a(f"ds_read_b128 {vr(KB+4*buf,4)}, v{va} offset:{(t % 32)*2048}")
    def ldV(buf, t):
        va = vV if t < 32 else vV2
        off = (t % 32) * 2048
        a(f"s_mov_b64 exec, s[{sVM}:{sVM+1}]")
        a(f"ds_read_b128 {vr(V0+4*buf,4)}, v{va} offset:{off}")
        a(f"ds_read_b128 {vr(V1+4*buf,4)}, v{va} offset:{off+512}")
        a("s_mov_b64 exec, -1")
    def neg_bcast(C, m):
        for i in range(0, 16, 2):
            a(f"v_pk_mul_f32 {vr(C+i,2)}, {vr(m,2)}, -1.0 op_sel_hi:[0,0]")
    def crosshalf_max(m, t):
        a(f"v_mov_b32 v{t}, v{m}")
        a("s_nop 1")
        a(f"v_permlane32_swap_b32 v{m}, v{t}")
        a("s_nop 1")
        a(f"v_max_f32 v{m}, v{m}, v{t}")
    def rowmax(S, m):
        a(f"v_max3_f32 v{m}, v{S}, v{S+1}, v{S+2}")
        for i in range(3, 15, 2):
            a(f"v_max3_f32 v{m}, v{m}, v{S+i}, v{S+i+1}")
        a(f"v_max_f32 v{m}, v{m}, v{S+15}")
    M0r, M1r, M2r, M3r = WOA, WOA + 1, WOA + 2, WOA + 3
    ldK(0, 0)
    ldK(1, 1)
    ldV(0, 0)
    a("s_waitcnt lgkmcnt(3)")
    a(f"{MF} {vr(SA,16)}, {vr(KB,4)}, {vr(QA,4)}, 0")
    a(f"{MF} {vr(SB,16)}, {vr(KB,4)}, {vr(QB,4)}, 0")
    for i in range(8, 16, 2):
        pass
    a("s_nop 10")
    rowmax(SA, M0r); rowmax(SB, M2r)
    crosshalf_max(M0r, M1r); crosshalf_max(M2r, M3r)
    neg_bcast(CA, M0r); neg_bcast(CB, M2r)
    a("s_branch L_go")
    a.label("L_restart")
    for i in range(0, 16, 2):
        a(f"v_pk_mov_b32 {vr(OA+i,2)}, 0, 0")
        a(f"v_pk_mov_b32 {vr(OB+i,2)}, 0, 0")
    ldK(0, 0)
    ldK(1, 1)
    ldV(0, 0)
    a.label("L_go")
    for i in range(8, 16, 2):
        a(f"v_pk_mov_b32 {vr(SB+i,2)}, 0, 0")
    a("s_waitcnt lgkmcnt(0)")
    a(f"{MF} {vr(SA,16)}, {vr(KB,4)}, {vr(QA,4)}, {vr(CA,16)}")
    if "noprio" not in EXPT:
        a(f"s_cmp_ge_u32 s{sW}, 4")
        a("s_cbranch_scc0 L_noprio0")
        a("s_setprio 1")
        a.label("L_noprio0")
    a("s_nop 7")
    a("s_nop 1")
    stamp(a, 9)
    def ex(S, i): a(f"v_exp_f32 v{S+i}, v{S+i}")
    T0W = 16
    def wo_dma(f):
        a(f"s_lshl_b32 s{sT0}, s{sW}, 12")
        a(f"s_add_u32 m0, s{sT0}, {L_WOST + (f % 3)*1024}")
        a(f"s_mov_b32 s{sT1}, {f*16384}")
        a(f"buffer_load_dwordx4 v{vWO}, s[{sWO}:{sWO+3}], s{sT1} offen lds")
    def wo_read(f, dst):
        a(f"ds_read_b64_tr_b16 {vr(dst,2)}, v{vWOr} offset:{L_WOST + (f % 3)*1024}")
        a(f"ds_read_b64_tr_b16 {vr(dst+2,2)}, v{vWOr} offset:{L_WOST + (f % 3)*1024 + 512}")
    PSW = opt("psw", 53)
    for t in range(64):
        p = t & 1
        def sync(k, n):
            a(f"s_cmp_eq_u32 s{sPASS}, 1")
            a(f"s_cbranch_scc0 L_sy{k}_done")
            a(f"s_cmp_ge_u32 s{sW}, 4")
            a(f"s_cbranch_scc0 L_sy{k}_spin")
            if n is not None: a(f"s_waitcnt vmcnt({n})")
            a(f"v_mov_b32 v254, 1")
            a("s_mov_b64 exec, 1")
            a(f"ds_add_u32 v{vKd}, v254 offset:{L_CNT3}")
            a("s_mov_b64 exec, -1")
            a.label(f"L_sy{k}_spin")
            a(f"ds_read_b32 v254, v{vKd} offset:{L_CNT3}")
            a("s_waitcnt lgkmcnt(0)")
            a(f"v_readfirstlane_b32 s{sT0}, v254")
            a(f"s_cmp_ge_u32 s{sT0}, {4*k}")
            a(f"s_cbranch_scc0 L_sy{k}_spin")
            a.label(f"L_sy{k}_done")
        if t == 2:  sync(1, 2)
        if t == 6:  sync(2, 6)
        if t == 14: sync(3, 14)
        if t == 30: sync(4, None)
        if t == PSW and "noprio" not in EXPT:
            a("s_setprio 0")
        ex(SA, 0); ex(SA, 1)
        a(f"{SM} {vr(OB,16)}, {vr(V1+4*(p^1),4)}, {vr(SB+8,8)}, v{IDX}")
        ex(SA, 2); ex(SA, 3); ex(SA, 4)
        a(f"{MF} {vr(SB,16)}, {vr(KB+4*p,4)}, {vr(QB,4)}, {vr(CB,16)}")
        nld = 0
        if t + 2 < 64: ldK(p, t + 2); nld += 1
        if t + 1 < 64: ldV(p ^ 1, t + 1); nld += 2
        for i in range(5, 10): ex(SA, i)
        a(f"s_waitcnt lgkmcnt({nld})")
        a(f"{SM} {vr(OA,16)}, {vr(V0+4*p,4)}, {vr(SA,8)}, v{IDX}")
        for i in range(10, 13): ex(SA, i)
        if t <= 14:
            a(f"s_cmp_eq_u32 s{sKVI}, 1")
            a(f"s_cbranch_scc0 L_nokv{t}")
            kv_step()
            a.label(f"L_nokv{t}")
        fd = t - T0W
        if 0 <= fd < NFR: wo_dma(fd)
        for i in range(13, 16): ex(SA, i)
        ex(SB, 0); ex(SB, 1)
        a(f"{SM} {vr(OA,16)}, {vr(V1+4*p,4)}, {vr(SA+8,8)}, v{IDX}")
        ex(SB, 2); ex(SB, 3); ex(SB, 4)
        if t + 1 < 64:
            a(f"{MF} {vr(SA,16)}, {vr(KB+4*(p^1),4)}, {vr(QA,4)}, {vr(CA,16)}")
        else:
            a("s_nop 0")
        for i in range(5, 8): ex(SB, i)
        fr = t - T0W - 2
        if 0 <= fr < NFR:
            outstanding_after = min(fd, NFR - 1) - fr
            a(f"s_waitcnt vmcnt({outstanding_after})")
            wo_read(fr, WOA + 4 * fr)
        for i in range(8, 10): ex(SB, i)
        a(f"{SM} {vr(OB,16)}, {vr(V0+4*p,4)}, {vr(SB,8)}, v{IDX}")
        for i in range(10, 16): ex(SB, i)
    a("s_nop 1")
    a(f"{SM} {vr(OB,16)}, {vr(V1+4,4)}, {vr(SB+8,8)}, v{IDX}")
    for f in range(NFR, 32): wo_dma(f)
    TT = SA
    a(f"v_sub_f32 v{TT+2}, 1.0, v{vG}")
    a(f"v_cvt_pk_bf16_f32 v{TT+2}, v{TT+2}, v{TT+2}")
    a(f"v_lshlrev_b32 v{TT+2}, 16, v{TT+2}")
    a(f"s_cmp_eq_u32 s{sB}, 0")
    a(f"s_cselect_b64 s[{sLM}:{sLM+1}], -1, 0")
    a(f"v_cndmask_b32 v{TT+2}, v{TT+2}, v{vG}, s[{sLM}:{sLM+1}]")
    stamp(a, 10)
    a(f"v_mul_f32 v{TT}, 0, v{OA}")
    for i in range(1, 8): a(f"v_fma_f32 v{TT}, v{OA+i}, 0, v{TT}")
    for i in range(0, 8): a(f"v_fma_f32 v{TT}, v{OB+i}, 0, v{TT}")
    a(f"v_max_f32 v{TT+1}, v{OA+8}, v{OB+8}")
    a(f"v_add_f32 v{TT}, v{TT}, v{TT+1}")
    a(f"s_mov_b32 s{sT0}, {hex(f2u(2.0**60))}")
    a(f"v_cmp_gt_f32 vcc, s{sT0}, v{TT}")
    a(f"s_cmp_eq_u32 s{sPASS}, 2")
    a("s_cbranch_scc1 L_fin")
    a("s_cmp_eq_u64 vcc, exec")
    a("s_cbranch_scc1 L_fin")
    a(f"s_mov_b32 s{sPASS}, 2")
    a(f"s_mov_b32 s{sKVI}, 0")
    FM0, FM1, FM2, FM3 = KB + 4, KB + 5, KB + 6, KB + 7
    a(f"v_mov_b32 v{FM0}, 0xff800000")
    a(f"v_mov_b32 v{FM2}, 0xff800000")
    a(f"v_mov_b32 v{FM1}, v{vK}")
    a(f"s_mov_b32 s{sT0}, 0")
    a.label("L_maxloop")
    a(f"ds_read_b128 {vr(KB,4)}, v{FM1}")
    a("s_waitcnt lgkmcnt(0)")
    a(f"{MF} {vr(SA,16)}, {vr(KB,4)}, {vr(QA,4)}, 0")
    a(f"{MF} {vr(SB,16)}, {vr(KB,4)}, {vr(QB,4)}, 0")
    a("s_nop 15")
    for i in range(0, 16, 2):
        a(f"v_max3_f32 v{FM0}, v{FM0}, v{SA+i}, v{SA+i+1}")
        a(f"v_max3_f32 v{FM2}, v{FM2}, v{SB+i}, v{SB+i+1}")
    a(f"v_add_u32 v{FM1}, 2048, v{FM1}")
    a(f"s_add_u32 s{sT0}, s{sT0}, 1")
    a(f"s_cmp_lt_u32 s{sT0}, 64")
    a("s_cbranch_scc1 L_maxloop")
    crosshalf_max(FM0, FM1); crosshalf_max(FM2, FM3)
    neg_bcast(CA, FM0); neg_bcast(CB, FM2)
    a("s_waitcnt vmcnt(0)")
    a("s_branch L_restart")
    a.label("L_fin")
    a(f"v_rcp_f32 v{TT}, v{OA+8}")
    a(f"v_rcp_f32 v{TT+1}, v{OB+8}")
    a("s_nop 0")
    a(f"v_mul_f32 v{TT}, v{TT}, v{TT+2}")
    a(f"v_mul_f32 v{TT+1}, v{TT+1}, v{TT+2}")
    for i in range(8):
        a(f"v_mul_f32 v{OA+i}, v{TT}, v{OA+i}")
        a(f"v_mul_f32 v{OB+i}, v{TT+1}, v{OB+i}")
    for j in range(4):
        a(f"v_cvt_pk_bf16_f32 v{SA+4+j}, v{OA+2*j}, v{OA+2*j+1}")
        a(f"v_cvt_pk_bf16_f32 v{SA+8+j}, v{OB+2*j}, v{OB+2*j+1}")
    a(f"s_lshl_b32 s{sT0}, s{sTB}, 1")
    a(f"s_add_u32 s{sT0}, s{sT0}, s{sTT}")
    a(f"s_lshl_b32 s{sT0}, s{sT0}, 6")
    a(f"s_lshl_b32 s{sT1}, s{sGI}, 3")
    a(f"s_add_u32 s{sT0}, s{sT0}, s{sT1}")
    a(f"s_lshl_b32 s{sT1}, s{sC}, 1")
    a(f"s_add_u32 s{sT0}, s{sT0}, s{sT1}")
    a(f"s_lshl_b32 s{sT0}, s{sT0}, 10")
    a(f"s_add_u32 s{sT0}, s{sT0}, {WS_O}")
    vS = SB
    a(f"v_lshlrev_b32 v{vS}, 4, v{vL}")
    a(f"buffer_store_dwordx4 {vr(SA+4,4)}, v{vS}, s[{sWS}:{sWS+3}], s{sT0} offen sc1")
    a(f"buffer_store_dwordx4 {vr(SA+8,4)}, v{vS}, s[{sWS}:{sWS+3}], s{sT0} offen offset:1024 sc1")
    a("s_waitcnt vmcnt(2)")
    XFR = {}
    for k, f in enumerate(range(NFR, 32)):
        XFR[f] = [KB, KB + 4, V0][k]
        wo_read(f, XFR[f])
    a(f"s_and_b32 s{sT2}, s{sGI}, 1")
    a(f"s_lshl_b32 s{sT3}, s{sTB}, 1")
    a(f"s_add_u32 s{sT3}, s{sT3}, s{sT2}")
    a(f"s_lshl_b32 s{sT4}, s{sTT}, 5")
    a(f"s_lshl_b32 s{sT5}, s{sC}, 1")
    a(f"s_add_u32 s{sT4}, s{sT4}, s{sT5}")
    a(f"s_lshl_b32 s{sM0}, s{sT4}, 10")
    a(f"s_lshl_b32 s{sOFF}, s{sT3}, 16")
    a(f"s_add_u32 s{sOFF}, s{sOFF}, s{sM0}")
    a(f"s_add_u32 s{sOFF}, s{sOFF}, {WS_O}")
    a(f"s_add_u32 s{sM0}, s{sM0}, {L_KV}")
    vB = SB + 6
    a(f"s_lshl_b32 s{sT4}, s{sTT}, 15")
    a(f"s_add_u32 s{sT4}, s{sT4}, {L_KV}")
    a(f"v_add_u32 v{vB}, s{sT4}, v{vS}")
    vO = SB + 7
    a(f"v_and_b32 v{vO}, 31, v{vL}")
    a(f"s_lshl_b32 s{sT3}, s{sT3}, 5")
    a(f"v_add_u32 v{vO}, s{sT3}, v{vO}")
    a(f"v_lshlrev_b32 v{vO}, 10, v{vO}")
    a(f"v_lshrrev_b32 v{SB+3}, 5, v{vL}")
    a(f"v_lshl_add_u32 v{vO}, v{SB+3}, 4, v{vO}")
    a(f"s_lshr_b32 s{sT2}, s{sGI}, 1")
    a(f"s_lshl_b32 s{sT2}, s{sT2}, 8")
    a(f"s_lshl_b32 s{sT3}, s{sC}, 6")
    a(f"s_add_u32 s{sT2}, s{sT2}, s{sT3}")
    a(f"s_lshl_b32 s{sT3}, s{sTT}, 5")
    a(f"s_add_u32 s{sT2}, s{sT2}, s{sT3}")
    a(f"v_add_u32 v{vO}, s{sT2}, v{vO}")
    vXw, vXr = SB + 3, SB + 4
    a(f"s_lshl_b32 s{sT0}, s{sW}, 11")
    a(f"v_add_u32 v{vXw}, s{sT0}, v{vS}")
    a(f"s_xor_b32 s{sT1}, s{sW}, 4")
    a(f"s_lshl_b32 s{sT1}, s{sT1}, 11")
    a(f"v_add_u32 v{vXr}, s{sT1}, v{vS}")
    a("s_waitcnt vmcnt(0)")
    a("s_barrier")
    stamp(a, 11)
    a(f"s_cmp_eq_u32 s{sPOLLER}, 1")
    a("s_cbranch_scc0 L_nosig2")
    a(f"s_lshl_b32 s{sT0}, s{sTB}, 7")
    a(f"s_add_u32 s{sT0}, s{sT0}, {WS_F}")
    a(f"s_lshl_b32 s{sT1}, s{sGI}, 2")
    a(f"v_mov_b32 v{SB+1}, s{sT1}")
    a(f"v_mov_b32 v{SB+2}, s{sNONCE}")
    a(f"v_cmp_eq_u32 vcc, 0, v{vL}")
    a(f"s_and_saveexec_b64 s[{sT4}:{sT5}], vcc")
    a(f"buffer_store_dword v{SB+2}, v{SB+1}, s[{sWS}:{sWS+3}], s{sT0} offen sc1")
    a(f"s_mov_b64 exec, s[{sT4}:{sT5}]")
    a(f"v_and_b32 v{SB+1}, 7, v{vL}")
    a(f"v_lshlrev_b32 v{SB+1}, 2, v{SB+1}")
    def ld2(): a(f"buffer_load_dword v{SB+2}, v{SB+1}, s[{sWS}:{sWS+3}], s{sT0} offen sc1")
    def cmp2(): a(f"v_cmp_eq_u32 vcc, s{sNONCE}, v{SB+2}")
    poll("L_poll2", ld2, cmp2)
    a.label("L_nosig2")
    a("s_barrier")
    stamp(a, 14)
    def o_dma(q):
        for i in range(2):
            a(f"s_add_u32 m0, s{sM0}, {(8*q+i)*1024}")
            a(f"s_add_u32 s{sT0}, s{sOFF}, {(8*q+i)*1024}")
            a(f"buffer_load_dwordx4 v{vS}, s[{sWS}:{sWS+3}], s{sT0} offen sc1 lds")
    o_dma(0); o_dma(1)
    ACC3 = OA
    BF = CA
    def afr(s): return XFR[s] if s in XFR else WOA + 4 * s
    for q in range(4):
        a(f"s_waitcnt vmcnt({[2, 4, 2, 0][q]})")
        if q == 0:
            pass
        a("s_barrier")
        if q == 0:
            stamp(a, 15)
        for i in range(8):
            a(f"ds_read_b128 {vr(BF+4*i,4)}, v{vB} offset:{(8*q+i)*1024}")
        if q == 0:
            o_dma(2); o_dma(3)
        for i in range(8):
            a(f"s_waitcnt lgkmcnt({7-i})")
            a(f"{MF} {vr(ACC3,16)}, {vr(afr(8*q+i),4)}, {vr(BF+4*i,4)}, {vr(ACC3,16) if (q or i) else '0'}")
    stamp(a, 16)
    a("s_nop 15")
    a(f"s_cmp_eq_u32 s{sTT}, 0")
    a("s_cbranch_scc0 L_x_b1")
    a(f"ds_write_b128 v{vXw}, {vr(ACC3+8,4)} offset:{L_XCH}")
    a(f"ds_write_b128 v{vXw}, {vr(ACC3+12,4)} offset:{L_XCH+1024}")
    a("s_waitcnt lgkmcnt(0)")
    a("s_barrier")
    a(f"ds_read_b128 {vr(CB,4)}, v{vXr} offset:{L_XCH}")
    a(f"ds_read_b128 {vr(CB+4,4)}, v{vXr} offset:{L_XCH+1024}")
    a("s_waitcnt lgkmcnt(0)")
    for i in range(0, 8, 2):
        a(f"v_pk_add_f32 {vr(CB+i,2)}, {vr(CB+i,2)}, {vr(ACC3+i,2)}")
    a("s_branch L_x_j")
    a.label("L_x_b1")
    a(f"ds_write_b128 v{vXw}, {vr(ACC3,4)} offset:{L_XCH}")
    a(f"ds_write_b128 v{vXw}, {vr(ACC3+4,4)} offset:{L_XCH+1024}")
    a("s_waitcnt lgkmcnt(0)")
    a("s_barrier")
    a(f"ds_read_b128 {vr(CB,4)}, v{vXr} offset:{L_XCH}")
    a(f"ds_read_b128 {vr(CB+4,4)}, v{vXr} offset:{L_XCH+1024}")
    a("s_waitcnt lgkmcnt(0)")
    for i in range(0, 8, 2):
        a(f"v_pk_add_f32 {vr(CB+i,2)}, {vr(CB+i,2)}, {vr(ACC3+8+i,2)}")
    a.label("L_x_j")
    R = SA + 4
    for i in range(0, 8, 2):
        a(f"v_cvt_pk_bf16_f32 v{R+i//2}, v{CB+i}, v{CB+i+1}")
    a("s_nop 1")
    a(f"v_permlane32_swap_b32 v{R}, v{R+2}")
    a(f"v_permlane32_swap_b32 v{R+1}, v{R+3}")
    a(f"buffer_store_dwordx4 {vr(R,4)}, v{vO}, s[{sOUT}:{sOUT+3}], 0 offen {'sc1' if 'osc1' in EXPT else ''} {'nt' if 'ont' in EXPT else ''} {'sc0 sc1' if 'osys' in EXPT else ''}")
    if PROF:
        a("s_waitcnt vmcnt(0)")
        stamp(a, 17)
        stamp_rt(a, 31)
        stamp_flush(a, vL, SB + 3)
    a.label("L_end")
    a("s_endpgm")
    return a, kdesc(KNAME, 256)

def build(path):
    ref = open("cdna_kernels/" + NAME + ".s.ref").read().split("\n")
    hdr = [l for l in ref if l.startswith(";") and "@launch" not in l and "Override launch" not in l and "grid=ceil" not in l][:16]
    k, d = gen_fused()
    errs = check(k.lines, "fused")
    for e in errs[:10]: print("HAZARD", e)
    out = "\n".join(hdr) + "\n"
    out += "; @launch grid=(256,1,1) block=(512,1,1) lds=163840\n"
    out += '.amdgcn_target "amdgcn-amd-amdhsa--gfx950"\n.text\n'
    out += k.text()
    out += '.section .rodata,"a"\n.p2align 6\n' + d
    open(path, "w").write(out)
    return len(errs)

if __name__ == "__main__":
    for arg in list(sys.argv):
        if arg.startswith("--x="):
            EXPT.update(arg[4:].split(",")); sys.argv.remove(arg)
    if "--prof" in sys.argv:
        PROF = True; sys.argv.remove("--prof")
    p = sys.argv[1] if len(sys.argv) > 1 else "f4.s"
    n = build(p)
    print("written", p, "hazards:", n)
```

```python
import sys, math, struct
from asmlib import *

NAME = "gated_mix__grouped_kv_mqa__grouped_kv_mqa__prompt"
KNAME = NAME + "_kernel"
WS_KV = 0
WS_G = 256 << 10
WS_F = 512 << 10
WS_KF = WS_F + 8192
WS_XI = WS_KF + 16384
WS_O = 1 << 20
WS_SIZE = 16 << 20
WS_PROF = 13 << 20
CQ = 0.25 * math.log2(math.e)
def f2u(f): return struct.unpack("<I", struct.pack("<f", f))[0]
MF = "v_mfma_f32_32x32x16_bf16"
SM = "v_smfmac_f32_32x32x32_bf16"
MF16 = "v_mfma_f32_16x16x32_bf16"
PROF = False
EXPT = set()
def opt(name, default):
    for x in EXPT:
        if x.startswith(name + "="): return int(x[len(name) + 1:])
    return default

L_PART = 16 << 10
L_GW = L_PART
L_WKV = 32 << 10
L_X = 48 << 10
L_KV = 32 << 10
L_SLOT = [0, 112 << 10, 128 << 10, 144 << 10, L_WKV, L_PART, 0, 112 << 10]
L_WOST = 0
L_XCH = 0
L_CNT3 = 7 * 4096 + 3072
L_CNT = L_PART + 4096 + 3072

sX, sWQ, sWKV, sWS, sDBG, sWO, sOUT, sGW = 32, 36, 40, 44, 48, 52, 56, 60
sW, sB, sHG, sTB, sGI, sTT, sC, sTTKV = 64, 65, 66, 67, 68, 69, 70, 71
sVM = 72
sPASS, sROLE, sTYPE, sNONCE = 74, 75, 76, 77
sT0, sT1, sT2, sT3, sT4, sT5 = 78, 79, 80, 81, 82, 83
sM0, sOFF = 84, 85
sTBOFF = 86
sSIG = 87
sPOLLER, sFOK = 92, 93
sPA, sPB = 94, 95
sKVI = 96
sXCC, sFAST, sXID = 97, 98, 99
sLM = 88

def srd(a, d, base, nbytes):
    a(f"s_mov_b32 s{d}, s{base}")
    a(f"s_and_b32 s{d+1}, s{base+1}, 0xffff")
    a(f"s_mov_b32 s{d+2}, {nbytes}")
    a(f"s_mov_b32 s{d+3}, 0x20000")

def kdesc(name, vgpr, sgpr=100, accum=None):
    if accum is None: accum = (vgpr + 3) // 4 * 4
    return f""".amdhsa_kernel {name}
  .amdhsa_next_free_vgpr {vgpr}
  .amdhsa_next_free_sgpr {sgpr}
  .amdhsa_accum_offset {accum}
  .amdhsa_group_segment_fixed_size 0
  .amdhsa_kernarg_size 112
  .amdhsa_user_sgpr_count 2
  .amdhsa_user_sgpr_kernarg_segment_ptr 1
  .amdhsa_system_sgpr_workgroup_id_x 1
  .amdhsa_float_denorm_mode_32 3
.end_amdhsa_kernel
"""
def header(a, name):
    a.raw(f".globl {name}"); a.raw(".p2align 8"); a.raw(f".type {name},@function"); a.label(name)

VST = 0
def stamp(a, idx):
    if PROF:
        a("s_memtime s[90:91]")
        a("s_waitcnt lgkmcnt(0)")
        a(f"v_writelane_b32 v{VST}, s90, {idx}")
def stamp_rt(a, idx):
    if PROF:
        a("s_memrealtime s[90:91]")
        a("s_waitcnt lgkmcnt(0)")
        a(f"v_writelane_b32 v{VST}, s90, {idx}")
def stamp_flush(a, vL, vtmp0):
    if not PROF: return
    a(f"s_lshl_b32 s{sT0}, s2, 3")
    a(f"s_add_u32 s{sT0}, s{sT0}, s{sW}")
    a(f"s_lshl_b32 s{sT0}, s{sT0}, 7")
    a(f"s_add_u32 s{sT0}, s{sT0}, {WS_PROF}")
    a(f"v_lshlrev_b32 v{vtmp0}, 2, v{vL}")
    a(f"v_cmp_gt_u32 vcc, 32, v{vL}")
    a(f"s_and_saveexec_b64 s[{sT4}:{sT5}], vcc")
    a(f"buffer_store_dword v{VST}, v{vtmp0}, s[{sWS}:{sWS+3}], s{sT0} offen")
    a(f"s_mov_b64 exec, s[{sT4}:{sT5}]")
    a("s_waitcnt vmcnt(0)")

POLL_LIMIT = 0x40000

def gen_fused():
    a = Asm()
    header(a, KNAME)
    vL, vK, vV = 1, 2, 3
    QA, QB = 4, 8
    CA, CB = 12, 28
    SA, SB = 44, 60
    OA, OB = 76, 92
    KB = 108; V0 = 116; V1 = 124
    vK2, vV2, vWO, vWOr = 132, 133, 134, 135
    IDX = 0; NFR = 29; vG = 252
    WOA = 136
    if PROF:
        IDX = 255
    vT0, vT1, vT2, vT3 = 12, 13, 14, 15
    vH = 16; vN15 = 17; vXb = 18; vXt = 19
    vXa = 20
    vAa = 28
    vWq = 34; vE = 35; vGp = 36; vPw = 37
    ACC = 44
    EAC = 60
    AF = 76
    XF = 92
    WF, XFF = 136, 168
    vP0, vP1, vP2, vF = 240, 241, 242, 244
    RD = 200

    a("s_cmp_ge_u32 s2, 256")
    a("s_cbranch_scc1 L_end")
    a("s_load_dwordx8 s[4:11], s[0:1], 0")
    a("s_load_dwordx2 s[12:13], s[0:1], 32")
    a("s_load_dwordx8 s[16:23], s[0:1], 48")
    a("s_load_dwordx8 s[24:31], s[0:1], 80")
    a(f"v_lshrrev_b32 v{vT0}, 6, v0")
    a(f"v_and_b32 v{vL}, 63, v0")
    a(f"v_readfirstlane_b32 s{sW}, v{vT0}")
    if "cpf" in EXPT:
        a("s_lshr_b32 s90, s2, 4")
        a(f"s_xor_b32 s91, s{sW}, 7")
        a("s_or_b32 s90, s90, s91")
        a("s_cmp_eq_u32 s90, 0")
        a("s_cbranch_scc0 L_nocpf")
        a("s_getpc_b64 s[90:91]")
        a.label("L_cpf")
        a(f"v_lshlrev_b32 v{vT1}, 7, v{vL}")
        a(f"s_mov_b32 s{sT0}, L_end-L_cpf")
        for k in range(4):
            a(f"v_min_u32 v{vT2}, s{sT0}, v{vT1}")
            a(f"global_load_dword v250, v{vT2}, s[90:91]")
            a(f"v_add_u32 v{vT1}, 8192, v{vT1}")
        a.label("L_nocpf")
    if PROF:
        stamp(a, 0); stamp_rt(a, 30)
    a(f"s_lshr_b32 s{sT0}, s2, 3")
    a(f"s_and_b32 s{sGI}, s{sT0}, 7")
    a(f"s_lshr_b32 s{sT0}, s{sT0}, 3")
    a(f"s_and_b32 s{sT1}, s2, 7")
    a(f"s_lshl_b32 s{sT1}, s{sT1}, 2")
    a(f"s_add_u32 s{sTB}, s{sT1}, s{sT0}")
    a(f"s_lshr_b32 s{sB}, s{sGI}, 2")
    a(f"s_and_b32 s{sHG}, s{sGI}, 3")
    a(f"s_lshr_b32 s{sTYPE}, s{sHG}, 1")
    a(f"s_and_b32 s{sTTKV}, s{sHG}, 1")
    a(f"s_lshr_b32 s{sTT}, s{sW}, 2")
    a(f"s_and_b32 s{sC}, s{sW}, 3")
    a(f"s_cmp_eq_u32 s{sTT}, s{sTTKV}")
    a(f"s_cselect_b32 s{sROLE}, 1, 0")
    a(f"s_lshl_b32 s{sTBOFF}, s{sTB}, 16")
    a(f"s_lshl_b32 s{sT0}, s{sTTKV}, 2")
    a(f"s_add_u32 s{sT0}, s{sT0}, 3")
    a(f"s_cmp_eq_u32 s{sW}, s{sT0}")
    a(f"s_cselect_b32 s{sPOLLER}, 1, 0")
    a(f"s_mov_b32 s{sFOK}, 0")
    a(f"s_getreg_b32 s{sXCC}, hwreg(HW_REG_XCC_ID, 0, 4)")
    a(f"s_mov_b32 s{sXID}, 0")
    a(f"s_mov_b32 s{sFAST}, 0")
    a(f"s_mov_b32 s{sSIG}, 0")
    a(f"s_mov_b32 s{sVM}, 0x0000ffff")
    a(f"s_mov_b32 s{sVM+1}, 0x0000ffff")
    a(f"s_mov_b32 s{sNONCE}, 0")
    a(f"v_lshlrev_b32 v{vK}, 4, v{vL}")
    a(f"v_lshrrev_b32 v{vH}, 5, v{vL}")
    a(f"v_mov_b32 v{vP0}, 0")
    a(f"v_mov_b32 v{vP2}, 0")
    a(f"s_mov_b32 s{sPA}, 0")
    a(f"s_mov_b32 s{sPB}, 0")
    a(f"v_and_b32 v{vT0}, 31, v{vL}")
    a(f"s_lshl_b32 s{sT0}, s{sTT}, 5")
    a(f"v_add_u32 v{vXb}, s{sT0}, v{vT0}")
    a(f"v_lshlrev_b32 v{vXb}, 10, v{vXb}")
    a(f"v_add_u32 v{vXb}, {L_X}, v{vXb}")
    a(f"v_and_b32 v{vN15}, 15, v{vL}")
    a(f"v_xor_b32 v{vXt}, v{vH}, v{vN15}")
    a(f"v_lshlrev_b32 v{vXt}, 4, v{vXt}")
    a("s_waitcnt lgkmcnt(0)")
    a(f"s_cmp_eq_u32 s{sB}, 0")
    a("s_cselect_b32 s6, s6, s16")
    a("s_cselect_b32 s7, s7, s17")
    a("s_cselect_b32 s8, s8, s18")
    a("s_cselect_b32 s9, s9, s19")
    a("s_cselect_b32 s10, s10, s20")
    a("s_cselect_b32 s11, s11, s21")
    a(f"s_cmp_eq_u32 s{sTYPE}, 0")
    a("s_cselect_b32 s8, s8, s10")
    a("s_cselect_b32 s9, s9, s11")
    srd(a, sX, 4, 2048 * 1024)
    srd(a, sWKV, 8, 16384)
    srd(a, sDBG, 28, 256)
    a(f"s_xor_b32 s{sT0}, s{sW}, 3")
    a(f"s_or_b32 s{sT0}, s2, s{sT0}")
    a(f"s_cmp_eq_u32 s{sT0}, 0")
    a("s_cbranch_scc0 L_nononce")
    a("s_memrealtime s[90:91]")
    a("s_waitcnt lgkmcnt(0)")
    a("s_lshl_b32 s90, s90, 4")
    a("s_or_b32 s90, s90, 0x10")
    a(f"v_mov_b32 v{vT1}, s90")
    a(f"v_mov_b32 v{vT3}, 128")
    a(f"buffer_store_dword v{vT1}, v{vT3}, s[{sDBG}:{sDBG+3}], 0 offen sc1")
    a.label("L_nononce")
    def xrow_dma(rowexpr, vt):
        rowexpr()
        a(f"s_and_b32 s{sT1}, s{sT0}, 15")
        a(f"v_xor_b32 v{vt}, s{sT1}, v{vL}")
        a(f"v_lshlrev_b32 v{vt}, 4, v{vt}")
        a(f"s_lshl_b32 s{sT1}, s{sT0}, 10")
        a(f"s_add_u32 m0, s{sT1}, {L_X}")
        a(f"s_add_u32 s{sT1}, s{sT1}, s{sTBOFF}")
        a(f"buffer_load_dwordx4 v{vt}, s[{sX}:{sX+3}], s{sT1} offen lds")
    a(f"s_lshl_b32 s{sT2}, s{sTTKV}, 5")
    a(f"s_add_u32 s{sT2}, s{sT2}, s{sW}")
    for i in range(4):
        xrow_dma(lambda: a(f"s_add_u32 s{sT0}, s{sT2}, {8*i}"), vT1)
    a(f"s_lshl_b32 s{sT1}, s{sW}, 11")
    a(f"s_add_u32 m0, s{sT1}, {L_WKV}")
    a(f"s_add_u32 s{sT3}, s{sT1}, 1024")
    a(f"buffer_load_dwordx4 v{vK}, s[{sWKV}:{sWKV+3}], s{sT1} offen lds")
    a(f"s_add_u32 m0, s{sT3}, {L_WKV}")
    srd(a, sGW, 24, 1024)
    a(f"buffer_load_dwordx4 v{vK}, s[{sWKV}:{sWKV+3}], s{sT3} offen lds")
    stamp(a, 1)
    srd(a, sWS, 30, WS_SIZE)
    def qaddr_setup():
        for sp in range(8):
            a(f"s_mov_b32 s{sT0}, {32*sp}")
            a(f"v_xad_u32 v{vXa+sp}, v{vXt}, s{sT0}, v{vXb}")
        a(f"v_lshrrev_b32 v{vT0}, 4, v{vL}")
        a(f"v_lshrrev_b32 v{vT3}, 2, v{vN15}")
        a(f"v_lshl_add_u32 v{vAa}, v{vH}, 3, v{vT3}")
        a(f"v_lshlrev_b32 v{vAa}, 8, v{vAa}")
        a(f"v_and_b32 v{vAa+1}, 1, v{vT0}")
        a(f"v_lshlrev_b32 v{vAa+1}, 1, v{vAa+1}")
        a(f"v_bfe_u32 v{vAa+2}, v{vN15}, 1, 1")
        a(f"v_add_u32 v{vAa+1}, v{vAa+1}, v{vAa+2}")
        a(f"s_lshl_b32 s{sT1}, s{sC}, 2")
        a(f"v_add_u32 v{vAa+1}, s{sT1}, v{vAa+1}")
        a(f"v_lshlrev_b32 v{vT3}, 2, v{vT3}")
        a(f"v_xor_b32 v{vAa+1}, v{vAa+1}, v{vT3}")
        a(f"v_lshl_add_u32 v{vAa}, v{vAa+1}, 4, v{vAa}")
        a(f"v_and_b32 v{vAa+2}, 1, v{vN15}")
        a(f"v_lshl_add_u32 v{vAa}, v{vAa+2}, 3, v{vAa}")
        for k in range(5, 0, -1):
            a(f"v_add_u32 v{vAa+k}, {L_SLOT[k]}, v{vAa}")
    def late_srds():
        a(f"s_cmp_eq_u32 s{sTT}, 0")
        a("s_cselect_b32 s12, s12, s22")
        a("s_cselect_b32 s13, s13, s23")
        srd(a, sOUT, 26, 2048 * 1024)
        srd(a, sWO, 12, 512 * 1024)
    a(f"s_cmp_eq_u32 s{sROLE}, 1")
    a("s_cbranch_scc0 L_wrole")
    if "kvprio" in EXPT: a("s_setprio 3")
    a(f"s_mov_b32 m0, {L_GW}")
    a(f"v_lshrrev_b32 v{vT0}, 4, v{vL}")
    a(f"buffer_load_dwordx4 v{vK}, s[{sGW}:{sGW+3}], 0 offen lds")
    vXk = vXa
    WF16, XF16 = 128, 192
    KAC = EAC
    a(f"s_and_b32 s{sT2}, s{sC}, 1")
    a(f"s_lshl_b32 s{sT0}, s{sTTKV}, 5")
    a(f"s_lshl_b32 s{sT1}, s{sT2}, 4")
    a(f"s_add_u32 s{sT0}, s{sT0}, s{sT1}")
    a(f"v_add_u32 v{vT2}, s{sT0}, v{vN15}")
    a(f"v_lshlrev_b32 v{vT2}, 10, v{vT2}")
    a(f"v_add_u32 v{vT2}, {L_X}, v{vT2}")
    a(f"v_xor_b32 v{vT3}, v{vT0}, v{vN15}")
    a(f"v_lshlrev_b32 v{vT3}, 4, v{vT3}")
    for sp in range(4):
        a(f"s_mov_b32 s{sT0}, {64*sp}")
        a(f"v_xad_u32 v{vXk+sp}, v{vT3}, s{sT0}, v{vT2}")
    a(f"v_lshrrev_b32 v{vE}, 2, v{vN15}")
    a(f"v_lshl_add_u32 v{vE}, v{vT0}, 3, v{vE}")
    a(f"v_lshlrev_b32 v{vE}, 5, v{vE}")
    a(f"v_and_b32 v{vT3}, 3, v{vN15}")
    a(f"v_lshl_add_u32 v{vE}, v{vT3}, 3, v{vE}")
    a(f"v_add_u32 v{vE}, {L_WKV}, v{vE}")
    a(f"v_lshlrev_b32 v{vGp}, 4, v{vT0}")
    a(f"v_add_u32 v{vGp}, {L_GW}, v{vGp}")
    a(f"v_and_b32 v{vT2}, 1, v{vT0}")
    a(f"v_lshrrev_b32 v{vT3}, 1, v{vT0}")
    a(f"s_cmp_eq_u32 s{sTYPE}, 0")
    a("s_cbranch_scc0 L_sa_v")
    a(f"v_and_b32 v{vPw}, 3, v{vN15}")
    a(f"v_and_b32 v{vT1}, 4, v{vN15}")
    a(f"v_lshl_add_u32 v{vPw}, v{vT1}, 1, v{vPw}")
    a(f"v_and_b32 v{vT1}, 8, v{vN15}")
    a(f"v_lshrrev_b32 v{vT1}, 1, v{vT1}")
    a(f"v_add_u32 v{vPw}, v{vPw}, v{vT1}")
    a(f"v_lshl_add_u32 v{vPw}, v{vT2}, 5, v{vPw}")
    a(f"s_lshl_b32 s{sT1}, s{sT2}, 4")
    a(f"v_add_u32 v{vPw}, s{sT1}, v{vPw}")
    a(f"v_lshlrev_b32 v{vPw}, 4, v{vPw}")
    a("s_branch L_sa_j")
    a.label("L_sa_v")
    a(f"v_lshl_add_u32 v{vPw}, v{vT2}, 4, v{vN15}")
    a(f"v_lshlrev_b32 v{vPw}, 4, v{vPw}")
    a(f"s_lshl_b32 s{sT1}, s{sT2}, 9")
    a(f"s_add_u32 s{sT1}, s{sT1}, 1024")
    a(f"v_add_u32 v{vPw}, s{sT1}, v{vPw}")
    a.label("L_sa_j")
    a(f"v_lshl_add_u32 v{vPw}, v{vT3}, 3, v{vPw}")
    a(f"s_lshl_b32 s{sT0}, s{sTB}, 1")
    a(f"s_add_u32 s{sT0}, s{sT0}, s{sTTKV}")
    a(f"s_lshl_b32 s{sOFF}, s{sT0}, 11")
    a(f"s_lshl_b32 s{sT3}, s{sB}, 17")
    a(f"s_add_u32 s{sOFF}, s{sOFF}, s{sT3}")
    if WS_KV: a(f"s_add_u32 s{sOFF}, s{sOFF}, {WS_KV}")
    a(f"s_lshl_b32 s{sM0}, s{sT0}, 7")
    a(f"s_add_u32 s{sM0}, s{sM0}, {WS_G}")
    vNon = 38
    a(f"v_mov_b32 v{vT3}, 128")
    a(f"buffer_load_dword v{vNon}, v{vT3}, s[{sDBG}:{sDBG+3}], 0 offen sc1")
    stamp(a, 2)
    a("s_waitcnt vmcnt(0)")
    a("s_barrier")
    stamp(a, 3)
    a(f"s_cmp_ge_u32 s{sC}, 2")
    a("s_cbranch_scc1 L_kv_gate")
    def kvreads(sx):
        a(f"ds_read_b64_tr_b16 {vr(WF16+4*sx,2)}, v{vE} offset:{sx*1024}")
        a(f"ds_read_b64_tr_b16 {vr(WF16+4*sx+2,2)}, v{vE} offset:{sx*1024+128}")
        a(f"ds_read_b128 {vr(XF16+4*sx,4)}, v{vXk+(sx%4)} offset:{(sx//4)*256}")
    D = 5
    for kind in ("k", "v"):
        if kind == "k":
            a(f"s_cmp_eq_u32 s{sTYPE}, 0")
            a("s_cbranch_scc0 L_kv_v")
        else:
            a.label("L_kv_v")
        for sx in range(D): kvreads(sx)
        for sx in range(16):
            rem = min(D - 1, 15 - sx)
            a(f"s_waitcnt lgkmcnt({3*rem})")
            c = vr(KAC, 4) if sx else "0"
            if kind == "k":
                a(f"{MF16} {vr(KAC,4)}, {vr(WF16+4*sx,4)}, {vr(XF16+4*sx,4)}, {c}")
            else:
                a(f"{MF16} {vr(KAC,4)}, {vr(XF16+4*sx,4)}, {vr(WF16+4*sx,4)}, {c}")
            if sx + D < 16: kvreads(sx + D)
        if kind == "k": a("s_branch L_kv_st")
    a.label("L_kv_st")
    a("s_nop 7")
    a(f"v_cvt_pk_bf16_f32 v{KAC+4}, v{KAC}, v{KAC+1}")
    a(f"v_cvt_pk_bf16_f32 v{KAC+5}, v{KAC+2}, v{KAC+3}")
    a(f"buffer_store_dwordx2 {vr(KAC+4,2)}, v{vPw}, s[{sWS}:{sWS+3}], s{sOFF} offen sc1")
    stamp(a, 12)
    a("s_branch L_kv_sig")
    a.label("L_kv_gate")
    a(f"s_or_b32 s{sT0}, s{sTYPE}, s{sB}")
    a(f"s_xor_b32 s{sT1}, s{sC}, 2")
    a(f"s_or_b32 s{sT0}, s{sT0}, s{sT1}")
    a(f"s_cmp_eq_u32 s{sT0}, 0")
    a("s_cbranch_scc0 L_kv_idle")
    for sp in range(4):
        a(f"v_add_u32 v{vXk+4+sp}, 16384, v{vXk+sp}")
    def greads(sx):
        a(f"ds_read_b128 {vr(WF16+4*(sx%8),4)}, v{vGp} offset:{sx*64}")
        a(f"ds_read_b128 {vr(XF16+8*(sx%8),4)}, v{vXk+(sx%4)} offset:{(sx//4)*256}")
        a(f"ds_read_b128 {vr(XF16+8*(sx%8)+4,4)}, v{vXk+4+(sx%4)} offset:{(sx//4)*256}")
    for sx in range(D): greads(sx)
    for sx in range(16):
        rem = min(D - 1, 15 - sx)
        a(f"s_waitcnt lgkmcnt({3*rem})")
        a(f"{MF16} {vr(KAC,4)}, {vr(WF16+4*(sx%8),4)}, {vr(XF16+8*(sx%8),4)}, {vr(KAC,4) if sx else '0'}")
        a(f"{MF16} {vr(KAC+4,4)}, {vr(WF16+4*(sx%8),4)}, {vr(XF16+8*(sx%8)+4,4)}, {vr(KAC+4,4) if sx else '0'}")
        if sx + D < 16: greads(sx + D)
    a(f"v_and_b32 v{vT1}, 16, v{vL}")
    a(f"v_cmp_eq_u32 vcc, 0, v{vT1}")
    a("s_nop 6")
    a(f"v_cndmask_b32 v{KAC+8}, v{KAC+4}, v{KAC}, vcc")
    a(f"v_cvt_pk_bf16_f32 v{KAC+8}, v{KAC+8}, v{KAC+8}")
    a(f"v_lshlrev_b32 v{KAC+8}, 16, v{KAC+8}")
    a(f"s_mov_b32 s{sT2}, {hex(f2u(-math.log2(math.e)))}")
    a(f"v_mul_f32 v{KAC+8}, s{sT2}, v{KAC+8}")
    a(f"v_exp_f32 v{KAC+8}, v{KAC+8}")
    a("s_nop 0")
    a(f"v_add_f32 v{KAC+8}, 1.0, v{KAC+8}")
    a(f"v_rcp_f32 v{KAC+8}, v{KAC+8}")
    a("s_nop 0")
    a(f"v_cvt_pk_bf16_f32 v{KAC+8}, v{KAC+8}, v{KAC+8}")
    a(f"v_lshlrev_b32 v{KAC+8}, 16, v{KAC+8}")
    a(f"v_lshlrev_b32 v{KAC+9}, 2, v{vL}")
    a(f"v_cmp_gt_u32 vcc, 32, v{vL}")
    a(f"s_and_saveexec_b64 s[{sT4}:{sT5}], vcc")
    a(f"buffer_store_dword v{KAC+8}, v{KAC+9}, s[{sWS}:{sWS+3}], s{sM0} offen sc1")
    a(f"s_mov_b64 exec, s[{sT4}:{sT5}]")
    a.label("L_kv_sig")
    qaddr_setup()
    late_srds()
    a(f"v_lshl_add_u32 v{vV}, v{vH}, 4, v{vN15}")
    a(f"v_lshlrev_b32 v{vV}, 4, v{vV}")
    a(f"s_mov_b32 s{sSIG}, 1")
    a("s_branch L_sigcode")
    a.label("L_kv_idle")
    if "notlb" not in EXPT:
        a(f"s_lshl_b32 s{sT0}, s{sTB}, 16")
        a(f"v_mov_b32 v{vP1}, s{sT0}")
        a(f"global_load_dword v{vF}, v{vP1}, s[26:27]")
        a(f"s_lshl_b32 s{sT0}, s{sTB}, 17")
        a(f"s_add_u32 s{sT0}, s{sT0}, {WS_O}")
        a(f"v_mov_b32 v{vP1}, s{sT0}")
        a(f"global_load_dword v{vF+1}, v{vP1}, s[30:31]")
        a(f"s_lshr_b32 s{sT0}, s{sGI}, 1")
        a(f"s_lshl_b32 s{sT0}, s{sT0}, 8")
        a(f"v_mov_b32 v{vP1}, s{sT0}")
        a(f"global_load_dword v{vF+2}, v{vP1}, s[12:13]")
        a(f"global_load_dword v{vF+3}, v{vP1}, s[22:23]")
    qaddr_setup()
    late_srds()
    a(f"v_lshl_add_u32 v{vV}, v{vH}, 4, v{vN15}")
    a(f"v_lshlrev_b32 v{vV}, 4, v{vV}")
    a(f"v_lshrrev_b32 v{vP0}, 1, v{vL}")
    a(f"v_lshlrev_b32 v{vP0}, 7, v{vP0}")
    a(f"v_and_b32 v{vP2}, 1, v{vL}")
    a(f"v_lshl_add_u32 v{vP0}, v{vP2}, 4, v{vP0}")
    a(f"v_lshlrev_b32 v{vP2}, 2, v{vP2}")
    a(f"s_lshl_b32 s{sPA}, s{sB}, 12")
    a(f"s_add_u32 s{sPA}, s{sPA}, {WS_KF}")
    a(f"s_lshl_b32 s{sPB}, s{sTB}, 7")
    a(f"s_add_u32 s{sPB}, s{sPB}, {WS_KF + 8192}")
    a(f"v_readfirstlane_b32 s{sNONCE}, v{vNon}")
    a("s_branch L_b1")
    def signal_kv():
        a(f"s_cmp_eq_u32 s{sSIG}, 1")
        a("s_cbranch_scc0 L_nosig")
        a(f"v_readfirstlane_b32 s{sNONCE}, v{vNon}")
        a(f"s_mov_b32 s{sT1}, 0")
        a.label("L_nwait")
        a(f"s_cmp_lg_u32 s{sNONCE}, 0")
        a("s_cbranch_scc1 L_nok")
        a(f"v_mov_b32 v{vT3}, 128")
        a(f"buffer_load_dword v{vNon}, v{vT3}, s[{sDBG}:{sDBG+3}], 0 offen sc1")
        a("s_waitcnt vmcnt(0)")
        a(f"v_readfirstlane_b32 s{sNONCE}, v{vNon}")
        a(f"s_add_u32 s{sT1}, s{sT1}, 1")
        a(f"s_cmp_lt_u32 s{sT1}, {POLL_LIMIT}")
        a("s_cbranch_scc1 L_nwait")
        a.label("L_nok")
        a(f"s_cmp_eq_u32 s{sC}, 2")
        a("s_cbranch_scc1 L_fa_gate")
        a(f"s_lshl_b32 s{sT0}, s{sB}, 5")
        a(f"s_add_u32 s{sT0}, s{sT0}, s{sTB}")
        a(f"s_lshl_b32 s{sT0}, s{sT0}, 7")
        a(f"s_lshl_b32 s{sT1}, s{sTTKV}, 2")
        a(f"s_lshl_b32 s{sT2}, s{sTYPE}, 1")
        a(f"s_add_u32 s{sT1}, s{sT1}, s{sT2}")
        a(f"s_add_u32 s{sT1}, s{sT1}, s{sC}")
        a(f"s_lshl_b32 s{sT1}, s{sT1}, 2")
        a(f"s_add_u32 s{sT0}, s{sT0}, s{sT1}")
        a(f"s_add_u32 s{sT0}, s{sT0}, {WS_KF}")
        a("s_branch L_fa_j")
        a.label("L_fa_gate")
        a(f"s_lshl_b32 s{sT0}, s{sTB}, 7")
        a(f"s_lshl_b32 s{sT1}, s{sTTKV}, 2")
        a(f"s_add_u32 s{sT0}, s{sT0}, s{sT1}")
        a(f"s_add_u32 s{sT0}, s{sT0}, {WS_KF + 8192}")
        a.label("L_fa_j")
        a(f"v_mov_b32 v{RD}, 0")
        a(f"v_mov_b32 v{RD+1}, s{sNONCE}")
        a("s_waitcnt vmcnt(0)")
        a(f"v_cmp_eq_u32 vcc, 0, v{vL}")
        a(f"s_and_saveexec_b64 s[{sT4}:{sT5}], vcc")
        a(f"buffer_store_dword v{RD+1}, v{RD}, s[{sWS}:{sWS+3}], s{sT0} offen sc1")
        a(f"s_mov_b64 exec, s[{sT4}:{sT5}]")
        stamp(a, 13)
        a.label("L_nosig")
    a.label("L_sigcode")
    signal_kv()
    a("s_branch L_b1")
    a.label("L_wrole")
    a(f"v_lshrrev_b32 v{vT0}, 4, v{vL}")
    a(f"v_lshlrev_b32 v{vWq}, 2, v{vT0}")
    a(f"v_xor_b32 v{vWq}, v{vWq}, v{vN15}")
    a(f"v_lshlrev_b32 v{vWq}, 4, v{vWq}")
    a(f"v_lshl_add_u32 v{vWq}, v{vT0}, 10, v{vWq}")
    a(f"s_lshl_b32 s{sT1}, s{sHG}, 8")
    a(f"v_add_u32 v{vWq}, s{sT1}, v{vWq}")
    srd(a, sWQ, 6, 512 * 1024)
    def wq_chunk(c):
        slot = L_SLOT[c]
        for i in range(4):
            a(f"s_lshl_b32 s{sT1}, s{sC}, 12")
            a(f"s_add_u32 m0, s{sT1}, {slot + i*1024}")
            a(f"s_lshl_b32 s{sT1}, s{sC}, 14")
            a(f"s_add_u32 s{sT1}, s{sT1}, {(64*c + 4*i)*1024}")
            a(f"buffer_load_dwordx4 v{vWq}, s[{sWQ}:{sWQ+3}], s{sT1} offen lds")
    def other_rows():
        a(f"s_xor_b32 s{sT2}, s{sTTKV}, 1")
        a(f"s_lshl_b32 s{sT2}, s{sT2}, 5")
        a(f"s_add_u32 s{sT2}, s{sT2}, s{sC}")
        for i in range(8):
            xrow_dma(lambda: a(f"s_add_u32 s{sT0}, s{sT2}, {4*i}"), vT1)
    EARLY = opt("early", 0)
    nbefore = 0
    if EARLY >= 1: other_rows(); nbefore += 8
    if EARLY >= 2: wq_chunk(0); nbefore += 4
    qaddr_setup()
    late_srds()
    a(f"v_lshl_add_u32 v{vV}, v{vH}, 4, v{vN15}")
    a(f"v_lshlrev_b32 v{vV}, 4, v{vV}")
    stamp(a, 2)
    a(f"s_waitcnt vmcnt({nbefore})")
    a("s_barrier")
    stamp(a, 3)
    if "wdelay" in EXPT:
        a(f"v_mov_b32 v{vT0}, {L_CNT}")
        a.label("L_wspin")
        a(f"ds_read_b32 v{vT1}, v{vT0}")
        a("s_waitcnt lgkmcnt(0)")
        a(f"v_readfirstlane_b32 s{sT0}, v{vT1}")
        a(f"s_cmp_ge_u32 s{sT0}, {opt('wd', 4)}")
        a("s_cbranch_scc0 L_wspin")
    if EARLY < 1: other_rows()
    if EARLY < 2: wq_chunk(0)
    for c in range(1, 4): wq_chunk(c)
    stamp(a, 4)
    a("s_waitcnt vmcnt(8)")
    a.label("L_b1")
    if "kvprio" in EXPT: a("s_setprio 0")
    a("s_barrier")
    stamp(a, 5)
    def qreads(s):
        c, sp4 = s // 4, s % 4
        buf = s % 4
        va = vAa + [0, 1, 2, 3, 4, 5, 0, 1][c]
        a(f"ds_read_b64_tr_b16 {vr(AF+4*buf,2)}, v{va} offset:{sp4*4096}")
        a(f"ds_read_b64_tr_b16 {vr(AF+4*buf+2,2)}, v{va} offset:{sp4*4096+1024}")
        a(f"ds_read_b128 {vr(XF+4*buf,4)}, v{vXa + (s % 8)} offset:{(s//8)*256}")
    def qmf(s):
        buf = s % 4
        a(f"{MF} {vr(ACC,16)}, {vr(AF+4*buf,4)}, {vr(XF+4*buf,4)}, {vr(ACC,16) if s else '0'}")
    def flag_loads():
        a(f"buffer_load_dwordx4 {vr(vF,4)}, v{vP0}, s[{sWS}:{sWS+3}], s{sPA} offen sc1")
        a(f"buffer_load_dword v{vF+4}, v{vP2}, s[{sWS}:{sWS+3}], s{sPB} offen sc1")
    def flag_cmp():
        a(f"v_cmp_eq_u32 vcc, s{sNONCE}, v{vF}")
        for k in range(1, 5):
            a(f"v_cmp_eq_u32 s[{sT2}:{sT3}], s{sNONCE}, v{vF+k}")
            a(f"s_and_b64 vcc, vcc, s[{sT2}:{sT3}]")
    def first_kv():
        a(f"s_lshl_b32 s{sOFF}, s{sB}, 17")
        if WS_KV: a(f"s_add_u32 s{sOFF}, s{sOFF}, {WS_KV}")
        a(f"s_mov_b32 s{sM0}, {L_KV}")
        for i in range(8):
            a(f"s_mov_b32 m0, s{sM0}")
            a(f"s_add_u32 s{sM0}, s{sM0}, 1024")
            a(f"buffer_load_dwordx4 v{vK}, s[{sWS}:{sWS+3}], s{sOFF} offen sc1 lds")
            a(f"s_add_u32 s{sOFF}, s{sOFF}, 1024")
        a(f"s_mov_b32 s{sFOK}, 2")
    def xid_publish(tag):
        a(f"s_cmp_eq_u32 s{sNONCE}, 0")
        a(f"s_cbranch_scc1 L_xp{tag}")
        a(f"s_cmp_lg_u32 s{sXID}, 0")
        a(f"s_cbranch_scc1 L_xp{tag}")
        a(f"s_or_b32 s{sXID}, s{sNONCE}, s{sXCC}")
        a(f"s_lshl_b32 s{sT0}, s{sTB}, 7")
        a(f"s_lshl_b32 s{sT1}, s{sGI}, 2")
        a(f"s_add_u32 s{sT0}, s{sT0}, s{sT1}")
        a(f"s_add_u32 s{sT0}, s{sT0}, {WS_XI}")
        a(f"v_mov_b32 v{vP1}, 0")
        a(f"v_mov_b32 v{vF+5}, s{sXID}")
        a(f"buffer_store_dword v{vF+5}, v{vP1}, s[{sWS}:{sWS+3}], s{sT0} offen sc1")
        a.label(f"L_xp{tag}")
    def poller_step(p, check, can_first):
        lab = f"L_ps{p}"
        a(f"s_cmp_eq_u32 s{sPOLLER}, 1")
        a(f"s_cbranch_scc0 {lab}")
        xid_publish(p)
        a(f"s_cmp_lg_u32 s{sFOK}, 0")
        a(f"s_cbranch_scc1 {lab}_fok")
        if check:
            a("s_waitcnt vmcnt(0)")
            a(f"s_cmp_eq_u32 s{sNONCE}, 0")
            a(f"s_cbranch_scc1 {lab}_re")
            flag_cmp()
            a("s_cmp_eq_u64 vcc, exec")
            a(f"s_cbranch_scc0 {lab}_re")
            a(f"s_mov_b32 s{sFOK}, 1")
            a(f"s_branch {lab}_fok")
            a.label(f"{lab}_re")
            a(f"s_cmp_lg_u32 s{sNONCE}, 0")
            a(f"s_cbranch_scc1 {lab}_ld")
            a(f"v_readfirstlane_b32 s{sNONCE}, v{vNon}")
            a.label(f"{lab}_ld")
        a(f"v_mov_b32 v{vP1}, 128")
        a(f"buffer_load_dword v{vNon}, v{vP1}, s[{sDBG}:{sDBG+3}], 0 offen sc1")
        flag_loads()
        a(f"s_branch {lab}")
        a.label(f"{lab}_fok")
        if can_first:
            a(f"s_cmp_eq_u32 s{sFOK}, 1")
            a(f"s_cbranch_scc0 {lab}")
            first_kv()
        a.label(lab)
    for s_ in range(4): qreads(s_)
    a(f"s_cmp_eq_u32 s{sROLE}, 1")
    a("s_cbranch_scc1 L_c5_skip")
    wq_chunk(4)
    wq_chunk(5)
    a.label("L_c5_skip")
    for p in range(4):
        for j in range(8):
            s_ = 8 * p + j
            if j < 7:
                nxt = min(3, 7 - j)
                a(f"s_waitcnt lgkmcnt({3*nxt})")
                qmf(s_)
                if j + 4 < 8: qreads(s_ + 4)
            else:
                a("s_waitcnt lgkmcnt(0)")
                if p < 3:
                    lab = f"L_q{p}"
                    a(f"s_cmp_eq_u32 s{sROLE}, 1")
                    a(f"s_cbranch_scc1 {lab}_kv")
                    a(f"s_waitcnt vmcnt({[8, 8, 0][p]})")
                    a("s_barrier")
                    if p == 0:
                        wq_chunk(6); wq_chunk(7)
                    a(f"s_branch {lab}_j")
                    a.label(f"{lab}_kv")
                    a("s_barrier")
                    a.label(f"{lab}_j")
                    for k in range(3): qreads(8 * (p + 1) + k)
                    qmf(s_)
                    qreads(8 * (p + 1) + 3)
                    poller_step(p, check=(p > 0), can_first=(p == 2))
                    if p == 2:
                        a(f"s_cmp_eq_u32 s{sW}, 0")
                        a("s_cbranch_scc0 L_nocz")
                        a(f"v_mov_b32 v{RD}, 0")
                        a(f"ds_write_b32 v{RD}, v{RD} offset:{L_CNT3}")
                        a.label("L_nocz")
                    if "st3" in EXPT: stamp(a, 18 + p)
                else:
                    qmf(s_)
    stamp(a, 6)
    def poll(label, load, cmpcode):
        a(f"s_mov_b32 s{sT1}, 0")
        a.label(label)
        load()
        a("s_waitcnt vmcnt(0)")
        cmpcode()
        a("s_cmp_eq_u64 vcc, exec")
        a(f"s_cbranch_scc1 {label}_done")
        a(f"s_add_u32 s{sT1}, s{sT1}, 1")
        a(f"s_cmp_lt_u32 s{sT1}, {POLL_LIMIT}")
        a(f"s_cbranch_scc0 {label}_done")
        a("s_sleep 1")
        a(f"s_branch {label}")
        a.label(f"{label}_done")
    a(f"s_mov_b32 s{sT0}, {hex(f2u(CQ))}")
    a(f"v_add_u32 v{vV}, {L_KV+1024}, v{vV}")
    a(f"v_and_b32 v{vT0}, 27, v{vL}")
    a(f"v_cmp_eq_u32 vcc, 16, v{vT0}")
    a(f"v_mov_b32 v{vT1}, 0x3f803f80")
    a(f"v_add_u32 v{vV2}, 0x10000, v{vV}")
    for i in range(16):
        a(f"v_cndmask_b32 v{V0+i}, 0, v{vT1}, vcc")
    a(f"s_mov_b32 s{sT1}, s{sT0}")
    for i in range(0, 16, 2):
        a(f"v_pk_mul_f32 {vr(ACC+i,2)}, {vr(ACC+i,2)}, s[{sT0}:{sT1}]")
    for j in range(4):
        a(f"v_cvt_pk_bf16_f32 v{QA+j}, v{ACC+2*j}, v{ACC+2*j+1}")
        a(f"v_cvt_pk_bf16_f32 v{QB+j}, v{ACC+8+2*j}, v{ACC+8+2*j+1}")
    a(f"s_cmp_eq_u32 s{sPOLLER}, 1")
    a("s_cbranch_scc0 L_nopoll")
    a(f"s_cmp_eq_u32 s{sFOK}, 2")
    a("s_cbranch_scc1 L_nopoll")
    a(f"s_cmp_eq_u32 s{sFOK}, 1")
    a("s_cbranch_scc1 L_dofirst")
    a("s_waitcnt vmcnt(0)")
    a(f"s_cmp_lg_u32 s{sNONCE}, 0")
    a("s_cbranch_scc0 L_getnonce")
    flag_cmp()
    a("s_cmp_eq_u64 vcc, exec")
    a("s_cbranch_scc1 L_dofirst")
    a("s_branch L_havenonce")
    a.label("L_getnonce")
    a(f"v_readfirstlane_b32 s{sNONCE}, v{vNon}")
    a(f"v_mov_b32 v{vP1}, 128")
    def ldn(): a(f"buffer_load_dword v{vNon}, v{vP1}, s[{sDBG}:{sDBG+3}], 0 offen sc1")
    def cmpn(): a(f"v_cmp_ne_u32 vcc, 0, v{vNon}")
    a(f"s_cmp_lg_u32 s{sNONCE}, 0")
    a("s_cbranch_scc1 L_havenonce")
    poll("L_polln", ldn, cmpn)
    a(f"v_readfirstlane_b32 s{sNONCE}, v{vNon}")
    a.label("L_havenonce")
    poll("L_poll", flag_loads, flag_cmp)
    a.label("L_dofirst")
    first_kv()
    a.label("L_nopoll")
    a(f"s_cmp_eq_u32 s{sPOLLER}, 1")
    a("s_cbranch_scc0 L_noxp")
    xid_publish(9)
    a.label("L_noxp")
    for i in range(0, 16, 2):
        a(f"v_pk_mov_b32 {vr(OA+i,2)}, 0, 0")
        a(f"v_pk_mov_b32 {vr(OB+i,2)}, 0, 0")
    a(f"v_lshrrev_b32 v{vT0}, 2, v{vL}")
    a(f"v_and_b32 v{vT1}, 3, v{vL}")
    a(f"v_lshlrev_b32 v{vT1}, 4, v{vT1}")
    a(f"v_lshl_add_u32 v{vWO}, v{vT0}, 10, v{vT1}")
    a(f"s_lshr_b32 s{sT0}, s{sGI}, 1")
    a(f"s_lshl_b32 s{sT0}, s{sT0}, 8")
    a(f"s_lshl_b32 s{sT1}, s{sC}, 6")
    a(f"s_add_u32 s{sT0}, s{sT0}, s{sT1}")
    a(f"v_add_u32 v{vWO}, s{sT0}, v{vWO}")
    a(f"v_lshrrev_b32 v{vT1}, 2, v{vN15}")
    a(f"v_lshl_add_u32 v{vT1}, v{vH}, 2, v{vT1}")
    a(f"v_lshlrev_b32 v{vWOr}, 6, v{vT1}")
    a(f"v_bfe_u32 v{vT1}, v{vL}, 4, 1")
    a(f"v_lshl_add_u32 v{vWOr}, v{vT1}, 5, v{vWOr}")
    a(f"v_and_b32 v{vT0}, 3, v{vN15}")
    a(f"v_lshl_add_u32 v{vWOr}, v{vT0}, 3, v{vWOr}")
    a(f"s_lshl_b32 s{sT0}, s{sW}, 12")
    a(f"v_add_u32 v{vWOr}, s{sT0}, v{vWOr}")
    a(f"v_mov_b32 v{IDX}, 0xdddddddd")
    a(f"s_lshl_b32 s{sOFF}, s{sB}, 17")
    a(f"s_add_u32 s{sOFF}, s{sOFF}, {WS_KV + 8192}")
    a(f"s_lshl_b32 s{sM0}, s{sC}, 11")
    a(f"s_add_u32 s{sOFF}, s{sOFF}, s{sM0}")
    a(f"s_add_u32 s{sM0}, s{sM0}, {L_KV + 8192}")
    vKd = 253
    a(f"v_mov_b32 v{vKd}, v{vK}")
    a(f"v_add_u32 v{vK}, {L_KV}, v{vK}")
    a(f"v_add_u32 v{vK2}, 0x10000, v{vK}")
    a(f"s_mov_b32 s{sPASS}, 1")
    a(f"s_lshr_b32 s{sKVI}, s{sW}, 2")
    a(f"v_and_b32 v{vG}, 31, v{vL}")
    a(f"v_lshlrev_b32 v{vG}, 2, v{vG}")
    a(f"s_lshl_b32 s{sT2}, s{sTB}, 1")
    a(f"s_add_u32 s{sT2}, s{sT2}, s{sTT}")
    a(f"s_lshl_b32 s{sT2}, s{sT2}, 7")
    a(f"s_add_u32 s{sT2}, s{sT2}, {WS_G}")
    a("s_waitcnt vmcnt(0)")
    a("s_barrier")
    stamp(a, 7)
    def kv_step():
        a(f"s_mov_b32 m0, s{sM0}")
        a(f"s_add_u32 s{sT0}, s{sOFF}, 1024")
        a(f"buffer_load_dwordx4 v{vKd}, s[{sWS}:{sWS+3}], s{sOFF} offen sc1 lds")
        a(f"s_add_u32 m0, s{sM0}, 1024")
        a(f"s_add_u32 s{sM0}, s{sM0}, 8192")
        a(f"buffer_load_dwordx4 v{vKd}, s[{sWS}:{sWS+3}], s{sT0} offen sc1 lds")
        a(f"s_add_u32 s{sOFF}, s{sOFF}, 8192")
    a(f"buffer_load_dword v{vG}, v{vG}, s[{sWS}:{sWS+3}], s{sT2} offen sc1")
    def ldK(buf, t):
        va = vK if t < 32 else vK2
        a(f"ds_read_b128 {vr(KB+4*buf,4)}, v{va} offset:{(t % 32)*2048}")
    def ldV(buf, t):
        va = vV if t < 32 else vV2
        off = (t % 32) * 2048
        a(f"s_mov_b64 exec, s[{sVM}:{sVM+1}]")
        a(f"ds_read_b128 {vr(V0+4*buf,4)}, v{va} offset:{off}")
        a(f"ds_read_b128 {vr(V1+4*buf,4)}, v{va} offset:{off+512}")
        a("s_mov_b64 exec, -1")
    def neg_bcast(C, m):
        for i in range(0, 16, 2):
            a(f"v_pk_mul_f32 {vr(C+i,2)}, {vr(m,2)}, -1.0 op_sel_hi:[0,0]")
    def crosshalf_max(m, t):
        a(f"v_mov_b32 v{t}, v{m}")
        a("s_nop 1")
        a(f"v_permlane32_swap_b32 v{m}, v{t}")
        a("s_nop 1")
        a(f"v_max_f32 v{m}, v{m}, v{t}")
    def rowmax(S, m):
        a(f"v_max3_f32 v{m}, v{S}, v{S+1}, v{S+2}")
        for i in range(3, 15, 2):
            a(f"v_max3_f32 v{m}, v{m}, v{S+i}, v{S+i+1}")
        a(f"v_max_f32 v{m}, v{m}, v{S+15}")
    M0r, M1r, M2r, M3r = WOA, WOA + 1, WOA + 2, WOA + 3
    ldK(0, 0)
    ldK(1, 1)
    ldV(0, 0)
    a("s_waitcnt lgkmcnt(3)")
    a(f"{MF} {vr(SA,16)}, {vr(KB,4)}, {vr(QA,4)}, 0")
    a(f"{MF} {vr(SB,16)}, {vr(KB,4)}, {vr(QB,4)}, 0")
    for i in range(8, 16, 2):
        pass
    a("s_nop 10")
    rowmax(SA, M0r); rowmax(SB, M2r)
    crosshalf_max(M0r, M1r); crosshalf_max(M2r, M3r)
    neg_bcast(CA, M0r); neg_bcast(CB, M2r)
    a("s_branch L_go")
    a.label("L_restart")
    for i in range(0, 16, 2):
        a(f"v_pk_mov_b32 {vr(OA+i,2)}, 0, 0")
        a(f"v_pk_mov_b32 {vr(OB+i,2)}, 0, 0")
    ldK(0, 0)
    ldK(1, 1)
    ldV(0, 0)
    a.label("L_go")
    for i in range(8, 16, 2):
        a(f"v_pk_mov_b32 {vr(SB+i,2)}, 0, 0")
    a("s_waitcnt lgkmcnt(0)")
    a(f"{MF} {vr(SA,16)}, {vr(KB,4)}, {vr(QA,4)}, {vr(CA,16)}")
    if "noprio" not in EXPT:
        a(f"s_cmp_ge_u32 s{sW}, 4")
        a("s_cbranch_scc0 L_noprio0")
        a("s_setprio 1")
        a.label("L_noprio0")
    a("s_nop 7")
    a("s_nop 1")
    stamp(a, 9)
    def ex(S, i): a(f"v_exp_f32 v{S+i}, v{S+i}")
    T0W = 16
    def wo_dma(f):
        a(f"s_lshl_b32 s{sT0}, s{sW}, 12")
        a(f"s_add_u32 m0, s{sT0}, {L_WOST + (f % 3)*1024}")
        a(f"s_mov_b32 s{sT1}, {f*16384}")
        a(f"buffer_load_dwordx4 v{vWO}, s[{sWO}:{sWO+3}], s{sT1} offen lds")
    def wo_read(f, dst):
        a(f"ds_read_b64_tr_b16 {vr(dst,2)}, v{vWOr} offset:{L_WOST + (f % 3)*1024}")
        a(f"ds_read_b64_tr_b16 {vr(dst+2,2)}, v{vWOr} offset:{L_WOST + (f % 3)*1024 + 512}")
    PSW = opt("psw", 53)
    for t in range(64):
        p = t & 1
        def sync(k, n):
            a(f"s_cmp_eq_u32 s{sPASS}, 1")
            a(f"s_cbranch_scc0 L_sy{k}_done")
            a(f"s_cmp_ge_u32 s{sW}, 4")
            a(f"s_cbranch_scc0 L_sy{k}_spin")
            if n is not None: a(f"s_waitcnt vmcnt({n})")
            a(f"v_mov_b32 v254, 1")
            a("s_mov_b64 exec, 1")
            a(f"ds_add_u32 v{vKd}, v254 offset:{L_CNT3}")
            a("s_mov_b64 exec, -1")
            a.label(f"L_sy{k}_spin")
            a(f"ds_read_b32 v254, v{vKd} offset:{L_CNT3}")
            a("s_waitcnt lgkmcnt(0)")
            a(f"v_readfirstlane_b32 s{sT0}, v254")
            a(f"s_cmp_ge_u32 s{sT0}, {4*k}")
            a(f"s_cbranch_scc0 L_sy{k}_spin")
            a.label(f"L_sy{k}_done")
        if t == 2:  sync(1, 2)
        if t == 6:  sync(2, 6)
        if t == 14: sync(3, 14)
        if t == 30: sync(4, None)
        if t == PSW and "noprio" not in EXPT:
            a("s_setprio 0")
        ex(SA, 0); ex(SA, 1)
        a(f"{SM} {vr(OB,16)}, {vr(V1+4*(p^1),4)}, {vr(SB+8,8)}, v{IDX}")
        ex(SA, 2); ex(SA, 3); ex(SA, 4)
        a(f"{MF} {vr(SB,16)}, {vr(KB+4*p,4)}, {vr(QB,4)}, {vr(CB,16)}")
        nld = 0
        if t + 2 < 64: ldK(p, t + 2); nld += 1
        if t + 1 < 64: ldV(p ^ 1, t + 1); nld += 2
        for i in range(5, 10): ex(SA, i)
        a(f"s_waitcnt lgkmcnt({nld})")
        a(f"{SM} {vr(OA,16)}, {vr(V0+4*p,4)}, {vr(SA,8)}, v{IDX}")
        for i in range(10, 13): ex(SA, i)
        if t <= 14:
            a(f"s_cmp_eq_u32 s{sKVI}, 1")
            a(f"s_cbranch_scc0 L_nokv{t}")
            kv_step()
            a.label(f"L_nokv{t}")
        if t == 48:
            a(f"v_and_b32 v254, 7, v{vL}")
            a(f"v_lshlrev_b32 v254, 2, v254")
            a(f"s_lshl_b32 s{sT0}, s{sTB}, 7")
            a(f"s_add_u32 s{sT0}, s{sT0}, {WS_XI}")
            a(f"buffer_load_dword v253, v254, s[{sWS}:{sWS+3}], s{sT0} offen sc1")
            a(f"v_mov_b32 v254, 128")
            a(f"buffer_load_dword v254, v254, s[{sDBG}:{sDBG+3}], 0 offen sc1")
        fd = t - T0W
        if 0 <= fd < NFR: wo_dma(fd)
        for i in range(13, 16): ex(SA, i)
        ex(SB, 0); ex(SB, 1)
        a(f"{SM} {vr(OA,16)}, {vr(V1+4*p,4)}, {vr(SA+8,8)}, v{IDX}")
        ex(SB, 2); ex(SB, 3); ex(SB, 4)
        if t + 1 < 64:
            a(f"{MF} {vr(SA,16)}, {vr(KB+4*(p^1),4)}, {vr(QA,4)}, {vr(CA,16)}")
        else:
            a("s_nop 0")
        for i in range(5, 8): ex(SB, i)
        fr = t - T0W - 2
        if 0 <= fr < NFR:
            outstanding_after = min(fd, NFR - 1) - fr
            a(f"s_waitcnt vmcnt({outstanding_after})")
            wo_read(fr, WOA + 4 * fr)
        for i in range(8, 10): ex(SB, i)
        a(f"{SM} {vr(OB,16)}, {vr(V0+4*p,4)}, {vr(SB,8)}, v{IDX}")
        for i in range(10, 16): ex(SB, i)
    a("s_nop 1")
    a(f"{SM} {vr(OB,16)}, {vr(V1+4,4)}, {vr(SB+8,8)}, v{IDX}")
    for f in range(NFR, 32): wo_dma(f)
    TT = SA
    a(f"s_waitcnt vmcnt({32 - NFR})")
    a(f"s_nop 0")
    a(f"v_or_b32 v254, s{sXCC}, v254")
    a(f"v_cmp_eq_u32 vcc, v253, v254")
    a(f"s_cmp_eq_u64 vcc, exec")
    a(f"s_cselect_b32 s{sFAST}, 1, 0")
    if "nofast" in EXPT: a(f"s_mov_b32 s{sFAST}, 0")
    a(f"v_sub_f32 v{TT+2}, 1.0, v{vG}")
    a(f"v_cvt_pk_bf16_f32 v{TT+2}, v{TT+2}, v{TT+2}")
    a(f"v_lshlrev_b32 v{TT+2}, 16, v{TT+2}")
    a(f"s_cmp_eq_u32 s{sB}, 0")
    a(f"s_cselect_b64 s[{sLM}:{sLM+1}], -1, 0")
    a(f"v_cndmask_b32 v{TT+2}, v{TT+2}, v{vG}, s[{sLM}:{sLM+1}]")
    stamp(a, 10)
    a(f"v_mul_f32 v{TT}, 0, v{OA}")
    for i in range(1, 8): a(f"v_fma_f32 v{TT}, v{OA+i}, 0, v{TT}")
    for i in range(0, 8): a(f"v_fma_f32 v{TT}, v{OB+i}, 0, v{TT}")
    a(f"v_max_f32 v{TT+1}, v{OA+8}, v{OB+8}")
    a(f"v_add_f32 v{TT}, v{TT}, v{TT+1}")
    a(f"s_mov_b32 s{sT0}, {hex(f2u(2.0**60))}")
    a(f"v_cmp_gt_f32 vcc, s{sT0}, v{TT}")
    a(f"s_cmp_eq_u32 s{sPASS}, 2")
    a("s_cbranch_scc1 L_fin")
    a("s_cmp_eq_u64 vcc, exec")
    a("s_cbranch_scc1 L_fin")
    a(f"s_mov_b32 s{sPASS}, 2")
    a(f"s_mov_b32 s{sKVI}, 0")
    FM0, FM1, FM2, FM3 = KB + 4, KB + 5, KB + 6, KB + 7
    a(f"v_mov_b32 v{FM0}, 0xff800000")
    a(f"v_mov_b32 v{FM2}, 0xff800000")
    a(f"v_mov_b32 v{FM1}, v{vK}")
    a(f"s_mov_b32 s{sT0}, 0")
    a.label("L_maxloop")
    a(f"ds_read_b128 {vr(KB,4)}, v{FM1}")
    a("s_waitcnt lgkmcnt(0)")
    a(f"{MF} {vr(SA,16)}, {vr(KB,4)}, {vr(QA,4)}, 0")
    a(f"{MF} {vr(SB,16)}, {vr(KB,4)}, {vr(QB,4)}, 0")
    a("s_nop 15")
    for i in range(0, 16, 2):
        a(f"v_max3_f32 v{FM0}, v{FM0}, v{SA+i}, v{SA+i+1}")
        a(f"v_max3_f32 v{FM2}, v{FM2}, v{SB+i}, v{SB+i+1}")
    a(f"v_add_u32 v{FM1}, 2048, v{FM1}")
    a(f"s_add_u32 s{sT0}, s{sT0}, 1")
    a(f"s_cmp_lt_u32 s{sT0}, 64")
    a("s_cbranch_scc1 L_maxloop")
    crosshalf_max(FM0, FM1); crosshalf_max(FM2, FM3)
    neg_bcast(CA, FM0); neg_bcast(CB, FM2)
    a("s_waitcnt vmcnt(0)")
    a("s_branch L_restart")
    a.label("L_fin")
    a(f"v_rcp_f32 v{TT}, v{OA+8}")
    a(f"v_rcp_f32 v{TT+1}, v{OB+8}")
    a("s_nop 0")
    a(f"v_mul_f32 v{TT}, v{TT}, v{TT+2}")
    a(f"v_mul_f32 v{TT+1}, v{TT+1}, v{TT+2}")
    for i in range(8):
        a(f"v_mul_f32 v{OA+i}, v{TT}, v{OA+i}")
        a(f"v_mul_f32 v{OB+i}, v{TT+1}, v{OB+i}")
    for j in range(4):
        a(f"v_cvt_pk_bf16_f32 v{SA+4+j}, v{OA+2*j}, v{OA+2*j+1}")
        a(f"v_cvt_pk_bf16_f32 v{SA+8+j}, v{OB+2*j}, v{OB+2*j+1}")
    a(f"s_lshl_b32 s{sT0}, s{sTB}, 1")
    a(f"s_add_u32 s{sT0}, s{sT0}, s{sTT}")
    a(f"s_lshl_b32 s{sT0}, s{sT0}, 6")
    a(f"s_lshl_b32 s{sT1}, s{sGI}, 3")
    a(f"s_add_u32 s{sT0}, s{sT0}, s{sT1}")
    a(f"s_lshl_b32 s{sT1}, s{sC}, 1")
    a(f"s_add_u32 s{sT0}, s{sT0}, s{sT1}")
    a(f"s_lshl_b32 s{sT0}, s{sT0}, 10")
    a(f"s_add_u32 s{sT0}, s{sT0}, {WS_O}")
    vS = SB
    a(f"v_lshlrev_b32 v{vS}, 4, v{vL}")
    a(f"s_cmp_eq_u32 s{sFAST}, 1")
    a("s_cbranch_scc1 L_ost_fast")
    if "slowtest" in EXPT:
        a(f"s_mov_b32 s{sT1}, 200")
        a.label("L_slowtest")
        a("s_sleep 3")
        a(f"s_sub_u32 s{sT1}, s{sT1}, 1")
        a(f"s_cmp_lg_u32 s{sT1}, 0")
        a("s_cbranch_scc1 L_slowtest")
    a(f"buffer_store_dwordx4 {vr(SA+4,4)}, v{vS}, s[{sWS}:{sWS+3}], s{sT0} offen sc1")
    a(f"buffer_store_dwordx4 {vr(SA+8,4)}, v{vS}, s[{sWS}:{sWS+3}], s{sT0} offen offset:1024 sc1")
    a("s_branch L_ost_j")
    a.label("L_ost_fast")
    fl = "nt" if "fastnt" in EXPT else ("sc0" if "fastsc0" in EXPT else "")
    a(f"buffer_store_dwordx4 {vr(SA+4,4)}, v{vS}, s[{sWS}:{sWS+3}], s{sT0} offen {fl}")
    a(f"buffer_store_dwordx4 {vr(SA+8,4)}, v{vS}, s[{sWS}:{sWS+3}], s{sT0} offen offset:1024 {fl}")
    a.label("L_ost_j")
    a("s_waitcnt vmcnt(2)")
    XFR = {}
    for k, f in enumerate(range(NFR, 32)):
        XFR[f] = [KB, KB + 4, V0][k]
        wo_read(f, XFR[f])
    a(f"s_and_b32 s{sT2}, s{sGI}, 1")
    a(f"s_lshl_b32 s{sT3}, s{sTB}, 1")
    a(f"s_add_u32 s{sT3}, s{sT3}, s{sT2}")
    a(f"s_lshl_b32 s{sT4}, s{sTT}, 5")
    a(f"s_lshl_b32 s{sT5}, s{sC}, 1")
    a(f"s_add_u32 s{sT4}, s{sT4}, s{sT5}")
    a(f"s_lshl_b32 s{sM0}, s{sT4}, 10")
    a(f"s_lshl_b32 s{sOFF}, s{sT3}, 16")
    a(f"s_add_u32 s{sOFF}, s{sOFF}, s{sM0}")
    a(f"s_add_u32 s{sOFF}, s{sOFF}, {WS_O}")
    a(f"s_add_u32 s{sM0}, s{sM0}, {L_KV}")
    vB = SB + 6
    a(f"s_lshl_b32 s{sT4}, s{sTT}, 15")
    a(f"s_add_u32 s{sT4}, s{sT4}, {L_KV}")
    a(f"v_add_u32 v{vB}, s{sT4}, v{vS}")
    vO = SB + 7
    a(f"v_and_b32 v{vO}, 31, v{vL}")
    a(f"s_lshl_b32 s{sT3}, s{sT3}, 5")
    a(f"v_add_u32 v{vO}, s{sT3}, v{vO}")
    a(f"v_lshlrev_b32 v{vO}, 10, v{vO}")
    a(f"v_lshrrev_b32 v{SB+3}, 5, v{vL}")
    a(f"v_lshl_add_u32 v{vO}, v{SB+3}, 4, v{vO}")
    a(f"s_lshr_b32 s{sT2}, s{sGI}, 1")
    a(f"s_lshl_b32 s{sT2}, s{sT2}, 8")
    a(f"s_lshl_b32 s{sT3}, s{sC}, 6")
    a(f"s_add_u32 s{sT2}, s{sT2}, s{sT3}")
    a(f"s_lshl_b32 s{sT3}, s{sTT}, 5")
    a(f"s_add_u32 s{sT2}, s{sT2}, s{sT3}")
    a(f"v_add_u32 v{vO}, s{sT2}, v{vO}")
    vXw, vXr = SB + 3, SB + 4
    a(f"s_lshl_b32 s{sT0}, s{sW}, 11")
    a(f"v_add_u32 v{vXw}, s{sT0}, v{vS}")
    a(f"s_xor_b32 s{sT1}, s{sW}, 4")
    a(f"s_lshl_b32 s{sT1}, s{sT1}, 11")
    a(f"v_add_u32 v{vXr}, s{sT1}, v{vS}")
    a("s_waitcnt vmcnt(0)")
    a("s_barrier")
    stamp(a, 11)
    a(f"s_cmp_eq_u32 s{sPOLLER}, 1")
    a("s_cbranch_scc0 L_nosig2")
    a(f"s_lshl_b32 s{sT0}, s{sTB}, 7")
    a(f"s_add_u32 s{sT0}, s{sT0}, {WS_F}")
    a(f"s_lshl_b32 s{sT1}, s{sGI}, 2")
    a(f"v_mov_b32 v{SB+1}, s{sT1}")
    a(f"v_mov_b32 v{SB+2}, s{sNONCE}")
    a(f"v_cmp_eq_u32 vcc, 0, v{vL}")
    a(f"s_and_saveexec_b64 s[{sT4}:{sT5}], vcc")
    a(f"s_cmp_eq_u32 s{sFAST}, 1")
    a("s_cbranch_scc1 L_fst_fast")
    a(f"buffer_store_dword v{SB+2}, v{SB+1}, s[{sWS}:{sWS+3}], s{sT0} offen sc1")
    a("s_branch L_fst_j")
    a.label("L_fst_fast")
    a(f"buffer_store_dword v{SB+2}, v{SB+1}, s[{sWS}:{sWS+3}], s{sT0} offen")
    a.label("L_fst_j")
    a(f"s_mov_b64 exec, s[{sT4}:{sT5}]")
    a(f"v_and_b32 v{SB+1}, 7, v{vL}")
    a(f"v_lshlrev_b32 v{SB+1}, 2, v{SB+1}")
    def ld2(): a(f"buffer_load_dword v{SB+2}, v{SB+1}, s[{sWS}:{sWS+3}], s{sT0} offen sc1")
    def cmp2(): a(f"v_cmp_eq_u32 vcc, s{sNONCE}, v{SB+2}")
    poll("L_poll2", ld2, cmp2)
    a.label("L_nosig2")
    a("s_barrier")
    stamp(a, 14)
    def o_dma(q):
        for i in range(2):
            a(f"s_add_u32 m0, s{sM0}, {(8*q+i)*1024}")
            a(f"s_add_u32 s{sT0}, s{sOFF}, {(8*q+i)*1024}")
            a(f"buffer_load_dwordx4 v{vS}, s[{sWS}:{sWS+3}], s{sT0} offen sc1 lds")
    o_dma(0); o_dma(1)
    ACC3 = OA
    BF = CA
    def afr(s): return XFR[s] if s in XFR else WOA + 4 * s
    for q in range(4):
        a(f"s_waitcnt vmcnt({[2, 4, 2, 0][q]})")
        if q == 0:
            pass
        a("s_barrier")
        if q == 0:
            stamp(a, 15)
        for i in range(8):
            a(f"ds_read_b128 {vr(BF+4*i,4)}, v{vB} offset:{(8*q+i)*1024}")
        if q == 0:
            o_dma(2); o_dma(3)
        for i in range(8):
            a(f"s_waitcnt lgkmcnt({7-i})")
            a(f"{MF} {vr(ACC3,16)}, {vr(afr(8*q+i),4)}, {vr(BF+4*i,4)}, {vr(ACC3,16) if (q or i) else '0'}")
    stamp(a, 16)
    a("s_nop 15")
    a(f"s_cmp_eq_u32 s{sTT}, 0")
    a("s_cbranch_scc0 L_x_b1")
    a(f"ds_write_b128 v{vXw}, {vr(ACC3+8,4)} offset:{L_XCH}")
    a(f"ds_write_b128 v{vXw}, {vr(ACC3+12,4)} offset:{L_XCH+1024}")
    a("s_waitcnt lgkmcnt(0)")
    a("s_barrier")
    a(f"ds_read_b128 {vr(CB,4)}, v{vXr} offset:{L_XCH}")
    a(f"ds_read_b128 {vr(CB+4,4)}, v{vXr} offset:{L_XCH+1024}")
    a("s_waitcnt lgkmcnt(0)")
    for i in range(0, 8, 2):
        a(f"v_pk_add_f32 {vr(CB+i,2)}, {vr(CB+i,2)}, {vr(ACC3+i,2)}")
    a("s_branch L_x_j")
    a.label("L_x_b1")
    a(f"ds_write_b128 v{vXw}, {vr(ACC3,4)} offset:{L_XCH}")
    a(f"ds_write_b128 v{vXw}, {vr(ACC3+4,4)} offset:{L_XCH+1024}")
    a("s_waitcnt lgkmcnt(0)")
    a("s_barrier")
    a(f"ds_read_b128 {vr(CB,4)}, v{vXr} offset:{L_XCH}")
    a(f"ds_read_b128 {vr(CB+4,4)}, v{vXr} offset:{L_XCH+1024}")
    a("s_waitcnt lgkmcnt(0)")
    for i in range(0, 8, 2):
        a(f"v_pk_add_f32 {vr(CB+i,2)}, {vr(CB+i,2)}, {vr(ACC3+8+i,2)}")
    a.label("L_x_j")
    R = SA + 4
    for i in range(0, 8, 2):
        a(f"v_cvt_pk_bf16_f32 v{R+i//2}, v{CB+i}, v{CB+i+1}")
    a("s_nop 1")
    a(f"v_permlane32_swap_b32 v{R}, v{R+2}")
    a(f"v_permlane32_swap_b32 v{R+1}, v{R+3}")
    a(f"buffer_store_dwordx4 {vr(R,4)}, v{vO}, s[{sOUT}:{sOUT+3}], 0 offen {'sc1' if 'osc1' in EXPT else ''} {'nt' if 'ont' in EXPT else ''} {'sc0 sc1' if 'osys' in EXPT else ''}")
    if PROF:
        a("s_waitcnt vmcnt(0)")
        stamp(a, 17)
        stamp_rt(a, 31)
        stamp_flush(a, vL, SB + 3)
    a.label("L_end")
    a("s_endpgm")
    return a, kdesc(KNAME, 256)

def build(path):
    ref = open("cdna_kernels/" + NAME + ".s.ref").read().split("\n")
    hdr = [l for l in ref if l.startswith(";") and "@launch" not in l and "Override launch" not in l and "grid=ceil" not in l][:16]
    k, d = gen_fused()
    errs = check(k.lines, "fused")
    for e in errs[:10]: print("HAZARD", e)
    out = "\n".join(hdr) + "\n"
    out += "; @launch grid=(256,1,1) block=(512,1,1) lds=163840\n"
    out += '.amdgcn_target "amdgcn-amd-amdhsa--gfx950"\n.text\n'
    out += k.text()
    out += '.section .rodata,"a"\n.p2align 6\n' + d
    open(path, "w").write(out)
    return len(errs)

if __name__ == "__main__":
    for arg in list(sys.argv):
        if arg.startswith("--x="):
            EXPT.update(arg[4:].split(",")); sys.argv.remove(arg)
    if "--prof" in sys.argv:
        PROF = True; sys.argv.remove("--prof")
    p = sys.argv[1] if len(sys.argv) > 1 else "f4.s"
    n = build(p)
    print("written", p, "hazards:", n)
```

```python
import sys, math, struct
from asmlib import *

NAME = "gated_mix__grouped_kv_mqa__grouped_kv_mqa__prompt"
KNAME = NAME + "_kernel"
WS_KV = 0
WS_G = 256 << 10
WS_F = 512 << 10
WS_KF = WS_F + 8192
WS_XI = WS_KF + 16384
WS_O = 1 << 20
WS_SIZE = 16 << 20
WS_PROF = 13 << 20
CQ = 0.25 * math.log2(math.e)
def f2u(f): return struct.unpack("<I", struct.pack("<f", f))[0]
MF = "v_mfma_f32_32x32x16_bf16"
SM = "v_smfmac_f32_32x32x32_bf16"
MF16 = "v_mfma_f32_16x16x32_bf16"
PROF = False
EXPT = set()
def opt(name, default):
    for x in EXPT:
        if x.startswith(name + "="): return int(x[len(name) + 1:])
    return default

L_PART = 16 << 10
L_GW = L_PART
L_WKV = 32 << 10
L_X = 48 << 10
L_KV = 32 << 10
L_SLOT = [0, 112 << 10, 128 << 10, 144 << 10, L_WKV, L_PART, 0, 112 << 10]
L_WOST = 0
L_XCH = 0
L_CNT3 = 7 * 4096 + 3072
L_CNT = L_PART + 4096 + 3072

sX, sWQ, sWKV, sWS, sDBG, sWO, sOUT, sGW = 32, 36, 40, 44, 48, 52, 56, 60
sW, sB, sHG, sTB, sGI, sTT, sC, sTTKV = 64, 65, 66, 67, 68, 69, 70, 71
sVM = 72
sPASS, sROLE, sTYPE, sNONCE = 74, 75, 76, 77
sT0, sT1, sT2, sT3, sT4, sT5 = 78, 79, 80, 81, 82, 83
sM0, sOFF = 84, 85
sTBOFF = 86
sSIG = 87
sPOLLER, sFOK = 92, 93
sPA, sPB = 94, 95
sKVI = 96
sXCC, sFAST, sXID = 97, 98, 99
sLM = 88

def srd(a, d, base, nbytes):
    a(f"s_mov_b32 s{d}, s{base}")
    a(f"s_and_b32 s{d+1}, s{base+1}, 0xffff")
    a(f"s_mov_b32 s{d+2}, {nbytes}")
    a(f"s_mov_b32 s{d+3}, 0x20000")

def kdesc(name, vgpr, sgpr=100, accum=None):
    if accum is None: accum = (vgpr + 3) // 4 * 4
    return f""".amdhsa_kernel {name}
  .amdhsa_next_free_vgpr {vgpr}
  .amdhsa_next_free_sgpr {sgpr}
  .amdhsa_accum_offset {accum}
  .amdhsa_group_segment_fixed_size 0
  .amdhsa_kernarg_size 112
  .amdhsa_user_sgpr_count 2
  .amdhsa_user_sgpr_kernarg_segment_ptr 1
  .amdhsa_system_sgpr_workgroup_id_x 1
  .amdhsa_float_denorm_mode_32 3
.end_amdhsa_kernel
"""
def header(a, name):
    a.raw(f".globl {name}"); a.raw(".p2align 8"); a.raw(f".type {name},@function"); a.label(name)

VST = 0
def stamp(a, idx):
    if PROF:
        a("s_memtime s[90:91]")
        a("s_waitcnt lgkmcnt(0)")
        a(f"v_writelane_b32 v{VST}, s90, {idx}")
def stamp_rt(a, idx):
    if PROF:
        a("s_memrealtime s[90:91]")
        a("s_waitcnt lgkmcnt(0)")
        a(f"v_writelane_b32 v{VST}, s90, {idx}")
def stamp_flush(a, vL, vtmp0):
    if not PROF: return
    a(f"s_lshl_b32 s{sT0}, s2, 3")
    a(f"s_add_u32 s{sT0}, s{sT0}, s{sW}")
    a(f"s_lshl_b32 s{sT0}, s{sT0}, 7")
    a(f"s_add_u32 s{sT0}, s{sT0}, {WS_PROF}")
    a(f"v_lshlrev_b32 v{vtmp0}, 2, v{vL}")
    a(f"v_cmp_gt_u32 vcc, 32, v{vL}")
    a(f"s_and_saveexec_b64 s[{sT4}:{sT5}], vcc")
    a(f"buffer_store_dword v{VST}, v{vtmp0}, s[{sWS}:{sWS+3}], s{sT0} offen")
    a(f"s_mov_b64 exec, s[{sT4}:{sT5}]")
    a("s_waitcnt vmcnt(0)")

POLL_LIMIT = 0x40000

def gen_fused():
    a = Asm()
    header(a, KNAME)
    vL, vK, vV = 1, 2, 3
    QA, QB = 4, 8
    CA, CB = 12, 28
    SA, SB = 44, 60
    OA, OB = 76, 92
    KB = 108; V0 = 116; V1 = 124
    vK2, vV2, vWO, vWOr = 132, 133, 134, 135
    IDX = 0; NFR = 29; vG = 252
    WOA = 136
    if PROF:
        IDX = 255
    vT0, vT1, vT2, vT3 = 12, 13, 14, 15
    vH = 16; vN15 = 17; vXb = 18; vXt = 19
    vXa = 20
    vAa = 28
    vWq = 34; vE = 35; vGp = 36; vPw = 37
    ACC = 44
    EAC = 60
    AF = 76
    XF = 92
    WF, XFF = 136, 168
    vP0, vP1, vP2, vF = 240, 241, 242, 244
    RD = 200

    a("s_cmp_ge_u32 s2, 256")
    a("s_cbranch_scc1 L_end")
    a("s_load_dwordx8 s[4:11], s[0:1], 0")
    a("s_load_dwordx2 s[12:13], s[0:1], 32")
    a("s_load_dwordx8 s[16:23], s[0:1], 48")
    a("s_load_dwordx8 s[24:31], s[0:1], 80")
    a(f"v_lshrrev_b32 v{vT0}, 6, v0")
    a(f"v_and_b32 v{vL}, 63, v0")
    a(f"v_readfirstlane_b32 s{sW}, v{vT0}")
    if "cpf" in EXPT:
        a("s_lshr_b32 s90, s2, 4")
        a(f"s_xor_b32 s91, s{sW}, 7")
        a("s_or_b32 s90, s90, s91")
        a("s_cmp_eq_u32 s90, 0")
        a("s_cbranch_scc0 L_nocpf")
        a("s_getpc_b64 s[90:91]")
        a.label("L_cpf")
        a(f"v_lshlrev_b32 v{vT1}, 7, v{vL}")
        a(f"s_mov_b32 s{sT0}, L_end-L_cpf")
        for k in range(4):
            a(f"v_min_u32 v{vT2}, s{sT0}, v{vT1}")
            a(f"global_load_dword v250, v{vT2}, s[90:91]")
            a(f"v_add_u32 v{vT1}, 8192, v{vT1}")
        a.label("L_nocpf")
    if PROF:
        stamp(a, 0); stamp_rt(a, 30)
    a(f"s_lshr_b32 s{sT0}, s2, 3")
    a(f"s_and_b32 s{sGI}, s{sT0}, 7")
    a(f"s_lshr_b32 s{sT0}, s{sT0}, 3")
    a(f"s_and_b32 s{sT1}, s2, 7")
    a(f"s_lshl_b32 s{sT1}, s{sT1}, 2")
    a(f"s_add_u32 s{sTB}, s{sT1}, s{sT0}")
    a(f"s_lshr_b32 s{sB}, s{sGI}, 2")
    a(f"s_and_b32 s{sHG}, s{sGI}, 3")
    a(f"s_lshr_b32 s{sTYPE}, s{sHG}, 1")
    a(f"s_and_b32 s{sTTKV}, s{sHG}, 1")
    a(f"s_lshr_b32 s{sTT}, s{sW}, 2")
    a(f"s_and_b32 s{sC}, s{sW}, 3")
    a(f"s_cmp_eq_u32 s{sTT}, s{sTTKV}")
    a(f"s_cselect_b32 s{sROLE}, 1, 0")
    a(f"s_lshl_b32 s{sTBOFF}, s{sTB}, 16")
    a(f"s_lshl_b32 s{sT0}, s{sTTKV}, 2")
    a(f"s_add_u32 s{sT0}, s{sT0}, 3")
    a(f"s_cmp_eq_u32 s{sW}, s{sT0}")
    a(f"s_cselect_b32 s{sPOLLER}, 1, 0")
    a(f"s_mov_b32 s{sFOK}, 0")
    a(f"s_getreg_b32 s{sXCC}, hwreg(HW_REG_XCC_ID, 0, 4)")
    a(f"s_mov_b32 s{sXID}, 0")
    a(f"s_mov_b32 s{sFAST}, 0")
    a(f"s_mov_b32 s{sSIG}, 0")
    a(f"s_mov_b32 s{sVM}, 0x0000ffff")
    a(f"s_mov_b32 s{sVM+1}, 0x0000ffff")
    a(f"s_mov_b32 s{sNONCE}, 0")
    a(f"v_lshlrev_b32 v{vK}, 4, v{vL}")
    a(f"v_lshrrev_b32 v{vH}, 5, v{vL}")
    a(f"v_mov_b32 v{vP0}, 0")
    a(f"v_mov_b32 v{vP2}, 0")
    a(f"s_mov_b32 s{sPA}, 0")
    a(f"s_mov_b32 s{sPB}, 0")
    a(f"v_and_b32 v{vT0}, 31, v{vL}")
    a(f"s_lshl_b32 s{sT0}, s{sTT}, 5")
    a(f"v_add_u32 v{vXb}, s{sT0}, v{vT0}")
    a(f"v_lshlrev_b32 v{vXb}, 10, v{vXb}")
    a(f"v_add_u32 v{vXb}, {L_X}, v{vXb}")
    a(f"v_and_b32 v{vN15}, 15, v{vL}")
    a(f"v_xor_b32 v{vXt}, v{vH}, v{vN15}")
    a(f"v_lshlrev_b32 v{vXt}, 4, v{vXt}")
    a("s_waitcnt lgkmcnt(0)")
    a(f"s_cmp_eq_u32 s{sB}, 0")
    a("s_cselect_b32 s6, s6, s16")
    a("s_cselect_b32 s7, s7, s17")
    a("s_cselect_b32 s8, s8, s18")
    a("s_cselect_b32 s9, s9, s19")
    a("s_cselect_b32 s10, s10, s20")
    a("s_cselect_b32 s11, s11, s21")
    a(f"s_cmp_eq_u32 s{sTYPE}, 0")
    a("s_cselect_b32 s8, s8, s10")
    a("s_cselect_b32 s9, s9, s11")
    srd(a, sX, 4, 2048 * 1024)
    srd(a, sWKV, 8, 16384)
    srd(a, sDBG, 28, 256)
    a(f"s_xor_b32 s{sT0}, s{sW}, 3")
    a(f"s_or_b32 s{sT0}, s2, s{sT0}")
    a(f"s_cmp_eq_u32 s{sT0}, 0")
    a("s_cbranch_scc0 L_nononce")
    a("s_memrealtime s[90:91]")
    a("s_waitcnt lgkmcnt(0)")
    a("s_lshl_b32 s90, s90, 4")
    a("s_or_b32 s90, s90, 0x10")
    a(f"v_mov_b32 v{vT1}, s90")
    a(f"v_mov_b32 v{vT3}, 128")
    a(f"buffer_store_dword v{vT1}, v{vT3}, s[{sDBG}:{sDBG+3}], 0 offen sc1")
    a.label("L_nononce")
    def xrow_dma(rowexpr, vt):
        rowexpr()
        a(f"s_and_b32 s{sT1}, s{sT0}, 15")
        a(f"v_xor_b32 v{vt}, s{sT1}, v{vL}")
        a(f"v_lshlrev_b32 v{vt}, 4, v{vt}")
        a(f"s_lshl_b32 s{sT1}, s{sT0}, 10")
        a(f"s_add_u32 m0, s{sT1}, {L_X}")
        a(f"s_add_u32 s{sT1}, s{sT1}, s{sTBOFF}")
        a(f"buffer_load_dwordx4 v{vt}, s[{sX}:{sX+3}], s{sT1} offen lds")
    a(f"s_lshl_b32 s{sT2}, s{sTTKV}, 5")
    a(f"s_add_u32 s{sT2}, s{sT2}, s{sW}")
    for i in range(4):
        xrow_dma(lambda: a(f"s_add_u32 s{sT0}, s{sT2}, {8*i}"), vT1)
    a(f"s_lshl_b32 s{sT1}, s{sW}, 11")
    a(f"s_add_u32 m0, s{sT1}, {L_WKV}")
    a(f"s_add_u32 s{sT3}, s{sT1}, 1024")
    a(f"buffer_load_dwordx4 v{vK}, s[{sWKV}:{sWKV+3}], s{sT1} offen lds")
    a(f"s_add_u32 m0, s{sT3}, {L_WKV}")
    srd(a, sGW, 24, 1024)
    a(f"buffer_load_dwordx4 v{vK}, s[{sWKV}:{sWKV+3}], s{sT3} offen lds")
    stamp(a, 1)
    srd(a, sWS, 30, WS_SIZE)
    def qaddr_setup():
        for sp in range(8):
            a(f"s_mov_b32 s{sT0}, {32*sp}")
            a(f"v_xad_u32 v{vXa+sp}, v{vXt}, s{sT0}, v{vXb}")
        a(f"v_lshrrev_b32 v{vT0}, 4, v{vL}")
        a(f"v_lshrrev_b32 v{vT3}, 2, v{vN15}")
        a(f"v_lshl_add_u32 v{vAa}, v{vH}, 3, v{vT3}")
        a(f"v_lshlrev_b32 v{vAa}, 8, v{vAa}")
        a(f"v_and_b32 v{vAa+1}, 1, v{vT0}")
        a(f"v_lshlrev_b32 v{vAa+1}, 1, v{vAa+1}")
        a(f"v_bfe_u32 v{vAa+2}, v{vN15}, 1, 1")
        a(f"v_add_u32 v{vAa+1}, v{vAa+1}, v{vAa+2}")
        a(f"s_lshl_b32 s{sT1}, s{sC}, 2")
        a(f"v_add_u32 v{vAa+1}, s{sT1}, v{vAa+1}")
        a(f"v_lshlrev_b32 v{vT3}, 2, v{vT3}")
        a(f"v_xor_b32 v{vAa+1}, v{vAa+1}, v{vT3}")
        a(f"v_lshl_add_u32 v{vAa}, v{vAa+1}, 4, v{vAa}")
        a(f"v_and_b32 v{vAa+2}, 1, v{vN15}")
        a(f"v_lshl_add_u32 v{vAa}, v{vAa+2}, 3, v{vAa}")
        for k in range(5, 0, -1):
            a(f"v_add_u32 v{vAa+k}, {L_SLOT[k]}, v{vAa}")
    def late_srds():
        a(f"s_cmp_eq_u32 s{sTT}, 0")
        a("s_cselect_b32 s12, s12, s22")
        a("s_cselect_b32 s13, s13, s23")
        srd(a, sOUT, 26, 2048 * 1024)
        srd(a, sWO, 12, 512 * 1024)
    a(f"s_cmp_eq_u32 s{sROLE}, 1")
    a("s_cbranch_scc0 L_wrole")
    if "kvprio" in EXPT: a("s_setprio 3")
    a(f"s_mov_b32 m0, {L_GW}")
    a(f"v_lshrrev_b32 v{vT0}, 4, v{vL}")
    a(f"buffer_load_dwordx4 v{vK}, s[{sGW}:{sGW+3}], 0 offen lds")
    vXk = vXa
    WF16, XF16 = 128, 192
    KAC = EAC
    a(f"s_and_b32 s{sT2}, s{sC}, 1")
    a(f"s_lshl_b32 s{sT0}, s{sTTKV}, 5")
    a(f"s_lshl_b32 s{sT1}, s{sT2}, 4")
    a(f"s_add_u32 s{sT0}, s{sT0}, s{sT1}")
    a(f"v_add_u32 v{vT2}, s{sT0}, v{vN15}")
    a(f"v_lshlrev_b32 v{vT2}, 10, v{vT2}")
    a(f"v_add_u32 v{vT2}, {L_X}, v{vT2}")
    a(f"v_xor_b32 v{vT3}, v{vT0}, v{vN15}")
    a(f"v_lshlrev_b32 v{vT3}, 4, v{vT3}")
    for sp in range(4):
        a(f"s_mov_b32 s{sT0}, {64*sp}")
        a(f"v_xad_u32 v{vXk+sp}, v{vT3}, s{sT0}, v{vT2}")
    a(f"v_lshrrev_b32 v{vE}, 2, v{vN15}")
    a(f"v_lshl_add_u32 v{vE}, v{vT0}, 3, v{vE}")
    a(f"v_lshlrev_b32 v{vE}, 5, v{vE}")
    a(f"v_and_b32 v{vT3}, 3, v{vN15}")
    a(f"v_lshl_add_u32 v{vE}, v{vT3}, 3, v{vE}")
    a(f"v_add_u32 v{vE}, {L_WKV}, v{vE}")
    a(f"v_lshlrev_b32 v{vGp}, 4, v{vT0}")
    a(f"v_add_u32 v{vGp}, {L_GW}, v{vGp}")
    a(f"v_and_b32 v{vT2}, 1, v{vT0}")
    a(f"v_lshrrev_b32 v{vT3}, 1, v{vT0}")
    a(f"s_cmp_eq_u32 s{sTYPE}, 0")
    a("s_cbranch_scc0 L_sa_v")
    a(f"v_and_b32 v{vPw}, 3, v{vN15}")
    a(f"v_and_b32 v{vT1}, 4, v{vN15}")
    a(f"v_lshl_add_u32 v{vPw}, v{vT1}, 1, v{vPw}")
    a(f"v_and_b32 v{vT1}, 8, v{vN15}")
    a(f"v_lshrrev_b32 v{vT1}, 1, v{vT1}")
    a(f"v_add_u32 v{vPw}, v{vPw}, v{vT1}")
    a(f"v_lshl_add_u32 v{vPw}, v{vT2}, 5, v{vPw}")
    a(f"s_lshl_b32 s{sT1}, s{sT2}, 4")
    a(f"v_add_u32 v{vPw}, s{sT1}, v{vPw}")
    a(f"v_lshlrev_b32 v{vPw}, 4, v{vPw}")
    a("s_branch L_sa_j")
    a.label("L_sa_v")
    a(f"v_lshl_add_u32 v{vPw}, v{vT2}, 4, v{vN15}")
    a(f"v_lshlrev_b32 v{vPw}, 4, v{vPw}")
    a(f"s_lshl_b32 s{sT1}, s{sT2}, 9")
    a(f"s_add_u32 s{sT1}, s{sT1}, 1024")
    a(f"v_add_u32 v{vPw}, s{sT1}, v{vPw}")
    a.label("L_sa_j")
    a(f"v_lshl_add_u32 v{vPw}, v{vT3}, 3, v{vPw}")
    a(f"s_lshl_b32 s{sT0}, s{sTB}, 1")
    a(f"s_add_u32 s{sT0}, s{sT0}, s{sTTKV}")
    a(f"s_lshl_b32 s{sOFF}, s{sT0}, 11")
    a(f"s_lshl_b32 s{sT3}, s{sB}, 17")
    a(f"s_add_u32 s{sOFF}, s{sOFF}, s{sT3}")
    if WS_KV: a(f"s_add_u32 s{sOFF}, s{sOFF}, {WS_KV}")
    a(f"s_lshl_b32 s{sM0}, s{sT0}, 7")
    a(f"s_add_u32 s{sM0}, s{sM0}, {WS_G}")
    vNon = 38
    a(f"v_mov_b32 v{vT3}, 128")
    a(f"buffer_load_dword v{vNon}, v{vT3}, s[{sDBG}:{sDBG+3}], 0 offen sc1")
    stamp(a, 2)
    a("s_waitcnt vmcnt(0)")
    a("s_barrier")
    stamp(a, 3)
    a(f"s_cmp_ge_u32 s{sC}, 2")
    a("s_cbranch_scc1 L_kv_gate")
    def kvreads(sx):
        a(f"ds_read_b64_tr_b16 {vr(WF16+4*sx,2)}, v{vE} offset:{sx*1024}")
        a(f"ds_read_b64_tr_b16 {vr(WF16+4*sx+2,2)}, v{vE} offset:{sx*1024+128}")
        a(f"ds_read_b128 {vr(XF16+4*sx,4)}, v{vXk+(sx%4)} offset:{(sx//4)*256}")
    D = 5
    for kind in ("k", "v"):
        if kind == "k":
            a(f"s_cmp_eq_u32 s{sTYPE}, 0")
            a("s_cbranch_scc0 L_kv_v")
        else:
            a.label("L_kv_v")
        for sx in range(D): kvreads(sx)
        for sx in range(16):
            rem = min(D - 1, 15 - sx)
            a(f"s_waitcnt lgkmcnt({3*rem})")
            c = vr(KAC, 4) if sx else "0"
            if kind == "k":
                a(f"{MF16} {vr(KAC,4)}, {vr(WF16+4*sx,4)}, {vr(XF16+4*sx,4)}, {c}")
            else:
                a(f"{MF16} {vr(KAC,4)}, {vr(XF16+4*sx,4)}, {vr(WF16+4*sx,4)}, {c}")
            if sx + D < 16: kvreads(sx + D)
        if kind == "k": a("s_branch L_kv_st")
    a.label("L_kv_st")
    a("s_nop 7")
    a(f"v_cvt_pk_bf16_f32 v{KAC+4}, v{KAC}, v{KAC+1}")
    a(f"v_cvt_pk_bf16_f32 v{KAC+5}, v{KAC+2}, v{KAC+3}")
    a(f"buffer_store_dwordx2 {vr(KAC+4,2)}, v{vPw}, s[{sWS}:{sWS+3}], s{sOFF} offen sc1")
    stamp(a, 12)
    a("s_branch L_kv_sig")
    a.label("L_kv_gate")
    a(f"s_or_b32 s{sT0}, s{sTYPE}, s{sB}")
    a(f"s_xor_b32 s{sT1}, s{sC}, 2")
    a(f"s_or_b32 s{sT0}, s{sT0}, s{sT1}")
    a(f"s_cmp_eq_u32 s{sT0}, 0")
    a("s_cbranch_scc0 L_kv_idle")
    for sp in range(4):
        a(f"v_add_u32 v{vXk+4+sp}, 16384, v{vXk+sp}")
    def greads(sx):
        a(f"ds_read_b128 {vr(WF16+4*(sx%8),4)}, v{vGp} offset:{sx*64}")
        a(f"ds_read_b128 {vr(XF16+8*(sx%8),4)}, v{vXk+(sx%4)} offset:{(sx//4)*256}")
        a(f"ds_read_b128 {vr(XF16+8*(sx%8)+4,4)}, v{vXk+4+(sx%4)} offset:{(sx//4)*256}")
    for sx in range(D): greads(sx)
    for sx in range(16):
        rem = min(D - 1, 15 - sx)
        a(f"s_waitcnt lgkmcnt({3*rem})")
        a(f"{MF16} {vr(KAC,4)}, {vr(WF16+4*(sx%8),4)}, {vr(XF16+8*(sx%8),4)}, {vr(KAC,4) if sx else '0'}")
        a(f"{MF16} {vr(KAC+4,4)}, {vr(WF16+4*(sx%8),4)}, {vr(XF16+8*(sx%8)+4,4)}, {vr(KAC+4,4) if sx else '0'}")
        if sx + D < 16: greads(sx + D)
    a(f"v_and_b32 v{vT1}, 16, v{vL}")
    a(f"v_cmp_eq_u32 vcc, 0, v{vT1}")
    a("s_nop 6")
    a(f"v_cndmask_b32 v{KAC+8}, v{KAC+4}, v{KAC}, vcc")
    a(f"v_cvt_pk_bf16_f32 v{KAC+8}, v{KAC+8}, v{KAC+8}")
    a(f"v_lshlrev_b32 v{KAC+8}, 16, v{KAC+8}")
    a(f"s_mov_b32 s{sT2}, {hex(f2u(-math.log2(math.e)))}")
    a(f"v_mul_f32 v{KAC+8}, s{sT2}, v{KAC+8}")
    a(f"v_exp_f32 v{KAC+8}, v{KAC+8}")
    a("s_nop 0")
    a(f"v_add_f32 v{KAC+8}, 1.0, v{KAC+8}")
    a(f"v_rcp_f32 v{KAC+8}, v{KAC+8}")
    a("s_nop 0")
    a(f"v_cvt_pk_bf16_f32 v{KAC+8}, v{KAC+8}, v{KAC+8}")
    a(f"v_lshlrev_b32 v{KAC+8}, 16, v{KAC+8}")
    a(f"v_lshlrev_b32 v{KAC+9}, 2, v{vL}")
    a(f"v_cmp_gt_u32 vcc, 32, v{vL}")
    a(f"s_and_saveexec_b64 s[{sT4}:{sT5}], vcc")
    a(f"buffer_store_dword v{KAC+8}, v{KAC+9}, s[{sWS}:{sWS+3}], s{sM0} offen sc1")
    a(f"s_mov_b64 exec, s[{sT4}:{sT5}]")
    a.label("L_kv_sig")
    qaddr_setup()
    late_srds()
    a(f"v_lshl_add_u32 v{vV}, v{vH}, 4, v{vN15}")
    a(f"v_lshlrev_b32 v{vV}, 4, v{vV}")
    a(f"s_mov_b32 s{sSIG}, 1")
    a("s_branch L_sigcode")
    a.label("L_kv_idle")
    if "notlb" not in EXPT:
        a(f"s_lshl_b32 s{sT0}, s{sTB}, 16")
        a(f"v_mov_b32 v{vP1}, s{sT0}")
        a(f"global_load_dword v{vF}, v{vP1}, s[26:27]")
        a(f"s_lshl_b32 s{sT0}, s{sTB}, 17")
        a(f"s_add_u32 s{sT0}, s{sT0}, {WS_O}")
        a(f"v_mov_b32 v{vP1}, s{sT0}")
        a(f"global_load_dword v{vF+1}, v{vP1}, s[30:31]")
        a(f"s_lshr_b32 s{sT0}, s{sGI}, 1")
        a(f"s_lshl_b32 s{sT0}, s{sT0}, 8")
        a(f"v_mov_b32 v{vP1}, s{sT0}")
        a(f"global_load_dword v{vF+2}, v{vP1}, s[12:13]")
        a(f"global_load_dword v{vF+3}, v{vP1}, s[22:23]")
    qaddr_setup()
    late_srds()
    a(f"v_lshl_add_u32 v{vV}, v{vH}, 4, v{vN15}")
    a(f"v_lshlrev_b32 v{vV}, 4, v{vV}")
    a(f"v_lshrrev_b32 v{vP0}, 1, v{vL}")
    a(f"v_lshlrev_b32 v{vP0}, 7, v{vP0}")
    a(f"v_and_b32 v{vP2}, 1, v{vL}")
    a(f"v_lshl_add_u32 v{vP0}, v{vP2}, 4, v{vP0}")
    a(f"v_lshlrev_b32 v{vP2}, 2, v{vP2}")
    a(f"s_lshl_b32 s{sPA}, s{sB}, 12")
    a(f"s_add_u32 s{sPA}, s{sPA}, {WS_KF}")
    a(f"s_lshl_b32 s{sPB}, s{sTB}, 7")
    a(f"s_add_u32 s{sPB}, s{sPB}, {WS_KF + 8192}")
    a(f"v_readfirstlane_b32 s{sNONCE}, v{vNon}")
    a("s_branch L_b1")
    def signal_kv():
        a(f"s_cmp_eq_u32 s{sSIG}, 1")
        a("s_cbranch_scc0 L_nosig")
        a(f"v_readfirstlane_b32 s{sNONCE}, v{vNon}")
        a(f"s_mov_b32 s{sT1}, 0")
        a.label("L_nwait")
        a(f"s_cmp_lg_u32 s{sNONCE}, 0")
        a("s_cbranch_scc1 L_nok")
        a(f"v_mov_b32 v{vT3}, 128")
        a(f"buffer_load_dword v{vNon}, v{vT3}, s[{sDBG}:{sDBG+3}], 0 offen sc1")
        a("s_waitcnt vmcnt(0)")
        a(f"v_readfirstlane_b32 s{sNONCE}, v{vNon}")
        a(f"s_add_u32 s{sT1}, s{sT1}, 1")
        a(f"s_cmp_lt_u32 s{sT1}, {POLL_LIMIT}")
        a("s_cbranch_scc1 L_nwait")
        a.label("L_nok")
        a(f"s_cmp_eq_u32 s{sC}, 2")
        a("s_cbranch_scc1 L_fa_gate")
        a(f"s_lshl_b32 s{sT0}, s{sB}, 5")
        a(f"s_add_u32 s{sT0}, s{sT0}, s{sTB}")
        a(f"s_lshl_b32 s{sT0}, s{sT0}, 7")
        a(f"s_lshl_b32 s{sT1}, s{sTTKV}, 2")
        a(f"s_lshl_b32 s{sT2}, s{sTYPE}, 1")
        a(f"s_add_u32 s{sT1}, s{sT1}, s{sT2}")
        a(f"s_add_u32 s{sT1}, s{sT1}, s{sC}")
        a(f"s_lshl_b32 s{sT1}, s{sT1}, 2")
        a(f"s_add_u32 s{sT0}, s{sT0}, s{sT1}")
        a(f"s_add_u32 s{sT0}, s{sT0}, {WS_KF}")
        a("s_branch L_fa_j")
        a.label("L_fa_gate")
        a(f"s_lshl_b32 s{sT0}, s{sTB}, 7")
        a(f"s_lshl_b32 s{sT1}, s{sTTKV}, 2")
        a(f"s_add_u32 s{sT0}, s{sT0}, s{sT1}")
        a(f"s_add_u32 s{sT0}, s{sT0}, {WS_KF + 8192}")
        a.label("L_fa_j")
        a(f"v_mov_b32 v{RD}, 0")
        a(f"v_mov_b32 v{RD+1}, s{sNONCE}")
        a("s_waitcnt vmcnt(0)")
        a(f"v_cmp_eq_u32 vcc, 0, v{vL}")
        a(f"s_and_saveexec_b64 s[{sT4}:{sT5}], vcc")
        a(f"buffer_store_dword v{RD+1}, v{RD}, s[{sWS}:{sWS+3}], s{sT0} offen sc1")
        a(f"s_mov_b64 exec, s[{sT4}:{sT5}]")
        stamp(a, 13)
        a.label("L_nosig")
    a.label("L_sigcode")
    signal_kv()
    a("s_branch L_b1")
    a.label("L_wrole")
    a(f"v_lshrrev_b32 v{vT0}, 4, v{vL}")
    a(f"v_lshlrev_b32 v{vWq}, 2, v{vT0}")
    a(f"v_xor_b32 v{vWq}, v{vWq}, v{vN15}")
    a(f"v_lshlrev_b32 v{vWq}, 4, v{vWq}")
    a(f"v_lshl_add_u32 v{vWq}, v{vT0}, 10, v{vWq}")
    a(f"s_lshl_b32 s{sT1}, s{sHG}, 8")
    a(f"v_add_u32 v{vWq}, s{sT1}, v{vWq}")
    srd(a, sWQ, 6, 512 * 1024)
    def wq_chunk(c):
        slot = L_SLOT[c]
        for i in range(4):
            a(f"s_lshl_b32 s{sT1}, s{sC}, 12")
            a(f"s_add_u32 m0, s{sT1}, {slot + i*1024}")
            a(f"s_lshl_b32 s{sT1}, s{sC}, 14")
            a(f"s_add_u32 s{sT1}, s{sT1}, {(64*c + 4*i)*1024}")
            a(f"buffer_load_dwordx4 v{vWq}, s[{sWQ}:{sWQ+3}], s{sT1} offen lds")
    def other_rows():
        a(f"s_xor_b32 s{sT2}, s{sTTKV}, 1")
        a(f"s_lshl_b32 s{sT2}, s{sT2}, 5")
        a(f"s_add_u32 s{sT2}, s{sT2}, s{sC}")
        for i in range(8):
            xrow_dma(lambda: a(f"s_add_u32 s{sT0}, s{sT2}, {4*i}"), vT1)
    EARLY = opt("early", 0)
    nbefore = 0
    if EARLY >= 1: other_rows(); nbefore += 8
    if EARLY >= 2: wq_chunk(0); nbefore += 4
    qaddr_setup()
    late_srds()
    a(f"v_lshl_add_u32 v{vV}, v{vH}, 4, v{vN15}")
    a(f"v_lshlrev_b32 v{vV}, 4, v{vV}")
    stamp(a, 2)
    a(f"s_waitcnt vmcnt({nbefore})")
    a("s_barrier")
    stamp(a, 3)
    if "wdelay" in EXPT:
        a(f"v_mov_b32 v{vT0}, {L_CNT}")
        a.label("L_wspin")
        a(f"ds_read_b32 v{vT1}, v{vT0}")
        a("s_waitcnt lgkmcnt(0)")
        a(f"v_readfirstlane_b32 s{sT0}, v{vT1}")
        a(f"s_cmp_ge_u32 s{sT0}, {opt('wd', 4)}")
        a("s_cbranch_scc0 L_wspin")
    if EARLY < 1: other_rows()
    if EARLY < 2: wq_chunk(0)
    for c in range(1, 4): wq_chunk(c)
    stamp(a, 4)
    a("s_waitcnt vmcnt(8)")
    a.label("L_b1")
    if "kvprio" in EXPT: a("s_setprio 0")
    a("s_barrier")
    stamp(a, 5)
    def qreads(s):
        c, sp4 = s // 4, s % 4
        buf = s % 4
        va = vAa + [0, 1, 2, 3, 4, 5, 0, 1][c]
        a(f"ds_read_b64_tr_b16 {vr(AF+4*buf,2)}, v{va} offset:{sp4*4096}")
        a(f"ds_read_b64_tr_b16 {vr(AF+4*buf+2,2)}, v{va} offset:{sp4*4096+1024}")
        a(f"ds_read_b128 {vr(XF+4*buf,4)}, v{vXa + (s % 8)} offset:{(s//8)*256}")
    def qmf(s):
        buf = s % 4
        a(f"{MF} {vr(ACC,16)}, {vr(AF+4*buf,4)}, {vr(XF+4*buf,4)}, {vr(ACC,16) if s else '0'}")
    def flag_loads():
        a(f"buffer_load_dwordx4 {vr(vF,4)}, v{vP0}, s[{sWS}:{sWS+3}], s{sPA} offen sc1")
        a(f"buffer_load_dword v{vF+4}, v{vP2}, s[{sWS}:{sWS+3}], s{sPB} offen sc1")
    def flag_cmp():
        a(f"v_cmp_eq_u32 vcc, s{sNONCE}, v{vF}")
        for k in range(1, 5):
            a(f"v_cmp_eq_u32 s[{sT2}:{sT3}], s{sNONCE}, v{vF+k}")
            a(f"s_and_b64 vcc, vcc, s[{sT2}:{sT3}]")
    def first_kv():
        a(f"s_lshl_b32 s{sOFF}, s{sB}, 17")
        if WS_KV: a(f"s_add_u32 s{sOFF}, s{sOFF}, {WS_KV}")
        a(f"s_mov_b32 s{sM0}, {L_KV}")
        for i in range(8):
            a(f"s_mov_b32 m0, s{sM0}")
            a(f"s_add_u32 s{sM0}, s{sM0}, 1024")
            a(f"buffer_load_dwordx4 v{vK}, s[{sWS}:{sWS+3}], s{sOFF} offen sc1 lds")
            a(f"s_add_u32 s{sOFF}, s{sOFF}, 1024")
        a(f"s_mov_b32 s{sFOK}, 2")
    def xid_publish(tag):
        a(f"s_cmp_eq_u32 s{sNONCE}, 0")
        a(f"s_cbranch_scc1 L_xp{tag}")
        a(f"s_cmp_lg_u32 s{sXID}, 0")
        a(f"s_cbranch_scc1 L_xp{tag}")
        a(f"s_or_b32 s{sXID}, s{sNONCE}, s{sXCC}")
        a(f"s_lshl_b32 s{sT0}, s{sTB}, 7")
        a(f"s_lshl_b32 s{sT1}, s{sGI}, 2")
        a(f"s_add_u32 s{sT0}, s{sT0}, s{sT1}")
        a(f"s_add_u32 s{sT0}, s{sT0}, {WS_XI}")
        a(f"v_mov_b32 v{vP1}, 0")
        a(f"v_mov_b32 v{vF+5}, s{sXID}")
        a(f"buffer_store_dword v{vF+5}, v{vP1}, s[{sWS}:{sWS+3}], s{sT0} offen sc1")
        a.label(f"L_xp{tag}")
    def poller_step(p, check, can_first):
        lab = f"L_ps{p}"
        a(f"s_cmp_eq_u32 s{sPOLLER}, 1")
        a(f"s_cbranch_scc0 {lab}")
        xid_publish(p)
        a(f"s_cmp_lg_u32 s{sFOK}, 0")
        a(f"s_cbranch_scc1 {lab}_fok")
        if check:
            a("s_waitcnt vmcnt(0)")
            a(f"s_cmp_eq_u32 s{sNONCE}, 0")
            a(f"s_cbranch_scc1 {lab}_re")
            flag_cmp()
            a("s_cmp_eq_u64 vcc, exec")
            a(f"s_cbranch_scc0 {lab}_re")
            a(f"s_mov_b32 s{sFOK}, 1")
            a(f"s_branch {lab}_fok")
            a.label(f"{lab}_re")
            a(f"s_cmp_lg_u32 s{sNONCE}, 0")
            a(f"s_cbranch_scc1 {lab}_ld")
            a(f"v_readfirstlane_b32 s{sNONCE}, v{vNon}")
            a.label(f"{lab}_ld")
        a(f"v_mov_b32 v{vP1}, 128")
        a(f"buffer_load_dword v{vNon}, v{vP1}, s[{sDBG}:{sDBG+3}], 0 offen sc1")
        flag_loads()
        a(f"s_branch {lab}")
        a.label(f"{lab}_fok")
        if can_first:
            a(f"s_cmp_eq_u32 s{sFOK}, 1")
            a(f"s_cbranch_scc0 {lab}")
            first_kv()
        a.label(lab)
    for s_ in range(4): qreads(s_)
    a(f"s_cmp_eq_u32 s{sROLE}, 1")
    a("s_cbranch_scc1 L_c5_skip")
    wq_chunk(4)
    wq_chunk(5)
    a.label("L_c5_skip")
    for p in range(4):
        for j in range(8):
            s_ = 8 * p + j
            if j < 7:
                nxt = min(3, 7 - j)
                a(f"s_waitcnt lgkmcnt({3*nxt})")
                qmf(s_)
                if j + 4 < 8: qreads(s_ + 4)
            else:
                a("s_waitcnt lgkmcnt(0)")
                if p < 3:
                    lab = f"L_q{p}"
                    a(f"s_cmp_eq_u32 s{sROLE}, 1")
                    a(f"s_cbranch_scc1 {lab}_kv")
                    a(f"s_waitcnt vmcnt({[8, 8, 0][p]})")
                    a("s_barrier")
                    if p == 0:
                        wq_chunk(6); wq_chunk(7)
                    a(f"s_branch {lab}_j")
                    a.label(f"{lab}_kv")
                    a("s_barrier")
                    a.label(f"{lab}_j")
                    for k in range(3): qreads(8 * (p + 1) + k)
                    qmf(s_)
                    qreads(8 * (p + 1) + 3)
                    poller_step(p, check=(p > 0), can_first=(p == 2))
                    if p == 2:
                        a(f"s_cmp_eq_u32 s{sW}, 0")
                        a("s_cbranch_scc0 L_nocz")
                        a(f"v_mov_b32 v{RD}, 0")
                        a(f"ds_write_b32 v{RD}, v{RD} offset:{L_CNT3}")
                        a.label("L_nocz")
                    if "st3" in EXPT: stamp(a, 18 + p)
                else:
                    qmf(s_)
    stamp(a, 6)
    def poll(label, load, cmpcode):
        a(f"s_mov_b32 s{sT1}, 0")
        a.label(label)
        load()
        a("s_waitcnt vmcnt(0)")
        cmpcode()
        a("s_cmp_eq_u64 vcc, exec")
        a(f"s_cbranch_scc1 {label}_done")
        a(f"s_add_u32 s{sT1}, s{sT1}, 1")
        a(f"s_cmp_lt_u32 s{sT1}, {POLL_LIMIT}")
        a(f"s_cbranch_scc0 {label}_done")
        a("s_sleep 1")
        a(f"s_branch {label}")
        a.label(f"{label}_done")
    a(f"s_mov_b32 s{sT0}, {hex(f2u(CQ))}")
    a(f"v_add_u32 v{vV}, {L_KV+1024}, v{vV}")
    a(f"v_and_b32 v{vT0}, 27, v{vL}")
    a(f"v_cmp_eq_u32 vcc, 16, v{vT0}")
    a(f"v_mov_b32 v{vT1}, 0x3f803f80")
    a(f"v_add_u32 v{vV2}, 0x10000, v{vV}")
    for i in range(16):
        a(f"v_cndmask_b32 v{V0+i}, 0, v{vT1}, vcc")
    a(f"s_mov_b32 s{sT1}, s{sT0}")
    for i in range(0, 16, 2):
        a(f"v_pk_mul_f32 {vr(ACC+i,2)}, {vr(ACC+i,2)}, s[{sT0}:{sT1}]")
    for j in range(4):
        a(f"v_cvt_pk_bf16_f32 v{QA+j}, v{ACC+2*j}, v{ACC+2*j+1}")
        a(f"v_cvt_pk_bf16_f32 v{QB+j}, v{ACC+8+2*j}, v{ACC+8+2*j+1}")
    a(f"s_cmp_eq_u32 s{sPOLLER}, 1")
    a("s_cbranch_scc0 L_nopoll")
    a(f"s_cmp_eq_u32 s{sFOK}, 2")
    a("s_cbranch_scc1 L_nopoll")
    a(f"s_cmp_eq_u32 s{sFOK}, 1")
    a("s_cbranch_scc1 L_dofirst")
    a("s_waitcnt vmcnt(0)")
    a(f"s_cmp_lg_u32 s{sNONCE}, 0")
    a("s_cbranch_scc0 L_getnonce")
    flag_cmp()
    a("s_cmp_eq_u64 vcc, exec")
    a("s_cbranch_scc1 L_dofirst")
    a("s_branch L_havenonce")
    a.label("L_getnonce")
    a(f"v_readfirstlane_b32 s{sNONCE}, v{vNon}")
    a(f"v_mov_b32 v{vP1}, 128")
    def ldn(): a(f"buffer_load_dword v{vNon}, v{vP1}, s[{sDBG}:{sDBG+3}], 0 offen sc1")
    def cmpn(): a(f"v_cmp_ne_u32 vcc, 0, v{vNon}")
    a(f"s_cmp_lg_u32 s{sNONCE}, 0")
    a("s_cbranch_scc1 L_havenonce")
    poll("L_polln", ldn, cmpn)
    a(f"v_readfirstlane_b32 s{sNONCE}, v{vNon}")
    a.label("L_havenonce")
    poll("L_poll", flag_loads, flag_cmp)
    a.label("L_dofirst")
    first_kv()
    a.label("L_nopoll")
    a(f"s_cmp_eq_u32 s{sPOLLER}, 1")
    a("s_cbranch_scc0 L_noxp")
    xid_publish(9)
    a.label("L_noxp")
    for i in range(0, 16, 2):
        a(f"v_pk_mov_b32 {vr(OA+i,2)}, 0, 0")
        a(f"v_pk_mov_b32 {vr(OB+i,2)}, 0, 0")
    a(f"v_lshrrev_b32 v{vT0}, 2, v{vL}")
    a(f"v_and_b32 v{vT1}, 3, v{vL}")
    a(f"v_lshlrev_b32 v{vT1}, 4, v{vT1}")
    a(f"v_lshl_add_u32 v{vWO}, v{vT0}, 10, v{vT1}")
    a(f"s_lshr_b32 s{sT0}, s{sGI}, 1")
    a(f"s_lshl_b32 s{sT0}, s{sT0}, 8")
    a(f"s_lshl_b32 s{sT1}, s{sC}, 6")
    a(f"s_add_u32 s{sT0}, s{sT0}, s{sT1}")
    a(f"v_add_u32 v{vWO}, s{sT0}, v{vWO}")
    a(f"v_lshrrev_b32 v{vT1}, 2, v{vN15}")
    a(f"v_lshl_add_u32 v{vT1}, v{vH}, 2, v{vT1}")
    a(f"v_lshlrev_b32 v{vWOr}, 6, v{vT1}")
    a(f"v_bfe_u32 v{vT1}, v{vL}, 4, 1")
    a(f"v_lshl_add_u32 v{vWOr}, v{vT1}, 5, v{vWOr}")
    a(f"v_and_b32 v{vT0}, 3, v{vN15}")
    a(f"v_lshl_add_u32 v{vWOr}, v{vT0}, 3, v{vWOr}")
    a(f"s_lshl_b32 s{sT0}, s{sW}, 12")
    a(f"v_add_u32 v{vWOr}, s{sT0}, v{vWOr}")
    a(f"v_mov_b32 v{IDX}, 0xdddddddd")
    a(f"s_lshl_b32 s{sOFF}, s{sB}, 17")
    a(f"s_add_u32 s{sOFF}, s{sOFF}, {WS_KV + 8192}")
    a(f"s_lshl_b32 s{sM0}, s{sC}, 11")
    a(f"s_add_u32 s{sOFF}, s{sOFF}, s{sM0}")
    a(f"s_add_u32 s{sM0}, s{sM0}, {L_KV + 8192}")
    vKd = 253
    a(f"v_mov_b32 v{vKd}, v{vK}")
    a(f"v_add_u32 v{vK}, {L_KV}, v{vK}")
    a(f"v_add_u32 v{vK2}, 0x10000, v{vK}")
    a(f"s_mov_b32 s{sPASS}, 1")
    a(f"s_lshr_b32 s{sKVI}, s{sW}, 2")
    a(f"v_and_b32 v{vG}, 31, v{vL}")
    a(f"v_lshlrev_b32 v{vG}, 2, v{vG}")
    a(f"s_lshl_b32 s{sT2}, s{sTB}, 1")
    a(f"s_add_u32 s{sT2}, s{sT2}, s{sTT}")
    a(f"s_lshl_b32 s{sT2}, s{sT2}, 7")
    a(f"s_add_u32 s{sT2}, s{sT2}, {WS_G}")
    a("s_waitcnt vmcnt(0)")
    a("s_barrier")
    stamp(a, 7)
    def kv_step():
        a(f"s_mov_b32 m0, s{sM0}")
        a(f"s_add_u32 s{sT0}, s{sOFF}, 1024")
        a(f"buffer_load_dwordx4 v{vKd}, s[{sWS}:{sWS+3}], s{sOFF} offen sc1 lds")
        a(f"s_add_u32 m0, s{sM0}, 1024")
        a(f"s_add_u32 s{sM0}, s{sM0}, 8192")
        a(f"buffer_load_dwordx4 v{vKd}, s[{sWS}:{sWS+3}], s{sT0} offen sc1 lds")
        a(f"s_add_u32 s{sOFF}, s{sOFF}, 8192")
    a(f"buffer_load_dword v{vG}, v{vG}, s[{sWS}:{sWS+3}], s{sT2} offen sc1")
    def ldK(buf, t):
        va = vK if t < 32 else vK2
        a(f"ds_read_b128 {vr(KB+4*buf,4)}, v{va} offset:{(t % 32)*2048}")
    def ldV(buf, t):
        va = vV if t < 32 else vV2
        off = (t % 32) * 2048
        a(f"s_mov_b64 exec, s[{sVM}:{sVM+1}]")
        a(f"ds_read_b128 {vr(V0+4*buf,4)}, v{va} offset:{off}")
        a(f"ds_read_b128 {vr(V1+4*buf,4)}, v{va} offset:{off+512}")
        a("s_mov_b64 exec, -1")
    def neg_bcast(C, m):
        for i in range(0, 16, 2):
            a(f"v_pk_mul_f32 {vr(C+i,2)}, {vr(m,2)}, -1.0 op_sel_hi:[0,0]")
    def crosshalf_max(m, t):
        a(f"v_mov_b32 v{t}, v{m}")
        a("s_nop 1")
        a(f"v_permlane32_swap_b32 v{m}, v{t}")
        a("s_nop 1")
        a(f"v_max_f32 v{m}, v{m}, v{t}")
    def rowmax(S, m):
        a(f"v_max3_f32 v{m}, v{S}, v{S+1}, v{S+2}")
        for i in range(3, 15, 2):
            a(f"v_max3_f32 v{m}, v{m}, v{S+i}, v{S+i+1}")
        a(f"v_max_f32 v{m}, v{m}, v{S+15}")
    M0r, M1r, M2r, M3r = WOA, WOA + 1, WOA + 2, WOA + 3
    ldK(0, 0)
    ldK(1, 1)
    ldV(0, 0)
    a("s_waitcnt lgkmcnt(3)")
    a(f"{MF} {vr(SA,16)}, {vr(KB,4)}, {vr(QA,4)}, 0")
    a(f"{MF} {vr(SB,16)}, {vr(KB,4)}, {vr(QB,4)}, 0")
    for i in range(8, 16, 2):
        pass
    a("s_nop 10")
    rowmax(SA, M0r); rowmax(SB, M2r)
    crosshalf_max(M0r, M1r); crosshalf_max(M2r, M3r)
    neg_bcast(CA, M0r); neg_bcast(CB, M2r)
    a("s_branch L_go")
    a.label("L_restart")
    for i in range(0, 16, 2):
        a(f"v_pk_mov_b32 {vr(OA+i,2)}, 0, 0")
        a(f"v_pk_mov_b32 {vr(OB+i,2)}, 0, 0")
    ldK(0, 0)
    ldK(1, 1)
    ldV(0, 0)
    a.label("L_go")
    for i in range(8, 16, 2):
        a(f"v_pk_mov_b32 {vr(SB+i,2)}, 0, 0")
    a("s_waitcnt lgkmcnt(0)")
    a(f"{MF} {vr(SA,16)}, {vr(KB,4)}, {vr(QA,4)}, {vr(CA,16)}")
    if "noprio" not in EXPT:
        a(f"s_cmp_ge_u32 s{sW}, 4")
        a("s_cbranch_scc0 L_noprio0")
        a("s_setprio 1")
        a.label("L_noprio0")
    a("s_nop 7")
    a("s_nop 1")
    stamp(a, 9)
    def ex(S, i): a(f"v_exp_f32 v{S+i}, v{S+i}")
    T0W = 16
    def wo_dma(f):
        a(f"s_lshl_b32 s{sT0}, s{sW}, 12")
        a(f"s_add_u32 m0, s{sT0}, {L_WOST + (f % 3)*1024}")
        a(f"s_mov_b32 s{sT1}, {f*16384}")
        a(f"buffer_load_dwordx4 v{vWO}, s[{sWO}:{sWO+3}], s{sT1} offen lds")
    def wo_read(f, dst):
        a(f"ds_read_b64_tr_b16 {vr(dst,2)}, v{vWOr} offset:{L_WOST + (f % 3)*1024}")
        a(f"ds_read_b64_tr_b16 {vr(dst+2,2)}, v{vWOr} offset:{L_WOST + (f % 3)*1024 + 512}")
    PSW = opt("psw", 53)
    for t in range(64):
        p = t & 1
        def sync(k, n):
            a(f"s_cmp_eq_u32 s{sPASS}, 1")
            a(f"s_cbranch_scc0 L_sy{k}_done")
            a(f"s_cmp_ge_u32 s{sW}, 4")
            a(f"s_cbranch_scc0 L_sy{k}_spin")
            if n is not None: a(f"s_waitcnt vmcnt({n})")
            a(f"v_mov_b32 v254, 1")
            a("s_mov_b64 exec, 1")
            a(f"ds_add_u32 v{vKd}, v254 offset:{L_CNT3}")
            a("s_mov_b64 exec, -1")
            a.label(f"L_sy{k}_spin")
            a(f"ds_read_b32 v254, v{vKd} offset:{L_CNT3}")
            a("s_waitcnt lgkmcnt(0)")
            a(f"v_readfirstlane_b32 s{sT0}, v254")
            a(f"s_cmp_ge_u32 s{sT0}, {4*k}")
            a(f"s_cbranch_scc0 L_sy{k}_spin")
            a.label(f"L_sy{k}_done")
        if t == 2:  sync(1, 2)
        if t == 6:  sync(2, 6)
        if t == 14: sync(3, 14)
        if t == 30: sync(4, None)
        if t == PSW and "noprio" not in EXPT:
            a("s_setprio 0")
        ex(SA, 0); ex(SA, 1)
        a(f"{SM} {vr(OB,16)}, {vr(V1+4*(p^1),4)}, {vr(SB+8,8)}, v{IDX}")
        ex(SA, 2); ex(SA, 3); ex(SA, 4)
        a(f"{MF} {vr(SB,16)}, {vr(KB+4*p,4)}, {vr(QB,4)}, {vr(CB,16)}")
        nld = 0
        if t + 2 < 64: ldK(p, t + 2); nld += 1
        if t + 1 < 64: ldV(p ^ 1, t + 1); nld += 2
        for i in range(5, 10): ex(SA, i)
        a(f"s_waitcnt lgkmcnt({nld})")
        a(f"{SM} {vr(OA,16)}, {vr(V0+4*p,4)}, {vr(SA,8)}, v{IDX}")
        for i in range(10, 13): ex(SA, i)
        if t <= 14:
            a(f"s_cmp_eq_u32 s{sKVI}, 1")
            a(f"s_cbranch_scc0 L_nokv{t}")
            kv_step()
            a.label(f"L_nokv{t}")
        if t == 48:
            a(f"v_and_b32 v254, 7, v{vL}")
            a(f"v_lshlrev_b32 v254, 2, v254")
            a(f"s_lshl_b32 s{sT0}, s{sTB}, 7")
            a(f"s_add_u32 s{sT0}, s{sT0}, {WS_XI}")
            a(f"buffer_load_dword v253, v254, s[{sWS}:{sWS+3}], s{sT0} offen sc1")
            a(f"v_mov_b32 v254, 128")
            a(f"buffer_load_dword v254, v254, s[{sDBG}:{sDBG+3}], 0 offen sc1")
        fd = t - T0W
        if 0 <= fd < NFR: wo_dma(fd)
        for i in range(13, 16): ex(SA, i)
        ex(SB, 0); ex(SB, 1)
        a(f"{SM} {vr(OA,16)}, {vr(V1+4*p,4)}, {vr(SA+8,8)}, v{IDX}")
        ex(SB, 2); ex(SB, 3); ex(SB, 4)
        if t + 1 < 64:
            a(f"{MF} {vr(SA,16)}, {vr(KB+4*(p^1),4)}, {vr(QA,4)}, {vr(CA,16)}")
        else:
            a("s_nop 0")
        for i in range(5, 8): ex(SB, i)
        fr = t - T0W - 2
        if 0 <= fr < NFR:
            outstanding_after = min(fd, NFR - 1) - fr
            a(f"s_waitcnt vmcnt({outstanding_after})")
            wo_read(fr, WOA + 4 * fr)
        for i in range(8, 10): ex(SB, i)
        a(f"{SM} {vr(OB,16)}, {vr(V0+4*p,4)}, {vr(SB,8)}, v{IDX}")
        for i in range(10, 16): ex(SB, i)
    a("s_nop 1")
    a(f"{SM} {vr(OB,16)}, {vr(V1+4,4)}, {vr(SB+8,8)}, v{IDX}")
    for f in range(NFR, 32): wo_dma(f)
    TT = SA
    a(f"s_waitcnt vmcnt({32 - NFR})")
    a(f"s_nop 0")
    a(f"v_or_b32 v254, s{sXCC}, v254")
    a(f"v_cmp_eq_u32 vcc, v253, v254")
    a(f"s_cmp_eq_u64 vcc, exec")
    a(f"s_cselect_b32 s{sFAST}, 1, 0")
    if "nofast" in EXPT: a(f"s_mov_b32 s{sFAST}, 0")
    a(f"v_sub_f32 v{TT+2}, 1.0, v{vG}")
    a(f"v_cvt_pk_bf16_f32 v{TT+2}, v{TT+2}, v{TT+2}")
    a(f"v_lshlrev_b32 v{TT+2}, 16, v{TT+2}")
    a(f"s_cmp_eq_u32 s{sB}, 0")
    a(f"s_cselect_b64 s[{sLM}:{sLM+1}], -1, 0")
    a(f"v_cndmask_b32 v{TT+2}, v{TT+2}, v{vG}, s[{sLM}:{sLM+1}]")
    stamp(a, 10)
    a(f"v_mul_f32 v{TT}, 0, v{OA}")
    for i in range(1, 8): a(f"v_fma_f32 v{TT}, v{OA+i}, 0, v{TT}")
    for i in range(0, 8): a(f"v_fma_f32 v{TT}, v{OB+i}, 0, v{TT}")
    a(f"v_max_f32 v{TT+1}, v{OA+8}, v{OB+8}")
    a(f"v_add_f32 v{TT}, v{TT}, v{TT+1}")
    a(f"s_mov_b32 s{sT0}, {hex(f2u(2.0**60))}")
    a(f"v_cmp_gt_f32 vcc, s{sT0}, v{TT}")
    a(f"s_cmp_eq_u32 s{sPASS}, 2")
    a("s_cbranch_scc1 L_fin")
    a("s_cmp_eq_u64 vcc, exec")
    a("s_cbranch_scc1 L_fin")
    a(f"s_mov_b32 s{sPASS}, 2")
    a(f"s_mov_b32 s{sKVI}, 0")
    FM0, FM1, FM2, FM3 = KB + 4, KB + 5, KB + 6, KB + 7
    a(f"v_mov_b32 v{FM0}, 0xff800000")
    a(f"v_mov_b32 v{FM2}, 0xff800000")
    a(f"v_mov_b32 v{FM1}, v{vK}")
    a(f"s_mov_b32 s{sT0}, 0")
    a.label("L_maxloop")
    a(f"ds_read_b128 {vr(KB,4)}, v{FM1}")
    a("s_waitcnt lgkmcnt(0)")
    a(f"{MF} {vr(SA,16)}, {vr(KB,4)}, {vr(QA,4)}, 0")
    a(f"{MF} {vr(SB,16)}, {vr(KB,4)}, {vr(QB,4)}, 0")
    a("s_nop 15")
    for i in range(0, 16, 2):
        a(f"v_max3_f32 v{FM0}, v{FM0}, v{SA+i}, v{SA+i+1}")
        a(f"v_max3_f32 v{FM2}, v{FM2}, v{SB+i}, v{SB+i+1}")
    a(f"v_add_u32 v{FM1}, 2048, v{FM1}")
    a(f"s_add_u32 s{sT0}, s{sT0}, 1")
    a(f"s_cmp_lt_u32 s{sT0}, 64")
    a("s_cbranch_scc1 L_maxloop")
    crosshalf_max(FM0, FM1); crosshalf_max(FM2, FM3)
    neg_bcast(CA, FM0); neg_bcast(CB, FM2)
    a("s_waitcnt vmcnt(0)")
    a("s_branch L_restart")
    a.label("L_fin")
    a(f"v_rcp_f32 v{TT}, v{OA+8}")
    a(f"v_rcp_f32 v{TT+1}, v{OB+8}")
    a("s_nop 0")
    a(f"v_mul_f32 v{TT}, v{TT}, v{TT+2}")
    a(f"v_mul_f32 v{TT+1}, v{TT+1}, v{TT+2}")
    for i in range(8):
        a(f"v_mul_f32 v{OA+i}, v{TT}, v{OA+i}")
        a(f"v_mul_f32 v{OB+i}, v{TT+1}, v{OB+i}")
    for j in range(4):
        a(f"v_cvt_pk_bf16_f32 v{SA+4+j}, v{OA+2*j}, v{OA+2*j+1}")
        a(f"v_cvt_pk_bf16_f32 v{SA+8+j}, v{OB+2*j}, v{OB+2*j+1}")
    a(f"s_lshl_b32 s{sT0}, s{sTB}, 1")
    a(f"s_add_u32 s{sT0}, s{sT0}, s{sTT}")
    a(f"s_lshl_b32 s{sT0}, s{sT0}, 6")
    a(f"s_lshl_b32 s{sT1}, s{sGI}, 3")
    a(f"s_add_u32 s{sT0}, s{sT0}, s{sT1}")
    a(f"s_lshl_b32 s{sT1}, s{sC}, 1")
    a(f"s_add_u32 s{sT0}, s{sT0}, s{sT1}")
    a(f"s_lshl_b32 s{sT0}, s{sT0}, 10")
    a(f"s_add_u32 s{sT0}, s{sT0}, {WS_O}")
    vS = SB
    a(f"v_lshlrev_b32 v{vS}, 4, v{vL}")
    a(f"s_cmp_eq_u32 s{sFAST}, 1")
    a("s_cbranch_scc1 L_ost_fast")
    a(f"buffer_store_dwordx4 {vr(SA+4,4)}, v{vS}, s[{sWS}:{sWS+3}], s{sT0} offen sc1")
    a(f"buffer_store_dwordx4 {vr(SA+8,4)}, v{vS}, s[{sWS}:{sWS+3}], s{sT0} offen offset:1024 sc1")
    a("s_branch L_ost_j")
    a.label("L_ost_fast")
    a(f"buffer_store_dwordx4 {vr(SA+4,4)}, v{vS}, s[{sWS}:{sWS+3}], s{sT0} offen")
    a(f"buffer_store_dwordx4 {vr(SA+8,4)}, v{vS}, s[{sWS}:{sWS+3}], s{sT0} offen offset:1024")
    a.label("L_ost_j")
    a("s_waitcnt vmcnt(2)")
    XFR = {}
    for k, f in enumerate(range(NFR, 32)):
        XFR[f] = [KB, KB + 4, V0][k]
        wo_read(f, XFR[f])
    a(f"s_and_b32 s{sT2}, s{sGI}, 1")
    a(f"s_lshl_b32 s{sT3}, s{sTB}, 1")
    a(f"s_add_u32 s{sT3}, s{sT3}, s{sT2}")
    a(f"s_lshl_b32 s{sT4}, s{sTT}, 5")
    a(f"s_lshl_b32 s{sT5}, s{sC}, 1")
    a(f"s_add_u32 s{sT4}, s{sT4}, s{sT5}")
    a(f"s_lshl_b32 s{sM0}, s{sT4}, 10")
    a(f"s_lshl_b32 s{sOFF}, s{sT3}, 16")
    a(f"s_add_u32 s{sOFF}, s{sOFF}, s{sM0}")
    a(f"s_add_u32 s{sOFF}, s{sOFF}, {WS_O}")
    a(f"s_add_u32 s{sM0}, s{sM0}, {L_KV}")
    vB = SB + 6
    a(f"s_lshl_b32 s{sT4}, s{sTT}, 15")
    a(f"s_add_u32 s{sT4}, s{sT4}, {L_KV}")
    a(f"v_add_u32 v{vB}, s{sT4}, v{vS}")
    vO = SB + 7
    a(f"v_and_b32 v{vO}, 31, v{vL}")
    a(f"s_lshl_b32 s{sT3}, s{sT3}, 5")
    a(f"v_add_u32 v{vO}, s{sT3}, v{vO}")
    a(f"v_lshlrev_b32 v{vO}, 10, v{vO}")
    a(f"v_lshrrev_b32 v{SB+3}, 5, v{vL}")
    a(f"v_lshl_add_u32 v{vO}, v{SB+3}, 4, v{vO}")
    a(f"s_lshr_b32 s{sT2}, s{sGI}, 1")
    a(f"s_lshl_b32 s{sT2}, s{sT2}, 8")
    a(f"s_lshl_b32 s{sT3}, s{sC}, 6")
    a(f"s_add_u32 s{sT2}, s{sT2}, s{sT3}")
    a(f"s_lshl_b32 s{sT3}, s{sTT}, 5")
    a(f"s_add_u32 s{sT2}, s{sT2}, s{sT3}")
    a(f"v_add_u32 v{vO}, s{sT2}, v{vO}")
    vXw, vXr = SB + 3, SB + 4
    a(f"s_lshl_b32 s{sT0}, s{sW}, 11")
    a(f"v_add_u32 v{vXw}, s{sT0}, v{vS}")
    a(f"s_xor_b32 s{sT1}, s{sW}, 4")
    a(f"s_lshl_b32 s{sT1}, s{sT1}, 11")
    a(f"v_add_u32 v{vXr}, s{sT1}, v{vS}")
    a("s_waitcnt vmcnt(0)")
    a("s_barrier")
    stamp(a, 11)
    a(f"s_cmp_eq_u32 s{sPOLLER}, 1")
    a("s_cbranch_scc0 L_nosig2")
    a(f"s_lshl_b32 s{sT0}, s{sTB}, 7")
    a(f"s_add_u32 s{sT0}, s{sT0}, {WS_F}")
    a(f"s_lshl_b32 s{sT1}, s{sGI}, 2")
    a(f"v_mov_b32 v{SB+1}, s{sT1}")
    a(f"v_mov_b32 v{SB+2}, s{sNONCE}")
    a(f"v_cmp_eq_u32 vcc, 0, v{vL}")
    a(f"s_and_saveexec_b64 s[{sT4}:{sT5}], vcc")
    a(f"s_cmp_eq_u32 s{sFAST}, 1")
    a("s_cbranch_scc1 L_fst_fast")
    a(f"buffer_store_dword v{SB+2}, v{SB+1}, s[{sWS}:{sWS+3}], s{sT0} offen sc1")
    a("s_branch L_fst_j")
    a.label("L_fst_fast")
    a(f"buffer_store_dword v{SB+2}, v{SB+1}, s[{sWS}:{sWS+3}], s{sT0} offen")
    a.label("L_fst_j")
    a(f"s_mov_b64 exec, s[{sT4}:{sT5}]")
    a(f"v_and_b32 v{SB+1}, 7, v{vL}")
    a(f"v_lshlrev_b32 v{SB+1}, 2, v{SB+1}")
    def ld2(): a(f"buffer_load_dword v{SB+2}, v{SB+1}, s[{sWS}:{sWS+3}], s{sT0} offen sc1")
    def cmp2(): a(f"v_cmp_eq_u32 vcc, s{sNONCE}, v{SB+2}")
    poll("L_poll2", ld2, cmp2)
    a.label("L_nosig2")
    a("s_barrier")
    stamp(a, 14)
    def o_dma(q):
        for i in range(2):
            a(f"s_add_u32 m0, s{sM0}, {(8*q+i)*1024}")
            a(f"s_add_u32 s{sT0}, s{sOFF}, {(8*q+i)*1024}")
            a(f"buffer_load_dwordx4 v{vS}, s[{sWS}:{sWS+3}], s{sT0} offen sc1 lds")
    o_dma(0); o_dma(1)
    ACC3 = OA
    BF = CA
    def afr(s): return XFR[s] if s in XFR else WOA + 4 * s
    for q in range(4):
        a(f"s_waitcnt vmcnt({[2, 4, 2, 0][q]})")
        if q == 0:
            pass
        a("s_barrier")
        if q == 0:
            stamp(a, 15)
        for i in range(8):
            a(f"ds_read_b128 {vr(BF+4*i,4)}, v{vB} offset:{(8*q+i)*1024}")
        if q == 0:
            o_dma(2); o_dma(3)
        for i in range(8):
            a(f"s_waitcnt lgkmcnt({7-i})")
            a(f"{MF} {vr(ACC3,16)}, {vr(afr(8*q+i),4)}, {vr(BF+4*i,4)}, {vr(ACC3,16) if (q or i) else '0'}")
    stamp(a, 16)
    a("s_nop 15")
    a(f"s_cmp_eq_u32 s{sTT}, 0")
    a("s_cbranch_scc0 L_x_b1")
    a(f"ds_write_b128 v{vXw}, {vr(ACC3+8,4)} offset:{L_XCH}")
    a(f"ds_write_b128 v{vXw}, {vr(ACC3+12,4)} offset:{L_XCH+1024}")
    a("s_waitcnt lgkmcnt(0)")
    a("s_barrier")
    a(f"ds_read_b128 {vr(CB,4)}, v{vXr} offset:{L_XCH}")
    a(f"ds_read_b128 {vr(CB+4,4)}, v{vXr} offset:{L_XCH+1024}")
    a("s_waitcnt lgkmcnt(0)")
    for i in range(0, 8, 2):
        a(f"v_pk_add_f32 {vr(CB+i,2)}, {vr(CB+i,2)}, {vr(ACC3+i,2)}")
    a("s_branch L_x_j")
    a.label("L_x_b1")
    a(f"ds_write_b128 v{vXw}, {vr(ACC3,4)} offset:{L_XCH}")
    a(f"ds_write_b128 v{vXw}, {vr(ACC3+4,4)} offset:{L_XCH+1024}")
    a("s_waitcnt lgkmcnt(0)")
    a("s_barrier")
    a(f"ds_read_b128 {vr(CB,4)}, v{vXr} offset:{L_XCH}")
    a(f"ds_read_b128 {vr(CB+4,4)}, v{vXr} offset:{L_XCH+1024}")
    a("s_waitcnt lgkmcnt(0)")
    for i in range(0, 8, 2):
        a(f"v_pk_add_f32 {vr(CB+i,2)}, {vr(CB+i,2)}, {vr(ACC3+8+i,2)}")
    a.label("L_x_j")
    R = SA + 4
    for i in range(0, 8, 2):
        a(f"v_cvt_pk_bf16_f32 v{R+i//2}, v{CB+i}, v{CB+i+1}")
    a("s_nop 1")
    a(f"v_permlane32_swap_b32 v{R}, v{R+2}")
    a(f"v_permlane32_swap_b32 v{R+1}, v{R+3}")
    a(f"buffer_store_dwordx4 {vr(R,4)}, v{vO}, s[{sOUT}:{sOUT+3}], 0 offen {'sc1' if 'osc1' in EXPT else ''} {'nt' if 'ont' in EXPT else ''} {'sc0 sc1' if 'osys' in EXPT else ''}")
    if PROF:
        a("s_waitcnt vmcnt(0)")
        stamp(a, 17)
        stamp_rt(a, 31)
        stamp_flush(a, vL, SB + 3)
    a.label("L_end")
    a("s_endpgm")
    return a, kdesc(KNAME, 256)

def build(path):
    ref = open("cdna_kernels/" + NAME + ".s.ref").read().split("\n")
    hdr = [l for l in ref if l.startswith(";") and "@launch" not in l and "Override launch" not in l and "grid=ceil" not in l][:16]
    k, d = gen_fused()
    errs = check(k.lines, "fused")
    for e in errs[:10]: print("HAZARD", e)
    out = "\n".join(hdr) + "\n"
    out += "; @launch grid=(256,1,1) block=(512,1,1) lds=163840\n"
    out += '.amdgcn_target "amdgcn-amd-amdhsa--gfx950"\n.text\n'
    out += k.text()
    out += '.section .rodata,"a"\n.p2align 6\n' + d
    open(path, "w").write(out)
    return len(errs)

if __name__ == "__main__":
    for arg in list(sys.argv):
        if arg.startswith("--x="):
            EXPT.update(arg[4:].split(",")); sys.argv.remove(arg)
    if "--prof" in sys.argv:
        PROF = True; sys.argv.remove("--prof")
    p = sys.argv[1] if len(sys.argv) > 1 else "f4.s"
    n = build(p)
    print("written", p, "hazards:", n)
```

```python
import sys, math, struct
from asmlib import *

NAME = "gated_mix__grouped_kv_mqa__grouped_kv_mqa__prompt"
KNAME = NAME + "_kernel"
WS_KV = 0
WS_G = 256 << 10
WS_F = 512 << 10
WS_KF = WS_F + 8192
WS_O = 1 << 20
WS_SIZE = 16 << 20
WS_PROF = 13 << 20
CQ = 0.25 * math.log2(math.e)
def f2u(f): return struct.unpack("<I", struct.pack("<f", f))[0]
MF = "v_mfma_f32_32x32x16_bf16"
SM = "v_smfmac_f32_32x32x32_bf16"
MF16 = "v_mfma_f32_16x16x32_bf16"
PROF = False
EXPT = set()
def opt(name, default):
    for x in EXPT:
        if x.startswith(name + "="): return int(x[len(name) + 1:])
    return default

L_PART = 16 << 10
L_GW = L_PART
L_WKV = 32 << 10
L_X = 48 << 10
L_KV = 32 << 10
L_SLOT = [0, 112 << 10, 128 << 10, 144 << 10, L_WKV, L_PART, 0, 112 << 10]
L_WOST = 0
L_XCH = 0
L_CNT3 = 7 * 4096 + 3072
L_CNT = L_PART + 4096 + 3072

sX, sWQ, sWKV, sWS, sDBG, sWO, sOUT, sGW = 32, 36, 40, 44, 48, 52, 56, 60
sW, sB, sHG, sTB, sGI, sTT, sC, sTTKV = 64, 65, 66, 67, 68, 69, 70, 71
sVM = 72
sPASS, sROLE, sTYPE, sNONCE = 74, 75, 76, 77
sT0, sT1, sT2, sT3, sT4, sT5 = 78, 79, 80, 81, 82, 83
sM0, sOFF = 84, 85
sTBOFF = 86
sSIG = 87
sPOLLER, sFOK = 92, 93
sPA, sPB = 94, 95
sKVI = 96
sLM = 88

def srd(a, d, base, nbytes):
    a(f"s_mov_b32 s{d}, s{base}")
    a(f"s_and_b32 s{d+1}, s{base+1}, 0xffff")
    a(f"s_mov_b32 s{d+2}, {nbytes}")
    a(f"s_mov_b32 s{d+3}, 0x20000")

def kdesc(name, vgpr, sgpr=100, accum=None):
    if accum is None: accum = (vgpr + 3) // 4 * 4
    return f""".amdhsa_kernel {name}
  .amdhsa_next_free_vgpr {vgpr}
  .amdhsa_next_free_sgpr {sgpr}
  .amdhsa_accum_offset {accum}
  .amdhsa_group_segment_fixed_size 0
  .amdhsa_kernarg_size 112
  .amdhsa_user_sgpr_count 2
  .amdhsa_user_sgpr_kernarg_segment_ptr 1
  .amdhsa_system_sgpr_workgroup_id_x 1
  .amdhsa_float_denorm_mode_32 3
.end_amdhsa_kernel
"""
def header(a, name):
    a.raw(f".globl {name}"); a.raw(".p2align 8"); a.raw(f".type {name},@function"); a.label(name)

VST = 0
def stamp(a, idx):
    if PROF:
        a("s_memtime s[90:91]")
        a("s_waitcnt lgkmcnt(0)")
        a(f"v_writelane_b32 v{VST}, s90, {idx}")
def stamp_rt(a, idx):
    if PROF:
        a("s_memrealtime s[90:91]")
        a("s_waitcnt lgkmcnt(0)")
        a(f"v_writelane_b32 v{VST}, s90, {idx}")
def stamp_flush(a, vL, vtmp0):
    if not PROF: return
    a(f"s_lshl_b32 s{sT0}, s2, 3")
    a(f"s_add_u32 s{sT0}, s{sT0}, s{sW}")
    a(f"s_lshl_b32 s{sT0}, s{sT0}, 7")
    a(f"s_add_u32 s{sT0}, s{sT0}, {WS_PROF}")
    a(f"v_lshlrev_b32 v{vtmp0}, 2, v{vL}")
    a(f"v_cmp_gt_u32 vcc, 32, v{vL}")
    a(f"s_and_saveexec_b64 s[{sT4}:{sT5}], vcc")
    a(f"buffer_store_dword v{VST}, v{vtmp0}, s[{sWS}:{sWS+3}], s{sT0} offen")
    a(f"s_mov_b64 exec, s[{sT4}:{sT5}]")
    a("s_waitcnt vmcnt(0)")

POLL_LIMIT = 0x40000

def gen_fused():
    a = Asm()
    header(a, KNAME)
    vL, vK, vV = 1, 2, 3
    QA, QB = 4, 8
    CA, CB = 12, 28
    SA, SB = 44, 60
    OA, OB = 76, 92
    KB = 108; V0 = 116; V1 = 124
    vK2, vV2, vWO, vWOr = 132, 133, 134, 135
    IDX = 0; NFR = 29; vG = 252
    WOA = 136
    if PROF:
        IDX = 255
    vT0, vT1, vT2, vT3 = 12, 13, 14, 15
    vH = 16; vN15 = 17; vXb = 18; vXt = 19
    vXa = 20
    vAa = 28
    vWq = 34; vE = 35; vGp = 36; vPw = 37
    ACC = 44
    EAC = 60
    AF = 76
    XF = 92
    WF, XFF = 136, 168
    vP0, vP1, vP2, vF = 240, 241, 242, 244
    RD = 200

    a("s_cmp_ge_u32 s2, 256")
    a("s_cbranch_scc1 L_end")
    a("s_load_dwordx8 s[4:11], s[0:1], 0")
    a("s_load_dwordx2 s[12:13], s[0:1], 32")
    a("s_load_dwordx8 s[16:23], s[0:1], 48")
    a("s_load_dwordx8 s[24:31], s[0:1], 80")
    a(f"v_lshrrev_b32 v{vT0}, 6, v0")
    a(f"v_and_b32 v{vL}, 63, v0")
    a(f"v_readfirstlane_b32 s{sW}, v{vT0}")
    if "cpf" in EXPT:
        a("s_lshr_b32 s90, s2, 4")
        a(f"s_xor_b32 s91, s{sW}, 7")
        a("s_or_b32 s90, s90, s91")
        a("s_cmp_eq_u32 s90, 0")
        a("s_cbranch_scc0 L_nocpf")
        a("s_getpc_b64 s[90:91]")
        a.label("L_cpf")
        a(f"v_lshlrev_b32 v{vT1}, 7, v{vL}")
        a(f"s_mov_b32 s{sT0}, L_end-L_cpf")
        for k in range(4):
            a(f"v_min_u32 v{vT2}, s{sT0}, v{vT1}")
            a(f"global_load_dword v250, v{vT2}, s[90:91]")
            a(f"v_add_u32 v{vT1}, 8192, v{vT1}")
        a.label("L_nocpf")
    if PROF:
        stamp(a, 0); stamp_rt(a, 30)
    a(f"s_lshr_b32 s{sT0}, s2, 3")
    a(f"s_and_b32 s{sGI}, s{sT0}, 7")
    a(f"s_lshr_b32 s{sT0}, s{sT0}, 3")
    a(f"s_and_b32 s{sT1}, s2, 7")
    a(f"s_lshl_b32 s{sT1}, s{sT1}, 2")
    a(f"s_add_u32 s{sTB}, s{sT1}, s{sT0}")
    a(f"s_lshr_b32 s{sB}, s{sGI}, 2")
    a(f"s_and_b32 s{sHG}, s{sGI}, 3")
    a(f"s_lshr_b32 s{sTYPE}, s{sHG}, 1")
    a(f"s_and_b32 s{sTTKV}, s{sHG}, 1")
    a(f"s_lshr_b32 s{sTT}, s{sW}, 2")
    a(f"s_and_b32 s{sC}, s{sW}, 3")
    a(f"s_cmp_eq_u32 s{sTT}, s{sTTKV}")
    a(f"s_cselect_b32 s{sROLE}, 1, 0")
    a(f"s_lshl_b32 s{sTBOFF}, s{sTB}, 16")
    a(f"s_lshl_b32 s{sT0}, s{sTTKV}, 2")
    a(f"s_add_u32 s{sT0}, s{sT0}, 3")
    a(f"s_cmp_eq_u32 s{sW}, s{sT0}")
    a(f"s_cselect_b32 s{sPOLLER}, 1, 0")
    a(f"s_mov_b32 s{sFOK}, 0")
    a(f"s_mov_b32 s{sSIG}, 0")
    a(f"s_mov_b32 s{sVM}, 0x0000ffff")
    a(f"s_mov_b32 s{sVM+1}, 0x0000ffff")
    a(f"s_mov_b32 s{sNONCE}, 0")
    a(f"v_lshlrev_b32 v{vK}, 4, v{vL}")
    a(f"v_lshrrev_b32 v{vH}, 5, v{vL}")
    a(f"v_mov_b32 v{vP0}, 0")
    a(f"v_mov_b32 v{vP2}, 0")
    a(f"s_mov_b32 s{sPA}, 0")
    a(f"s_mov_b32 s{sPB}, 0")
    a(f"v_and_b32 v{vT0}, 31, v{vL}")
    a(f"s_lshl_b32 s{sT0}, s{sTT}, 5")
    a(f"v_add_u32 v{vXb}, s{sT0}, v{vT0}")
    a(f"v_lshlrev_b32 v{vXb}, 10, v{vXb}")
    a(f"v_add_u32 v{vXb}, {L_X}, v{vXb}")
    a(f"v_and_b32 v{vN15}, 15, v{vL}")
    a(f"v_xor_b32 v{vXt}, v{vH}, v{vN15}")
    a(f"v_lshlrev_b32 v{vXt}, 4, v{vXt}")
    a("s_waitcnt lgkmcnt(0)")
    a(f"s_cmp_eq_u32 s{sB}, 0")
    a("s_cselect_b32 s6, s6, s16")
    a("s_cselect_b32 s7, s7, s17")
    a("s_cselect_b32 s8, s8, s18")
    a("s_cselect_b32 s9, s9, s19")
    a("s_cselect_b32 s10, s10, s20")
    a("s_cselect_b32 s11, s11, s21")
    a(f"s_cmp_eq_u32 s{sTYPE}, 0")
    a("s_cselect_b32 s8, s8, s10")
    a("s_cselect_b32 s9, s9, s11")
    srd(a, sX, 4, 2048 * 1024)
    srd(a, sWKV, 8, 16384)
    srd(a, sDBG, 28, 256)
    a(f"s_xor_b32 s{sT0}, s{sW}, 3")
    a(f"s_or_b32 s{sT0}, s2, s{sT0}")
    a(f"s_cmp_eq_u32 s{sT0}, 0")
    a("s_cbranch_scc0 L_nononce")
    a("s_memrealtime s[90:91]")
    a("s_waitcnt lgkmcnt(0)")
    a("s_or_b32 s90, s90, 1")
    a(f"v_mov_b32 v{vT1}, s90")
    a(f"v_mov_b32 v{vT3}, 128")
    a(f"buffer_store_dword v{vT1}, v{vT3}, s[{sDBG}:{sDBG+3}], 0 offen sc1")
    a.label("L_nononce")
    def xrow_dma(rowexpr, vt):
        rowexpr()
        a(f"s_and_b32 s{sT1}, s{sT0}, 15")
        a(f"v_xor_b32 v{vt}, s{sT1}, v{vL}")
        a(f"v_lshlrev_b32 v{vt}, 4, v{vt}")
        a(f"s_lshl_b32 s{sT1}, s{sT0}, 10")
        a(f"s_add_u32 m0, s{sT1}, {L_X}")
        a(f"s_add_u32 s{sT1}, s{sT1}, s{sTBOFF}")
        a(f"buffer_load_dwordx4 v{vt}, s[{sX}:{sX+3}], s{sT1} offen lds")
    a(f"s_lshl_b32 s{sT2}, s{sTTKV}, 5")
    a(f"s_add_u32 s{sT2}, s{sT2}, s{sW}")
    for i in range(4):
        xrow_dma(lambda: a(f"s_add_u32 s{sT0}, s{sT2}, {8*i}"), vT1)
    a(f"s_lshl_b32 s{sT1}, s{sW}, 11")
    a(f"s_add_u32 m0, s{sT1}, {L_WKV}")
    a(f"s_add_u32 s{sT3}, s{sT1}, 1024")
    a(f"buffer_load_dwordx4 v{vK}, s[{sWKV}:{sWKV+3}], s{sT1} offen lds")
    a(f"s_add_u32 m0, s{sT3}, {L_WKV}")
    srd(a, sGW, 24, 1024)
    a(f"buffer_load_dwordx4 v{vK}, s[{sWKV}:{sWKV+3}], s{sT3} offen lds")
    stamp(a, 1)
    srd(a, sWS, 30, WS_SIZE)
    def qaddr_setup():
        for sp in range(8):
            a(f"s_mov_b32 s{sT0}, {32*sp}")
            a(f"v_xad_u32 v{vXa+sp}, v{vXt}, s{sT0}, v{vXb}")
        a(f"v_lshrrev_b32 v{vT0}, 4, v{vL}")
        a(f"v_lshrrev_b32 v{vT3}, 2, v{vN15}")
        a(f"v_lshl_add_u32 v{vAa}, v{vH}, 3, v{vT3}")
        a(f"v_lshlrev_b32 v{vAa}, 8, v{vAa}")
        a(f"v_and_b32 v{vAa+1}, 1, v{vT0}")
        a(f"v_lshlrev_b32 v{vAa+1}, 1, v{vAa+1}")
        a(f"v_bfe_u32 v{vAa+2}, v{vN15}, 1, 1")
        a(f"v_add_u32 v{vAa+1}, v{vAa+1}, v{vAa+2}")
        a(f"s_lshl_b32 s{sT1}, s{sC}, 2")
        a(f"v_add_u32 v{vAa+1}, s{sT1}, v{vAa+1}")
        a(f"v_lshlrev_b32 v{vT3}, 2, v{vT3}")
        a(f"v_xor_b32 v{vAa+1}, v{vAa+1}, v{vT3}")
        a(f"v_lshl_add_u32 v{vAa}, v{vAa+1}, 4, v{vAa}")
        a(f"v_and_b32 v{vAa+2}, 1, v{vN15}")
        a(f"v_lshl_add_u32 v{vAa}, v{vAa+2}, 3, v{vAa}")
        for k in range(5, 0, -1):
            a(f"v_add_u32 v{vAa+k}, {L_SLOT[k]}, v{vAa}")
    def late_srds():
        a(f"s_cmp_eq_u32 s{sTT}, 0")
        a("s_cselect_b32 s12, s12, s22")
        a("s_cselect_b32 s13, s13, s23")
        srd(a, sOUT, 26, 2048 * 1024)
        srd(a, sWO, 12, 512 * 1024)
    a(f"s_cmp_eq_u32 s{sROLE}, 1")
    a("s_cbranch_scc0 L_wrole")
    if "kvprio" in EXPT: a("s_setprio 3")
    a(f"s_mov_b32 m0, {L_GW}")
    a(f"v_lshrrev_b32 v{vT0}, 4, v{vL}")
    a(f"buffer_load_dwordx4 v{vK}, s[{sGW}:{sGW+3}], 0 offen lds")
    vXk = vXa
    WF16, XF16 = 128, 192
    KAC = EAC
    a(f"s_and_b32 s{sT2}, s{sC}, 1")
    a(f"s_lshl_b32 s{sT0}, s{sTTKV}, 5")
    a(f"s_lshl_b32 s{sT1}, s{sT2}, 4")
    a(f"s_add_u32 s{sT0}, s{sT0}, s{sT1}")
    a(f"v_add_u32 v{vT2}, s{sT0}, v{vN15}")
    a(f"v_lshlrev_b32 v{vT2}, 10, v{vT2}")
    a(f"v_add_u32 v{vT2}, {L_X}, v{vT2}")
    a(f"v_xor_b32 v{vT3}, v{vT0}, v{vN15}")
    a(f"v_lshlrev_b32 v{vT3}, 4, v{vT3}")
    for sp in range(4):
        a(f"s_mov_b32 s{sT0}, {64*sp}")
        a(f"v_xad_u32 v{vXk+sp}, v{vT3}, s{sT0}, v{vT2}")
    a(f"v_lshrrev_b32 v{vE}, 2, v{vN15}")
    a(f"v_lshl_add_u32 v{vE}, v{vT0}, 3, v{vE}")
    a(f"v_lshlrev_b32 v{vE}, 5, v{vE}")
    a(f"v_and_b32 v{vT3}, 3, v{vN15}")
    a(f"v_lshl_add_u32 v{vE}, v{vT3}, 3, v{vE}")
    a(f"v_add_u32 v{vE}, {L_WKV}, v{vE}")
    a(f"v_lshlrev_b32 v{vGp}, 4, v{vT0}")
    a(f"v_add_u32 v{vGp}, {L_GW}, v{vGp}")
    a(f"v_and_b32 v{vT2}, 1, v{vT0}")
    a(f"v_lshrrev_b32 v{vT3}, 1, v{vT0}")
    a(f"s_cmp_eq_u32 s{sTYPE}, 0")
    a("s_cbranch_scc0 L_sa_v")
    a(f"v_and_b32 v{vPw}, 3, v{vN15}")
    a(f"v_and_b32 v{vT1}, 4, v{vN15}")
    a(f"v_lshl_add_u32 v{vPw}, v{vT1}, 1, v{vPw}")
    a(f"v_and_b32 v{vT1}, 8, v{vN15}")
    a(f"v_lshrrev_b32 v{vT1}, 1, v{vT1}")
    a(f"v_add_u32 v{vPw}, v{vPw}, v{vT1}")
    a(f"v_lshl_add_u32 v{vPw}, v{vT2}, 5, v{vPw}")
    a(f"s_lshl_b32 s{sT1}, s{sT2}, 4")
    a(f"v_add_u32 v{vPw}, s{sT1}, v{vPw}")
    a(f"v_lshlrev_b32 v{vPw}, 4, v{vPw}")
    a("s_branch L_sa_j")
    a.label("L_sa_v")
    a(f"v_lshl_add_u32 v{vPw}, v{vT2}, 4, v{vN15}")
    a(f"v_lshlrev_b32 v{vPw}, 4, v{vPw}")
    a(f"s_lshl_b32 s{sT1}, s{sT2}, 9")
    a(f"s_add_u32 s{sT1}, s{sT1}, 1024")
    a(f"v_add_u32 v{vPw}, s{sT1}, v{vPw}")
    a.label("L_sa_j")
    a(f"v_lshl_add_u32 v{vPw}, v{vT3}, 3, v{vPw}")
    a(f"s_lshl_b32 s{sT0}, s{sTB}, 1")
    a(f"s_add_u32 s{sT0}, s{sT0}, s{sTTKV}")
    a(f"s_lshl_b32 s{sOFF}, s{sT0}, 11")
    a(f"s_lshl_b32 s{sT3}, s{sB}, 17")
    a(f"s_add_u32 s{sOFF}, s{sOFF}, s{sT3}")
    if WS_KV: a(f"s_add_u32 s{sOFF}, s{sOFF}, {WS_KV}")
    a(f"s_lshl_b32 s{sM0}, s{sT0}, 7")
    a(f"s_add_u32 s{sM0}, s{sM0}, {WS_G}")
    vNon = 38
    a(f"v_mov_b32 v{vT3}, 128")
    a(f"buffer_load_dword v{vNon}, v{vT3}, s[{sDBG}:{sDBG+3}], 0 offen sc1")
    stamp(a, 2)
    a("s_waitcnt vmcnt(0)")
    a("s_barrier")
    stamp(a, 3)
    a(f"s_cmp_ge_u32 s{sC}, 2")
    a("s_cbranch_scc1 L_kv_gate")
    def kvreads(sx):
        a(f"ds_read_b64_tr_b16 {vr(WF16+4*sx,2)}, v{vE} offset:{sx*1024}")
        a(f"ds_read_b64_tr_b16 {vr(WF16+4*sx+2,2)}, v{vE} offset:{sx*1024+128}")
        a(f"ds_read_b128 {vr(XF16+4*sx,4)}, v{vXk+(sx%4)} offset:{(sx//4)*256}")
    D = 5
    for kind in ("k", "v"):
        if kind == "k":
            a(f"s_cmp_eq_u32 s{sTYPE}, 0")
            a("s_cbranch_scc0 L_kv_v")
        else:
            a.label("L_kv_v")
        for sx in range(D): kvreads(sx)
        for sx in range(16):
            rem = min(D - 1, 15 - sx)
            a(f"s_waitcnt lgkmcnt({3*rem})")
            c = vr(KAC, 4) if sx else "0"
            if kind == "k":
                a(f"{MF16} {vr(KAC,4)}, {vr(WF16+4*sx,4)}, {vr(XF16+4*sx,4)}, {c}")
            else:
                a(f"{MF16} {vr(KAC,4)}, {vr(XF16+4*sx,4)}, {vr(WF16+4*sx,4)}, {c}")
            if sx + D < 16: kvreads(sx + D)
        if kind == "k": a("s_branch L_kv_st")
    a.label("L_kv_st")
    a("s_nop 7")
    a(f"v_cvt_pk_bf16_f32 v{KAC+4}, v{KAC}, v{KAC+1}")
    a(f"v_cvt_pk_bf16_f32 v{KAC+5}, v{KAC+2}, v{KAC+3}")
    a(f"buffer_store_dwordx2 {vr(KAC+4,2)}, v{vPw}, s[{sWS}:{sWS+3}], s{sOFF} offen sc1")
    stamp(a, 12)
    a("s_branch L_kv_sig")
    a.label("L_kv_gate")
    a(f"s_or_b32 s{sT0}, s{sTYPE}, s{sB}")
    a(f"s_xor_b32 s{sT1}, s{sC}, 2")
    a(f"s_or_b32 s{sT0}, s{sT0}, s{sT1}")
    a(f"s_cmp_eq_u32 s{sT0}, 0")
    a("s_cbranch_scc0 L_kv_idle")
    for sp in range(4):
        a(f"v_add_u32 v{vXk+4+sp}, 16384, v{vXk+sp}")
    def greads(sx):
        a(f"ds_read_b128 {vr(WF16+4*(sx%8),4)}, v{vGp} offset:{sx*64}")
        a(f"ds_read_b128 {vr(XF16+8*(sx%8),4)}, v{vXk+(sx%4)} offset:{(sx//4)*256}")
        a(f"ds_read_b128 {vr(XF16+8*(sx%8)+4,4)}, v{vXk+4+(sx%4)} offset:{(sx//4)*256}")
    for sx in range(D): greads(sx)
    for sx in range(16):
        rem = min(D - 1, 15 - sx)
        a(f"s_waitcnt lgkmcnt({3*rem})")
        a(f"{MF16} {vr(KAC,4)}, {vr(WF16+4*(sx%8),4)}, {vr(XF16+8*(sx%8),4)}, {vr(KAC,4) if sx else '0'}")
        a(f"{MF16} {vr(KAC+4,4)}, {vr(WF16+4*(sx%8),4)}, {vr(XF16+8*(sx%8)+4,4)}, {vr(KAC+4,4) if sx else '0'}")
        if sx + D < 16: greads(sx + D)
    a(f"v_and_b32 v{vT1}, 16, v{vL}")
    a(f"v_cmp_eq_u32 vcc, 0, v{vT1}")
    a("s_nop 6")
    a(f"v_cndmask_b32 v{KAC+8}, v{KAC+4}, v{KAC}, vcc")
    a(f"v_cvt_pk_bf16_f32 v{KAC+8}, v{KAC+8}, v{KAC+8}")
    a(f"v_lshlrev_b32 v{KAC+8}, 16, v{KAC+8}")
    a(f"s_mov_b32 s{sT2}, {hex(f2u(-math.log2(math.e)))}")
    a(f"v_mul_f32 v{KAC+8}, s{sT2}, v{KAC+8}")
    a(f"v_exp_f32 v{KAC+8}, v{KAC+8}")
    a("s_nop 0")
    a(f"v_add_f32 v{KAC+8}, 1.0, v{KAC+8}")
    a(f"v_rcp_f32 v{KAC+8}, v{KAC+8}")
    a("s_nop 0")
    a(f"v_cvt_pk_bf16_f32 v{KAC+8}, v{KAC+8}, v{KAC+8}")
    a(f"v_lshlrev_b32 v{KAC+8}, 16, v{KAC+8}")
    a(f"v_lshlrev_b32 v{KAC+9}, 2, v{vL}")
    a(f"v_cmp_gt_u32 vcc, 32, v{vL}")
    a(f"s_and_saveexec_b64 s[{sT4}:{sT5}], vcc")
    a(f"buffer_store_dword v{KAC+8}, v{KAC+9}, s[{sWS}:{sWS+3}], s{sM0} offen sc1")
    a(f"s_mov_b64 exec, s[{sT4}:{sT5}]")
    a.label("L_kv_sig")
    qaddr_setup()
    late_srds()
    a(f"v_lshl_add_u32 v{vV}, v{vH}, 4, v{vN15}")
    a(f"v_lshlrev_b32 v{vV}, 4, v{vV}")
    a(f"s_mov_b32 s{sSIG}, 1")
    a("s_branch L_sigcode")
    a.label("L_kv_idle")
    if "notlb" not in EXPT:
        a(f"s_lshl_b32 s{sT0}, s{sTB}, 16")
        a(f"v_mov_b32 v{vP1}, s{sT0}")
        a(f"global_load_dword v{vF}, v{vP1}, s[26:27]")
        a(f"s_lshl_b32 s{sT0}, s{sTB}, 17")
        a(f"s_add_u32 s{sT0}, s{sT0}, {WS_O}")
        a(f"v_mov_b32 v{vP1}, s{sT0}")
        a(f"global_load_dword v{vF+1}, v{vP1}, s[30:31]")
        a(f"s_lshr_b32 s{sT0}, s{sGI}, 1")
        a(f"s_lshl_b32 s{sT0}, s{sT0}, 8")
        a(f"v_mov_b32 v{vP1}, s{sT0}")
        a(f"global_load_dword v{vF+2}, v{vP1}, s[12:13]")
        a(f"global_load_dword v{vF+3}, v{vP1}, s[22:23]")
    qaddr_setup()
    late_srds()
    a(f"v_lshl_add_u32 v{vV}, v{vH}, 4, v{vN15}")
    a(f"v_lshlrev_b32 v{vV}, 4, v{vV}")
    a(f"v_lshrrev_b32 v{vP0}, 1, v{vL}")
    a(f"v_lshlrev_b32 v{vP0}, 7, v{vP0}")
    a(f"v_and_b32 v{vP2}, 1, v{vL}")
    a(f"v_lshl_add_u32 v{vP0}, v{vP2}, 4, v{vP0}")
    a(f"v_lshlrev_b32 v{vP2}, 2, v{vP2}")
    a(f"s_lshl_b32 s{sPA}, s{sB}, 12")
    a(f"s_add_u32 s{sPA}, s{sPA}, {WS_KF}")
    a(f"s_lshl_b32 s{sPB}, s{sTB}, 7")
    a(f"s_add_u32 s{sPB}, s{sPB}, {WS_KF + 8192}")
    a(f"v_readfirstlane_b32 s{sNONCE}, v{vNon}")
    a("s_branch L_b1")
    def signal_kv():
        a(f"s_cmp_eq_u32 s{sSIG}, 1")
        a("s_cbranch_scc0 L_nosig")
        a(f"v_readfirstlane_b32 s{sNONCE}, v{vNon}")
        a(f"s_mov_b32 s{sT1}, 0")
        a.label("L_nwait")
        a(f"s_cmp_lg_u32 s{sNONCE}, 0")
        a("s_cbranch_scc1 L_nok")
        a(f"v_mov_b32 v{vT3}, 128")
        a(f"buffer_load_dword v{vNon}, v{vT3}, s[{sDBG}:{sDBG+3}], 0 offen sc1")
        a("s_waitcnt vmcnt(0)")
        a(f"v_readfirstlane_b32 s{sNONCE}, v{vNon}")
        a(f"s_add_u32 s{sT1}, s{sT1}, 1")
        a(f"s_cmp_lt_u32 s{sT1}, {POLL_LIMIT}")
        a("s_cbranch_scc1 L_nwait")
        a.label("L_nok")
        a(f"s_cmp_eq_u32 s{sC}, 2")
        a("s_cbranch_scc1 L_fa_gate")
        a(f"s_lshl_b32 s{sT0}, s{sB}, 5")
        a(f"s_add_u32 s{sT0}, s{sT0}, s{sTB}")
        a(f"s_lshl_b32 s{sT0}, s{sT0}, 7")
        a(f"s_lshl_b32 s{sT1}, s{sTTKV}, 2")
        a(f"s_lshl_b32 s{sT2}, s{sTYPE}, 1")
        a(f"s_add_u32 s{sT1}, s{sT1}, s{sT2}")
        a(f"s_add_u32 s{sT1}, s{sT1}, s{sC}")
        a(f"s_lshl_b32 s{sT1}, s{sT1}, 2")
        a(f"s_add_u32 s{sT0}, s{sT0}, s{sT1}")
        a(f"s_add_u32 s{sT0}, s{sT0}, {WS_KF}")
        a("s_branch L_fa_j")
        a.label("L_fa_gate")
        a(f"s_lshl_b32 s{sT0}, s{sTB}, 7")
        a(f"s_lshl_b32 s{sT1}, s{sTTKV}, 2")
        a(f"s_add_u32 s{sT0}, s{sT0}, s{sT1}")
        a(f"s_add_u32 s{sT0}, s{sT0}, {WS_KF + 8192}")
        a.label("L_fa_j")
        a(f"v_mov_b32 v{RD}, 0")
        a(f"v_mov_b32 v{RD+1}, s{sNONCE}")
        a("s_waitcnt vmcnt(0)")
        a(f"v_cmp_eq_u32 vcc, 0, v{vL}")
        a(f"s_and_saveexec_b64 s[{sT4}:{sT5}], vcc")
        a(f"buffer_store_dword v{RD+1}, v{RD}, s[{sWS}:{sWS+3}], s{sT0} offen sc1")
        a(f"s_mov_b64 exec, s[{sT4}:{sT5}]")
        stamp(a, 13)
        a.label("L_nosig")
    a.label("L_sigcode")
    signal_kv()
    a("s_branch L_b1")
    a.label("L_wrole")
    a(f"v_lshrrev_b32 v{vT0}, 4, v{vL}")
    a(f"v_lshlrev_b32 v{vWq}, 2, v{vT0}")
    a(f"v_xor_b32 v{vWq}, v{vWq}, v{vN15}")
    a(f"v_lshlrev_b32 v{vWq}, 4, v{vWq}")
    a(f"v_lshl_add_u32 v{vWq}, v{vT0}, 10, v{vWq}")
    a(f"s_lshl_b32 s{sT1}, s{sHG}, 8")
    a(f"v_add_u32 v{vWq}, s{sT1}, v{vWq}")
    srd(a, sWQ, 6, 512 * 1024)
    def wq_chunk(c):
        slot = L_SLOT[c]
        for i in range(4):
            a(f"s_lshl_b32 s{sT1}, s{sC}, 12")
            a(f"s_add_u32 m0, s{sT1}, {slot + i*1024}")
            a(f"s_lshl_b32 s{sT1}, s{sC}, 14")
            a(f"s_add_u32 s{sT1}, s{sT1}, {(64*c + 4*i)*1024}")
            a(f"buffer_load_dwordx4 v{vWq}, s[{sWQ}:{sWQ+3}], s{sT1} offen lds")
    def other_rows():
        a(f"s_xor_b32 s{sT2}, s{sTTKV}, 1")
        a(f"s_lshl_b32 s{sT2}, s{sT2}, 5")
        a(f"s_add_u32 s{sT2}, s{sT2}, s{sC}")
        for i in range(8):
            xrow_dma(lambda: a(f"s_add_u32 s{sT0}, s{sT2}, {4*i}"), vT1)
    EARLY = opt("early", 0)
    nbefore = 0
    if EARLY >= 1: other_rows(); nbefore += 8
    if EARLY >= 2: wq_chunk(0); nbefore += 4
    for c in range(1, 4):
        if EARLY >= 2 + c: wq_chunk(c); nbefore += 4
    qaddr_setup()
    late_srds()
    a(f"v_lshl_add_u32 v{vV}, v{vH}, 4, v{vN15}")
    a(f"v_lshlrev_b32 v{vV}, 4, v{vV}")
    stamp(a, 2)
    a(f"s_waitcnt vmcnt({nbefore})")
    a("s_barrier")
    stamp(a, 3)
    if "wdelay" in EXPT:
        a(f"v_mov_b32 v{vT0}, {L_CNT}")
        a.label("L_wspin")
        a(f"ds_read_b32 v{vT1}, v{vT0}")
        a("s_waitcnt lgkmcnt(0)")
        a(f"v_readfirstlane_b32 s{sT0}, v{vT1}")
        a(f"s_cmp_ge_u32 s{sT0}, {opt('wd', 4)}")
        a("s_cbranch_scc0 L_wspin")
    if EARLY < 1: other_rows()
    if EARLY < 2: wq_chunk(0)
    for c in range(1, 4):
        if EARLY < 2 + c: wq_chunk(c)
    stamp(a, 4)
    a("s_waitcnt vmcnt(8)")
    a.label("L_b1")
    if "kvprio" in EXPT: a("s_setprio 0")
    a("s_barrier")
    stamp(a, 5)
    def qreads(s):
        c, sp4 = s // 4, s % 4
        buf = s % 4
        va = vAa + [0, 1, 2, 3, 4, 5, 0, 1][c]
        a(f"ds_read_b64_tr_b16 {vr(AF+4*buf,2)}, v{va} offset:{sp4*4096}")
        a(f"ds_read_b64_tr_b16 {vr(AF+4*buf+2,2)}, v{va} offset:{sp4*4096+1024}")
        a(f"ds_read_b128 {vr(XF+4*buf,4)}, v{vXa + (s % 8)} offset:{(s//8)*256}")
    def qmf(s):
        buf = s % 4
        a(f"{MF} {vr(ACC,16)}, {vr(AF+4*buf,4)}, {vr(XF+4*buf,4)}, {vr(ACC,16) if s else '0'}")
    def flag_loads():
        a(f"buffer_load_dwordx4 {vr(vF,4)}, v{vP0}, s[{sWS}:{sWS+3}], s{sPA} offen sc1")
        a(f"buffer_load_dword v{vF+4}, v{vP2}, s[{sWS}:{sWS+3}], s{sPB} offen sc1")
    def flag_cmp():
        a(f"v_cmp_eq_u32 vcc, s{sNONCE}, v{vF}")
        for k in range(1, 5):
            a(f"v_cmp_eq_u32 s[{sT2}:{sT3}], s{sNONCE}, v{vF+k}")
            a(f"s_and_b64 vcc, vcc, s[{sT2}:{sT3}]")
    def first_kv():
        a(f"s_lshl_b32 s{sOFF}, s{sB}, 17")
        if WS_KV: a(f"s_add_u32 s{sOFF}, s{sOFF}, {WS_KV}")
        a(f"s_mov_b32 s{sM0}, {L_KV}")
        for i in range(8):
            a(f"s_mov_b32 m0, s{sM0}")
            a(f"s_add_u32 s{sM0}, s{sM0}, 1024")
            a(f"buffer_load_dwordx4 v{vK}, s[{sWS}:{sWS+3}], s{sOFF} offen sc1 lds")
            a(f"s_add_u32 s{sOFF}, s{sOFF}, 1024")
        a(f"s_mov_b32 s{sFOK}, 2")
    def poller_step(p, check, can_first):
        lab = f"L_ps{p}"
        a(f"s_cmp_eq_u32 s{sPOLLER}, 1")
        a(f"s_cbranch_scc0 {lab}")
        a(f"s_cmp_lg_u32 s{sFOK}, 0")
        a(f"s_cbranch_scc1 {lab}_fok")
        if check:
            a("s_waitcnt vmcnt(0)")
            a(f"s_cmp_eq_u32 s{sNONCE}, 0")
            a(f"s_cbranch_scc1 {lab}_re")
            flag_cmp()
            a("s_cmp_eq_u64 vcc, exec")
            a(f"s_cbranch_scc0 {lab}_re")
            a(f"s_mov_b32 s{sFOK}, 1")
            a(f"s_branch {lab}_fok")
            a.label(f"{lab}_re")
            a(f"s_cmp_lg_u32 s{sNONCE}, 0")
            a(f"s_cbranch_scc1 {lab}_ld")
            a(f"v_readfirstlane_b32 s{sNONCE}, v{vNon}")
            a.label(f"{lab}_ld")
        a(f"v_mov_b32 v{vP1}, 128")
        a(f"buffer_load_dword v{vNon}, v{vP1}, s[{sDBG}:{sDBG+3}], 0 offen sc1")
        flag_loads()
        a(f"s_branch {lab}")
        a.label(f"{lab}_fok")
        if can_first:
            a(f"s_cmp_eq_u32 s{sFOK}, 1")
            a(f"s_cbranch_scc0 {lab}")
            first_kv()
        a.label(lab)
    for s_ in range(4): qreads(s_)
    a(f"s_cmp_eq_u32 s{sROLE}, 1")
    a("s_cbranch_scc1 L_c5_skip")
    wq_chunk(4)
    wq_chunk(5)
    a.label("L_c5_skip")
    for p in range(4):
        for j in range(8):
            s_ = 8 * p + j
            if j < 7:
                nxt = min(3, 7 - j)
                a(f"s_waitcnt lgkmcnt({3*nxt})")
                qmf(s_)
                if j + 4 < 8: qreads(s_ + 4)
            else:
                a("s_waitcnt lgkmcnt(0)")
                if p < 3:
                    lab = f"L_q{p}"
                    a(f"s_cmp_eq_u32 s{sROLE}, 1")
                    a(f"s_cbranch_scc1 {lab}_kv")
                    a(f"s_waitcnt vmcnt({[8, 8, 0][p]})")
                    a("s_barrier")
                    if p == 0:
                        wq_chunk(6); wq_chunk(7)
                    a(f"s_branch {lab}_j")
                    a.label(f"{lab}_kv")
                    a("s_barrier")
                    a.label(f"{lab}_j")
                    for k in range(3): qreads(8 * (p + 1) + k)
                    qmf(s_)
                    qreads(8 * (p + 1) + 3)
                    poller_step(p, check=(p > 0), can_first=(p == 2))
                    if p == 2:
                        a(f"s_cmp_eq_u32 s{sW}, 0")
                        a("s_cbranch_scc0 L_nocz")
                        a(f"v_mov_b32 v{RD}, 0")
                        a(f"ds_write_b32 v{RD}, v{RD} offset:{L_CNT3}")
                        a.label("L_nocz")
                    if "st3" in EXPT: stamp(a, 18 + p)
                else:
                    qmf(s_)
    stamp(a, 6)
    def poll(label, load, cmpcode):
        a(f"s_mov_b32 s{sT1}, 0")
        a.label(label)
        load()
        a("s_waitcnt vmcnt(0)")
        cmpcode()
        a("s_cmp_eq_u64 vcc, exec")
        a(f"s_cbranch_scc1 {label}_done")
        a(f"s_add_u32 s{sT1}, s{sT1}, 1")
        a(f"s_cmp_lt_u32 s{sT1}, {POLL_LIMIT}")
        a(f"s_cbranch_scc0 {label}_done")
        a("s_sleep 1")
        a(f"s_branch {label}")
        a.label(f"{label}_done")
    a(f"s_mov_b32 s{sT0}, {hex(f2u(CQ))}")
    a(f"v_add_u32 v{vV}, {L_KV+1024}, v{vV}")
    a(f"v_and_b32 v{vT0}, 27, v{vL}")
    a(f"v_cmp_eq_u32 vcc, 16, v{vT0}")
    a(f"v_mov_b32 v{vT1}, 0x3f803f80")
    a(f"v_add_u32 v{vV2}, 0x10000, v{vV}")
    for i in range(16):
        a(f"v_cndmask_b32 v{V0+i}, 0, v{vT1}, vcc")
    a(f"s_mov_b32 s{sT1}, s{sT0}")
    for i in range(0, 16, 2):
        a(f"v_pk_mul_f32 {vr(ACC+i,2)}, {vr(ACC+i,2)}, s[{sT0}:{sT1}]")
    for j in range(4):
        a(f"v_cvt_pk_bf16_f32 v{QA+j}, v{ACC+2*j}, v{ACC+2*j+1}")
        a(f"v_cvt_pk_bf16_f32 v{QB+j}, v{ACC+8+2*j}, v{ACC+8+2*j+1}")
    a(f"s_cmp_eq_u32 s{sPOLLER}, 1")
    a("s_cbranch_scc0 L_nopoll")
    a(f"s_cmp_eq_u32 s{sFOK}, 2")
    a("s_cbranch_scc1 L_nopoll")
    a(f"s_cmp_eq_u32 s{sFOK}, 1")
    a("s_cbranch_scc1 L_dofirst")
    a("s_waitcnt vmcnt(0)")
    a(f"s_cmp_lg_u32 s{sNONCE}, 0")
    a("s_cbranch_scc0 L_getnonce")
    flag_cmp()
    a("s_cmp_eq_u64 vcc, exec")
    a("s_cbranch_scc1 L_dofirst")
    a("s_branch L_havenonce")
    a.label("L_getnonce")
    a(f"v_readfirstlane_b32 s{sNONCE}, v{vNon}")
    a(f"v_mov_b32 v{vP1}, 128")
    def ldn(): a(f"buffer_load_dword v{vNon}, v{vP1}, s[{sDBG}:{sDBG+3}], 0 offen sc1")
    def cmpn(): a(f"v_cmp_ne_u32 vcc, 0, v{vNon}")
    a(f"s_cmp_lg_u32 s{sNONCE}, 0")
    a("s_cbranch_scc1 L_havenonce")
    poll("L_polln", ldn, cmpn)
    a(f"v_readfirstlane_b32 s{sNONCE}, v{vNon}")
    a.label("L_havenonce")
    poll("L_poll", flag_loads, flag_cmp)
    a.label("L_dofirst")
    first_kv()
    a.label("L_nopoll")
    for i in range(0, 16, 2):
        a(f"v_pk_mov_b32 {vr(OA+i,2)}, 0, 0")
        a(f"v_pk_mov_b32 {vr(OB+i,2)}, 0, 0")
    a(f"v_lshrrev_b32 v{vT0}, 2, v{vL}")
    a(f"v_and_b32 v{vT1}, 3, v{vL}")
    a(f"v_lshlrev_b32 v{vT1}, 4, v{vT1}")
    a(f"v_lshl_add_u32 v{vWO}, v{vT0}, 10, v{vT1}")
    a(f"s_lshr_b32 s{sT0}, s{sGI}, 1")
    a(f"s_lshl_b32 s{sT0}, s{sT0}, 8")
    a(f"s_lshl_b32 s{sT1}, s{sC}, 6")
    a(f"s_add_u32 s{sT0}, s{sT0}, s{sT1}")
    a(f"v_add_u32 v{vWO}, s{sT0}, v{vWO}")
    a(f"v_lshrrev_b32 v{vT1}, 2, v{vN15}")
    a(f"v_lshl_add_u32 v{vT1}, v{vH}, 2, v{vT1}")
    a(f"v_lshlrev_b32 v{vWOr}, 6, v{vT1}")
    a(f"v_bfe_u32 v{vT1}, v{vL}, 4, 1")
    a(f"v_lshl_add_u32 v{vWOr}, v{vT1}, 5, v{vWOr}")
    a(f"v_and_b32 v{vT0}, 3, v{vN15}")
    a(f"v_lshl_add_u32 v{vWOr}, v{vT0}, 3, v{vWOr}")
    a(f"s_lshl_b32 s{sT0}, s{sW}, 12")
    a(f"v_add_u32 v{vWOr}, s{sT0}, v{vWOr}")
    a(f"v_mov_b32 v{IDX}, 0xdddddddd")
    a(f"s_lshl_b32 s{sOFF}, s{sB}, 17")
    a(f"s_add_u32 s{sOFF}, s{sOFF}, {WS_KV + 8192}")
    a(f"s_lshl_b32 s{sM0}, s{sC}, 11")
    a(f"s_add_u32 s{sOFF}, s{sOFF}, s{sM0}")
    a(f"s_add_u32 s{sM0}, s{sM0}, {L_KV + 8192}")
    vKd = 253
    a(f"v_mov_b32 v{vKd}, v{vK}")
    a(f"v_add_u32 v{vK}, {L_KV}, v{vK}")
    a(f"v_add_u32 v{vK2}, 0x10000, v{vK}")
    a(f"s_mov_b32 s{sPASS}, 1")
    a(f"s_lshr_b32 s{sKVI}, s{sW}, 2")
    a(f"v_and_b32 v{vG}, 31, v{vL}")
    a(f"v_lshlrev_b32 v{vG}, 2, v{vG}")
    a(f"s_lshl_b32 s{sT2}, s{sTB}, 1")
    a(f"s_add_u32 s{sT2}, s{sT2}, s{sTT}")
    a(f"s_lshl_b32 s{sT2}, s{sT2}, 7")
    a(f"s_add_u32 s{sT2}, s{sT2}, {WS_G}")
    a("s_waitcnt vmcnt(0)")
    a("s_barrier")
    stamp(a, 7)
    def kv_step():
        a(f"s_mov_b32 m0, s{sM0}")
        a(f"s_add_u32 s{sT0}, s{sOFF}, 1024")
        a(f"buffer_load_dwordx4 v{vKd}, s[{sWS}:{sWS+3}], s{sOFF} offen sc1 lds")
        a(f"s_add_u32 m0, s{sM0}, 1024")
        a(f"s_add_u32 s{sM0}, s{sM0}, 8192")
        a(f"buffer_load_dwordx4 v{vKd}, s[{sWS}:{sWS+3}], s{sT0} offen sc1 lds")
        a(f"s_add_u32 s{sOFF}, s{sOFF}, 8192")
    a(f"buffer_load_dword v{vG}, v{vG}, s[{sWS}:{sWS+3}], s{sT2} offen sc1")
    def ldK(buf, t):
        va = vK if t < 32 else vK2
        a(f"ds_read_b128 {vr(KB+4*buf,4)}, v{va} offset:{(t % 32)*2048}")
    def ldV(buf, t):
        va = vV if t < 32 else vV2
        off = (t % 32) * 2048
        a(f"s_mov_b64 exec, s[{sVM}:{sVM+1}]")
        a(f"ds_read_b128 {vr(V0+4*buf,4)}, v{va} offset:{off}")
        a(f"ds_read_b128 {vr(V1+4*buf,4)}, v{va} offset:{off+512}")
        a("s_mov_b64 exec, -1")
    def neg_bcast(C, m):
        for i in range(0, 16, 2):
            a(f"v_pk_mul_f32 {vr(C+i,2)}, {vr(m,2)}, -1.0 op_sel_hi:[0,0]")
    def crosshalf_max(m, t):
        a(f"v_mov_b32 v{t}, v{m}")
        a("s_nop 1")
        a(f"v_permlane32_swap_b32 v{m}, v{t}")
        a("s_nop 1")
        a(f"v_max_f32 v{m}, v{m}, v{t}")
    def rowmax(S, m):
        a(f"v_max3_f32 v{m}, v{S}, v{S+1}, v{S+2}")
        for i in range(3, 15, 2):
            a(f"v_max3_f32 v{m}, v{m}, v{S+i}, v{S+i+1}")
        a(f"v_max_f32 v{m}, v{m}, v{S+15}")
    M0r, M1r, M2r, M3r = WOA, WOA + 1, WOA + 2, WOA + 3
    ldK(0, 0)
    ldK(1, 1)
    ldV(0, 0)
    a("s_waitcnt lgkmcnt(3)")
    a(f"{MF} {vr(SA,16)}, {vr(KB,4)}, {vr(QA,4)}, 0")
    a(f"{MF} {vr(SB,16)}, {vr(KB,4)}, {vr(QB,4)}, 0")
    for i in range(8, 16, 2):
        pass
    a("s_nop 10")
    rowmax(SA, M0r); rowmax(SB, M2r)
    crosshalf_max(M0r, M1r); crosshalf_max(M2r, M3r)
    neg_bcast(CA, M0r); neg_bcast(CB, M2r)
    a("s_branch L_go")
    a.label("L_restart")
    for i in range(0, 16, 2):
        a(f"v_pk_mov_b32 {vr(OA+i,2)}, 0, 0")
        a(f"v_pk_mov_b32 {vr(OB+i,2)}, 0, 0")
    ldK(0, 0)
    ldK(1, 1)
    ldV(0, 0)
    a.label("L_go")
    for i in range(8, 16, 2):
        a(f"v_pk_mov_b32 {vr(SB+i,2)}, 0, 0")
    a("s_waitcnt lgkmcnt(0)")
    a(f"{MF} {vr(SA,16)}, {vr(KB,4)}, {vr(QA,4)}, {vr(CA,16)}")
    if "noprio" not in EXPT:
        a(f"s_cmp_ge_u32 s{sW}, 4")
        a("s_cbranch_scc0 L_noprio0")
        a("s_setprio 1")
        a.label("L_noprio0")
    a("s_nop 7")
    a("s_nop 1")
    stamp(a, 9)
    def ex(S, i): a(f"v_exp_f32 v{S+i}, v{S+i}")
    T0W = 16
    def wo_dma(f):
        a(f"s_lshl_b32 s{sT0}, s{sW}, 12")
        a(f"s_add_u32 m0, s{sT0}, {L_WOST + (f % 3)*1024}")
        a(f"s_mov_b32 s{sT1}, {f*16384}")
        a(f"buffer_load_dwordx4 v{vWO}, s[{sWO}:{sWO+3}], s{sT1} offen lds")
    def wo_read(f, dst):
        a(f"ds_read_b64_tr_b16 {vr(dst,2)}, v{vWOr} offset:{L_WOST + (f % 3)*1024}")
        a(f"ds_read_b64_tr_b16 {vr(dst+2,2)}, v{vWOr} offset:{L_WOST + (f % 3)*1024 + 512}")
    PSW = opt("psw", 53)
    for t in range(64):
        p = t & 1
        def sync(k, n):
            a(f"s_cmp_eq_u32 s{sPASS}, 1")
            a(f"s_cbranch_scc0 L_sy{k}_done")
            a(f"s_cmp_ge_u32 s{sW}, 4")
            a(f"s_cbranch_scc0 L_sy{k}_spin")
            if n is not None: a(f"s_waitcnt vmcnt({n})")
            a(f"v_mov_b32 v254, 1")
            a("s_mov_b64 exec, 1")
            a(f"ds_add_u32 v{vKd}, v254 offset:{L_CNT3}")
            a("s_mov_b64 exec, -1")
            a.label(f"L_sy{k}_spin")
            a(f"ds_read_b32 v254, v{vKd} offset:{L_CNT3}")
            a("s_waitcnt lgkmcnt(0)")
            a(f"v_readfirstlane_b32 s{sT0}, v254")
            a(f"s_cmp_ge_u32 s{sT0}, {4*k}")
            a(f"s_cbranch_scc0 L_sy{k}_spin")
            a.label(f"L_sy{k}_done")
        if t == 2:  sync(1, 2)
        if t == 6:  sync(2, 6)
        if t == 14: sync(3, 14)
        if t == 30: sync(4, None)
        if t == PSW and "noprio" not in EXPT:
            a("s_setprio 0")
        ex(SA, 0); ex(SA, 1)
        a(f"{SM} {vr(OB,16)}, {vr(V1+4*(p^1),4)}, {vr(SB+8,8)}, v{IDX}")
        ex(SA, 2); ex(SA, 3); ex(SA, 4)
        a(f"{MF} {vr(SB,16)}, {vr(KB+4*p,4)}, {vr(QB,4)}, {vr(CB,16)}")
        nld = 0
        if t + 2 < 64: ldK(p, t + 2); nld += 1
        if t + 1 < 64: ldV(p ^ 1, t + 1); nld += 2
        for i in range(5, 10): ex(SA, i)
        a(f"s_waitcnt lgkmcnt({nld})")
        a(f"{SM} {vr(OA,16)}, {vr(V0+4*p,4)}, {vr(SA,8)}, v{IDX}")
        for i in range(10, 13): ex(SA, i)
        if t <= 14:
            a(f"s_cmp_eq_u32 s{sKVI}, 1")
            a(f"s_cbranch_scc0 L_nokv{t}")
            kv_step()
            a.label(f"L_nokv{t}")
        fd = t - T0W
        if 0 <= fd < NFR: wo_dma(fd)
        for i in range(13, 16): ex(SA, i)
        ex(SB, 0); ex(SB, 1)
        a(f"{SM} {vr(OA,16)}, {vr(V1+4*p,4)}, {vr(SA+8,8)}, v{IDX}")
        ex(SB, 2); ex(SB, 3); ex(SB, 4)
        if t + 1 < 64:
            a(f"{MF} {vr(SA,16)}, {vr(KB+4*(p^1),4)}, {vr(QA,4)}, {vr(CA,16)}")
        else:
            a("s_nop 0")
        for i in range(5, 8): ex(SB, i)
        fr = t - T0W - 2
        if 0 <= fr < NFR:
            outstanding_after = min(fd, NFR - 1) - fr
            a(f"s_waitcnt vmcnt({outstanding_after})")
            wo_read(fr, WOA + 4 * fr)
        for i in range(8, 10): ex(SB, i)
        a(f"{SM} {vr(OB,16)}, {vr(V0+4*p,4)}, {vr(SB,8)}, v{IDX}")
        for i in range(10, 16): ex(SB, i)
    a("s_nop 1")
    a(f"{SM} {vr(OB,16)}, {vr(V1+4,4)}, {vr(SB+8,8)}, v{IDX}")
    for f in range(NFR, 32): wo_dma(f)
    TT = SA
    a(f"v_sub_f32 v{TT+2}, 1.0, v{vG}")
    a(f"v_cvt_pk_bf16_f32 v{TT+2}, v{TT+2}, v{TT+2}")
    a(f"v_lshlrev_b32 v{TT+2}, 16, v{TT+2}")
    a(f"s_cmp_eq_u32 s{sB}, 0")
    a(f"s_cselect_b64 s[{sLM}:{sLM+1}], -1, 0")
    a(f"v_cndmask_b32 v{TT+2}, v{TT+2}, v{vG}, s[{sLM}:{sLM+1}]")
    stamp(a, 10)
    a(f"v_mul_f32 v{TT}, 0, v{OA}")
    for i in range(1, 8): a(f"v_fma_f32 v{TT}, v{OA+i}, 0, v{TT}")
    for i in range(0, 8): a(f"v_fma_f32 v{TT}, v{OB+i}, 0, v{TT}")
    a(f"v_max_f32 v{TT+1}, v{OA+8}, v{OB+8}")
    a(f"v_add_f32 v{TT}, v{TT}, v{TT+1}")
    a(f"s_mov_b32 s{sT0}, {hex(f2u(2.0**60))}")
    a(f"v_cmp_gt_f32 vcc, s{sT0}, v{TT}")
    a(f"s_cmp_eq_u32 s{sPASS}, 2")
    a("s_cbranch_scc1 L_fin")
    a("s_cmp_eq_u64 vcc, exec")
    a("s_cbranch_scc1 L_fin")
    a(f"s_mov_b32 s{sPASS}, 2")
    a(f"s_mov_b32 s{sKVI}, 0")
    FM0, FM1, FM2, FM3 = KB + 4, KB + 5, KB + 6, KB + 7
    a(f"v_mov_b32 v{FM0}, 0xff800000")
    a(f"v_mov_b32 v{FM2}, 0xff800000")
    a(f"v_mov_b32 v{FM1}, v{vK}")
    a(f"s_mov_b32 s{sT0}, 0")
    a.label("L_maxloop")
    a(f"ds_read_b128 {vr(KB,4)}, v{FM1}")
    a("s_waitcnt lgkmcnt(0)")
    a(f"{MF} {vr(SA,16)}, {vr(KB,4)}, {vr(QA,4)}, 0")
    a(f"{MF} {vr(SB,16)}, {vr(KB,4)}, {vr(QB,4)}, 0")
    a("s_nop 15")
    for i in range(0, 16, 2):
        a(f"v_max3_f32 v{FM0}, v{FM0}, v{SA+i}, v{SA+i+1}")
        a(f"v_max3_f32 v{FM2}, v{FM2}, v{SB+i}, v{SB+i+1}")
    a(f"v_add_u32 v{FM1}, 2048, v{FM1}")
    a(f"s_add_u32 s{sT0}, s{sT0}, 1")
    a(f"s_cmp_lt_u32 s{sT0}, 64")
    a("s_cbranch_scc1 L_maxloop")
    crosshalf_max(FM0, FM1); crosshalf_max(FM2, FM3)
    neg_bcast(CA, FM0); neg_bcast(CB, FM2)
    a("s_waitcnt vmcnt(0)")
    a("s_branch L_restart")
    a.label("L_fin")
    a(f"v_rcp_f32 v{TT}, v{OA+8}")
    a(f"v_rcp_f32 v{TT+1}, v{OB+8}")
    a("s_nop 0")
    a(f"v_mul_f32 v{TT}, v{TT}, v{TT+2}")
    a(f"v_mul_f32 v{TT+1}, v{TT+1}, v{TT+2}")
    for i in range(8):
        a(f"v_mul_f32 v{OA+i}, v{TT}, v{OA+i}")
        a(f"v_mul_f32 v{OB+i}, v{TT+1}, v{OB+i}")
    for j in range(4):
        a(f"v_cvt_pk_bf16_f32 v{SA+4+j}, v{OA+2*j}, v{OA+2*j+1}")
        a(f"v_cvt_pk_bf16_f32 v{SA+8+j}, v{OB+2*j}, v{OB+2*j+1}")
    a(f"s_lshl_b32 s{sT0}, s{sTB}, 1")
    a(f"s_add_u32 s{sT0}, s{sT0}, s{sTT}")
    a(f"s_lshl_b32 s{sT0}, s{sT0}, 6")
    a(f"s_lshl_b32 s{sT1}, s{sGI}, 3")
    a(f"s_add_u32 s{sT0}, s{sT0}, s{sT1}")
    a(f"s_lshl_b32 s{sT1}, s{sC}, 1")
    a(f"s_add_u32 s{sT0}, s{sT0}, s{sT1}")
    a(f"s_lshl_b32 s{sT0}, s{sT0}, 10")
    a(f"s_add_u32 s{sT0}, s{sT0}, {WS_O}")
    vS = SB
    a(f"v_lshlrev_b32 v{vS}, 4, v{vL}")
    a(f"buffer_store_dwordx4 {vr(SA+4,4)}, v{vS}, s[{sWS}:{sWS+3}], s{sT0} offen sc1")
    a(f"buffer_store_dwordx4 {vr(SA+8,4)}, v{vS}, s[{sWS}:{sWS+3}], s{sT0} offen offset:1024 sc1")
    a("s_waitcnt vmcnt(2)")
    XFR = {}
    for k, f in enumerate(range(NFR, 32)):
        XFR[f] = [KB, KB + 4, V0][k]
        wo_read(f, XFR[f])
    a(f"s_and_b32 s{sT2}, s{sGI}, 1")
    a(f"s_lshl_b32 s{sT3}, s{sTB}, 1")
    a(f"s_add_u32 s{sT3}, s{sT3}, s{sT2}")
    a(f"s_lshl_b32 s{sT4}, s{sTT}, 5")
    a(f"s_lshl_b32 s{sT5}, s{sC}, 1")
    a(f"s_add_u32 s{sT4}, s{sT4}, s{sT5}")
    a(f"s_lshl_b32 s{sM0}, s{sT4}, 10")
    a(f"s_lshl_b32 s{sOFF}, s{sT3}, 16")
    a(f"s_add_u32 s{sOFF}, s{sOFF}, s{sM0}")
    a(f"s_add_u32 s{sOFF}, s{sOFF}, {WS_O}")
    a(f"s_add_u32 s{sM0}, s{sM0}, {L_KV}")
    vB = SB + 6
    a(f"s_lshl_b32 s{sT4}, s{sTT}, 15")
    a(f"s_add_u32 s{sT4}, s{sT4}, {L_KV}")
    a(f"v_add_u32 v{vB}, s{sT4}, v{vS}")
    vO = SB + 7
    a(f"v_and_b32 v{vO}, 31, v{vL}")
    a(f"s_lshl_b32 s{sT3}, s{sT3}, 5")
    a(f"v_add_u32 v{vO}, s{sT3}, v{vO}")
    a(f"v_lshlrev_b32 v{vO}, 10, v{vO}")
    a(f"v_lshrrev_b32 v{SB+3}, 5, v{vL}")
    a(f"v_lshl_add_u32 v{vO}, v{SB+3}, 4, v{vO}")
    a(f"s_lshr_b32 s{sT2}, s{sGI}, 1")
    a(f"s_lshl_b32 s{sT2}, s{sT2}, 8")
    a(f"s_lshl_b32 s{sT3}, s{sC}, 6")
    a(f"s_add_u32 s{sT2}, s{sT2}, s{sT3}")
    a(f"s_lshl_b32 s{sT3}, s{sTT}, 5")
    a(f"s_add_u32 s{sT2}, s{sT2}, s{sT3}")
    a(f"v_add_u32 v{vO}, s{sT2}, v{vO}")
    vXw, vXr = SB + 3, SB + 4
    a(f"s_lshl_b32 s{sT0}, s{sW}, 11")
    a(f"v_add_u32 v{vXw}, s{sT0}, v{vS}")
    a(f"s_xor_b32 s{sT1}, s{sW}, 4")
    a(f"s_lshl_b32 s{sT1}, s{sT1}, 11")
    a(f"v_add_u32 v{vXr}, s{sT1}, v{vS}")
    a("s_waitcnt vmcnt(0)")
    a("s_barrier")
    stamp(a, 11)
    a(f"s_cmp_eq_u32 s{sPOLLER}, 1")
    a("s_cbranch_scc0 L_nosig2")
    a(f"s_lshl_b32 s{sT0}, s{sTB}, 7")
    a(f"s_add_u32 s{sT0}, s{sT0}, {WS_F}")
    a(f"s_lshl_b32 s{sT1}, s{sGI}, 2")
    a(f"v_mov_b32 v{SB+1}, s{sT1}")
    a(f"v_mov_b32 v{SB+2}, s{sNONCE}")
    a(f"v_cmp_eq_u32 vcc, 0, v{vL}")
    a(f"s_and_saveexec_b64 s[{sT4}:{sT5}], vcc")
    a(f"buffer_store_dword v{SB+2}, v{SB+1}, s[{sWS}:{sWS+3}], s{sT0} offen sc1")
    a(f"s_mov_b64 exec, s[{sT4}:{sT5}]")
    a(f"v_and_b32 v{SB+1}, 7, v{vL}")
    a(f"v_lshlrev_b32 v{SB+1}, 2, v{SB+1}")
    def ld2(): a(f"buffer_load_dword v{SB+2}, v{SB+1}, s[{sWS}:{sWS+3}], s{sT0} offen sc1")
    def cmp2(): a(f"v_cmp_eq_u32 vcc, s{sNONCE}, v{SB+2}")
    poll("L_poll2", ld2, cmp2)
    a.label("L_nosig2")
    a("s_barrier")
    stamp(a, 14)
    def o_dma(q):
        for i in range(2):
            a(f"s_add_u32 m0, s{sM0}, {(8*q+i)*1024}")
            a(f"s_add_u32 s{sT0}, s{sOFF}, {(8*q+i)*1024}")
            a(f"buffer_load_dwordx4 v{vS}, s[{sWS}:{sWS+3}], s{sT0} offen sc1 lds")
    o_dma(0); o_dma(1)
    ACC3 = OA
    BF = CA
    def afr(s): return XFR[s] if s in XFR else WOA + 4 * s
    for q in range(4):
        a(f"s_waitcnt vmcnt({[2, 4, 2, 0][q]})")
        if q == 0:
            pass
        a("s_barrier")
        if q == 0:
            stamp(a, 15)
        for i in range(8):
            a(f"ds_read_b128 {vr(BF+4*i,4)}, v{vB} offset:{(8*q+i)*1024}")
        if q == 0:
            o_dma(2); o_dma(3)
        for i in range(8):
            a(f"s_waitcnt lgkmcnt({7-i})")
            a(f"{MF} {vr(ACC3,16)}, {vr(afr(8*q+i),4)}, {vr(BF+4*i,4)}, {vr(ACC3,16) if (q or i) else '0'}")
    stamp(a, 16)
    a("s_nop 15")
    a(f"s_cmp_eq_u32 s{sTT}, 0")
    a("s_cbranch_scc0 L_x_b1")
    a(f"ds_write_b128 v{vXw}, {vr(ACC3+8,4)} offset:{L_XCH}")
    a(f"ds_write_b128 v{vXw}, {vr(ACC3+12,4)} offset:{L_XCH+1024}")
    a("s_waitcnt lgkmcnt(0)")
    a("s_barrier")
    a(f"ds_read_b128 {vr(CB,4)}, v{vXr} offset:{L_XCH}")
    a(f"ds_read_b128 {vr(CB+4,4)}, v{vXr} offset:{L_XCH+1024}")
    a("s_waitcnt lgkmcnt(0)")
    for i in range(0, 8, 2):
        a(f"v_pk_add_f32 {vr(CB+i,2)}, {vr(CB+i,2)}, {vr(ACC3+i,2)}")
    a("s_branch L_x_j")
    a.label("L_x_b1")
    a(f"ds_write_b128 v{vXw}, {vr(ACC3,4)} offset:{L_XCH}")
    a(f"ds_write_b128 v{vXw}, {vr(ACC3+4,4)} offset:{L_XCH+1024}")
    a("s_waitcnt lgkmcnt(0)")
    a("s_barrier")
    a(f"ds_read_b128 {vr(CB,4)}, v{vXr} offset:{L_XCH}")
    a(f"ds_read_b128 {vr(CB+4,4)}, v{vXr} offset:{L_XCH+1024}")
    a("s_waitcnt lgkmcnt(0)")
    for i in range(0, 8, 2):
        a(f"v_pk_add_f32 {vr(CB+i,2)}, {vr(CB+i,2)}, {vr(ACC3+8+i,2)}")
    a.label("L_x_j")
    R = SA + 4
    for i in range(0, 8, 2):
        a(f"v_cvt_pk_bf16_f32 v{R+i//2}, v{CB+i}, v{CB+i+1}")
    a("s_nop 1")
    a(f"v_permlane32_swap_b32 v{R}, v{R+2}")
    a(f"v_permlane32_swap_b32 v{R+1}, v{R+3}")
    a(f"buffer_store_dwordx4 {vr(R,4)}, v{vO}, s[{sOUT}:{sOUT+3}], 0 offen {'sc1' if 'osc1' in EXPT else ''} {'nt' if 'ont' in EXPT else ''} {'sc0 sc1' if 'osys' in EXPT else ''}")
    if PROF:
        a("s_waitcnt vmcnt(0)")
        stamp(a, 17)
        stamp_rt(a, 31)
        stamp_flush(a, vL, SB + 3)
    a.label("L_end")
    a("s_endpgm")
    return a, kdesc(KNAME, 256)

def build(path):
    ref = open("cdna_kernels/" + NAME + ".s.ref").read().split("\n")
    hdr = [l for l in ref if l.startswith(";") and "@launch" not in l and "Override launch" not in l and "grid=ceil" not in l][:16]
    k, d = gen_fused()
    errs = check(k.lines, "fused")
    for e in errs[:10]: print("HAZARD", e)
    out = "\n".join(hdr) + "\n"
    out += "; @launch grid=(256,1,1) block=(512,1,1) lds=163840\n"
    out += '.amdgcn_target "amdgcn-amd-amdhsa--gfx950"\n.text\n'
    out += k.text()
    out += '.section .rodata,"a"\n.p2align 6\n' + d
    open(path, "w").write(out)
    return len(errs)

if __name__ == "__main__":
    for arg in list(sys.argv):
        if arg.startswith("--x="):
            EXPT.update(arg[4:].split(",")); sys.argv.remove(arg)
    if "--prof" in sys.argv:
        PROF = True; sys.argv.remove("--prof")
    p = sys.argv[1] if len(sys.argv) > 1 else "f4.s"
    n = build(p)
    print("written", p, "hazards:", n)
```

```python
import sys, math, struct
from asmlib import *

NAME = "gated_mix__grouped_kv_mqa__grouped_kv_mqa__prompt"
KNAME = NAME + "_kernel"
WS_KV = 0
WS_G = 256 << 10
WS_F = 512 << 10
WS_KF = WS_F + 8192
WS_O = 1 << 20
WS_SIZE = 16 << 20
WS_PROF = 13 << 20
CQ = 0.25 * math.log2(math.e)
def f2u(f): return struct.unpack("<I", struct.pack("<f", f))[0]
MF = "v_mfma_f32_32x32x16_bf16"
SM = "v_smfmac_f32_32x32x32_bf16"
MF16 = "v_mfma_f32_16x16x32_bf16"
PROF = False
EXPT = set()
def opt(name, default):
    for x in EXPT:
        if x.startswith(name + "="): return int(x[len(name) + 1:])
    return default

L_PART = 16 << 10
L_GW = L_PART
L_WKV = 32 << 10
L_X = 48 << 10
L_KV = 32 << 10
L_SLOT = [0, 112 << 10, 128 << 10, 144 << 10, L_WKV, L_PART, 0, 112 << 10]
L_WOST = 0
L_XCH = 0
L_CNT3 = 7 * 4096 + 3072
L_CNT = L_PART + 4096 + 3072

sX, sWQ, sWKV, sWS, sDBG, sWO, sOUT, sGW = 32, 36, 40, 44, 48, 52, 56, 60
sW, sB, sHG, sTB, sGI, sTT, sC, sTTKV = 64, 65, 66, 67, 68, 69, 70, 71
sVM = 72
sPASS, sROLE, sTYPE, sNONCE = 74, 75, 76, 77
sT0, sT1, sT2, sT3, sT4, sT5 = 78, 79, 80, 81, 82, 83
sM0, sOFF = 84, 85
sTBOFF = 86
sSIG = 87
sPOLLER, sFOK = 92, 93
sPA, sPB = 94, 95
sKVI = 96
sLM = 88

def srd(a, d, base, nbytes):
    a(f"s_mov_b32 s{d}, s{base}")
    a(f"s_and_b32 s{d+1}, s{base+1}, 0xffff")
    a(f"s_mov_b32 s{d+2}, {nbytes}")
    a(f"s_mov_b32 s{d+3}, 0x20000")

def kdesc(name, vgpr, sgpr=100, accum=None):
    if accum is None: accum = (vgpr + 3) // 4 * 4
    return f""".amdhsa_kernel {name}
  .amdhsa_next_free_vgpr {vgpr}
  .amdhsa_next_free_sgpr {sgpr}
  .amdhsa_accum_offset {accum}
  .amdhsa_group_segment_fixed_size 0
  .amdhsa_kernarg_size 112
  .amdhsa_user_sgpr_count 2
  .amdhsa_user_sgpr_kernarg_segment_ptr 1
  .amdhsa_system_sgpr_workgroup_id_x 1
  .amdhsa_float_denorm_mode_32 3
.end_amdhsa_kernel
"""
def header(a, name):
    a.raw(f".globl {name}"); a.raw(".p2align 8"); a.raw(f".type {name},@function"); a.label(name)

VST = 0
REMAP = {}
def stamp(a, idx):
    idx = REMAP.get(idx, idx)
    if idx is None: return
    if PROF:
        a("s_memtime s[90:91]")
        a("s_waitcnt lgkmcnt(0)")
        a(f"v_writelane_b32 v{VST}, s90, {idx}")
def stamp_rt(a, idx):
    if PROF:
        a("s_memrealtime s[90:91]")
        a("s_waitcnt lgkmcnt(0)")
        a(f"v_writelane_b32 v{VST}, s90, {idx}")
def stamp_flush(a, vL, vtmp0):
    if not PROF: return
    if "dbgout" in EXPT:
        a(f"s_lshl_b32 s{sT0}, s2, 3")
        a(f"s_add_u32 s{sT0}, s{sT0}, s{sW}")
        a(f"s_cmp_eq_u32 s{sT0}, {opt('dw', 37*8+1)}")
        a("s_cbranch_scc0 L_nodbg")
        a(f"v_lshlrev_b32 v{vtmp0}, 2, v{vL}")
        a(f"v_cmp_gt_u32 vcc, 16, v{vL}")
        a(f"s_and_saveexec_b64 s[{sT4}:{sT5}], vcc")
        a(f"buffer_store_dword v{VST}, v{vtmp0}, s[{sDBG}:{sDBG+3}], 0 offen")
        a(f"s_mov_b64 exec, s[{sT4}:{sT5}]")
        a("s_waitcnt vmcnt(0)")
        a.label("L_nodbg")
        return
    a(f"s_lshl_b32 s{sT0}, s2, 3")
    a(f"s_add_u32 s{sT0}, s{sT0}, s{sW}")
    a(f"s_lshl_b32 s{sT0}, s{sT0}, 7")
    a(f"s_add_u32 s{sT0}, s{sT0}, {WS_PROF}")
    a(f"v_lshlrev_b32 v{vtmp0}, 2, v{vL}")
    a(f"v_cmp_gt_u32 vcc, 32, v{vL}")
    a(f"s_and_saveexec_b64 s[{sT4}:{sT5}], vcc")
    a(f"buffer_store_dword v{VST}, v{vtmp0}, s[{sWS}:{sWS+3}], s{sT0} offen")
    a(f"s_mov_b64 exec, s[{sT4}:{sT5}]")
    a("s_waitcnt vmcnt(0)")

POLL_LIMIT = 0x2000

def gen_fused():
    a = Asm()
    header(a, KNAME)
    vL, vK, vV = 1, 2, 3
    QA, QB = 4, 8
    CA, CB = 12, 28
    SA, SB = 44, 60
    OA, OB = 76, 92
    KB = 108; V0 = 116; V1 = 124
    vK2, vV2, vWO, vWOr = 132, 133, 134, 135
    IDX = 0; NFR = 29; vG = 252
    WOA = 136
    if PROF:
        IDX = 255
    vT0, vT1, vT2, vT3 = 12, 13, 14, 15
    vH = 16; vN15 = 17; vXb = 18; vXt = 19
    vXa = 20
    vAa = 28
    vWq = 34; vE = 35; vGp = 36; vPw = 37
    ACC = 44
    EAC = 60
    AF = 76
    XF = 92
    WF, XFF = 136, 168
    vP0, vP1, vP2, vF = 240, 241, 242, 244
    RD = 200

    a("s_cmp_ge_u32 s2, 256")
    a("s_cbranch_scc1 L_end")
    a("s_load_dwordx8 s[4:11], s[0:1], 0")
    a("s_load_dwordx2 s[12:13], s[0:1], 32")
    a("s_load_dwordx8 s[16:23], s[0:1], 48")
    a("s_load_dwordx8 s[24:31], s[0:1], 80")
    a(f"v_lshrrev_b32 v{vT0}, 6, v0")
    a(f"v_and_b32 v{vL}, 63, v0")
    a(f"v_readfirstlane_b32 s{sW}, v{vT0}")
    if "cpf" in EXPT:
        a("s_lshr_b32 s90, s2, 4")
        a(f"s_xor_b32 s91, s{sW}, 7")
        a("s_or_b32 s90, s90, s91")
        a("s_cmp_eq_u32 s90, 0")
        a("s_cbranch_scc0 L_nocpf")
        a("s_getpc_b64 s[90:91]")
        a.label("L_cpf")
        a(f"v_lshlrev_b32 v{vT1}, 7, v{vL}")
        a(f"s_mov_b32 s{sT0}, L_end-L_cpf")
        for k in range(4):
            a(f"v_min_u32 v{vT2}, s{sT0}, v{vT1}")
            a(f"global_load_dword v250, v{vT2}, s[90:91]")
            a(f"v_add_u32 v{vT1}, 8192, v{vT1}")
        a.label("L_nocpf")
    if PROF:
        stamp(a, 0); stamp_rt(a, 12 if 'dbgout' in EXPT else 30)
    a(f"s_lshr_b32 s{sT0}, s2, 3")
    a(f"s_and_b32 s{sGI}, s{sT0}, 7")
    a(f"s_lshr_b32 s{sT0}, s{sT0}, 3")
    a(f"s_and_b32 s{sT1}, s2, 7")
    a(f"s_lshl_b32 s{sT1}, s{sT1}, 2")
    a(f"s_add_u32 s{sTB}, s{sT1}, s{sT0}")
    a(f"s_lshr_b32 s{sB}, s{sGI}, 2")
    a(f"s_and_b32 s{sHG}, s{sGI}, 3")
    a(f"s_lshr_b32 s{sTYPE}, s{sHG}, 1")
    a(f"s_and_b32 s{sTTKV}, s{sHG}, 1")
    a(f"s_lshr_b32 s{sTT}, s{sW}, 2")
    a(f"s_and_b32 s{sC}, s{sW}, 3")
    a(f"s_cmp_eq_u32 s{sTT}, s{sTTKV}")
    a(f"s_cselect_b32 s{sROLE}, 1, 0")
    a(f"s_lshl_b32 s{sTBOFF}, s{sTB}, 16")
    a(f"s_lshl_b32 s{sT0}, s{sTTKV}, 2")
    a(f"s_add_u32 s{sT0}, s{sT0}, 3")
    a(f"s_cmp_eq_u32 s{sW}, s{sT0}")
    a(f"s_cselect_b32 s{sPOLLER}, 1, 0")
    a(f"s_mov_b32 s{sFOK}, 0")
    a(f"s_mov_b32 s{sSIG}, 0")
    a(f"s_mov_b32 s{sVM}, 0x0000ffff")
    a(f"s_mov_b32 s{sVM+1}, 0x0000ffff")
    a(f"s_mov_b32 s{sNONCE}, 0")
    a(f"v_lshlrev_b32 v{vK}, 4, v{vL}")
    a(f"v_lshrrev_b32 v{vH}, 5, v{vL}")
    a(f"v_mov_b32 v{vP0}, 0")
    a(f"v_mov_b32 v{vP2}, 0")
    a(f"s_mov_b32 s{sPA}, 0")
    a(f"s_mov_b32 s{sPB}, 0")
    a(f"v_and_b32 v{vT0}, 31, v{vL}")
    a(f"s_lshl_b32 s{sT0}, s{sTT}, 5")
    a(f"v_add_u32 v{vXb}, s{sT0}, v{vT0}")
    a(f"v_lshlrev_b32 v{vXb}, 10, v{vXb}")
    a(f"v_add_u32 v{vXb}, {L_X}, v{vXb}")
    a(f"v_and_b32 v{vN15}, 15, v{vL}")
    a(f"v_xor_b32 v{vXt}, v{vH}, v{vN15}")
    a(f"v_lshlrev_b32 v{vXt}, 4, v{vXt}")
    a("s_waitcnt lgkmcnt(0)")
    a(f"s_cmp_eq_u32 s{sB}, 0")
    a("s_cselect_b32 s6, s6, s16")
    a("s_cselect_b32 s7, s7, s17")
    a("s_cselect_b32 s8, s8, s18")
    a("s_cselect_b32 s9, s9, s19")
    a("s_cselect_b32 s10, s10, s20")
    a("s_cselect_b32 s11, s11, s21")
    a(f"s_cmp_eq_u32 s{sTYPE}, 0")
    a("s_cselect_b32 s8, s8, s10")
    a("s_cselect_b32 s9, s9, s11")
    srd(a, sX, 4, 2048 * 1024)
    srd(a, sWKV, 8, 16384)
    srd(a, sDBG, 28, 256)
    a(f"s_xor_b32 s{sT0}, s{sW}, 3")
    a(f"s_or_b32 s{sT0}, s2, s{sT0}")
    a(f"s_cmp_eq_u32 s{sT0}, 0")
    a("s_cbranch_scc0 L_nononce")
    a("s_memrealtime s[90:91]")
    a("s_waitcnt lgkmcnt(0)")
    a("s_or_b32 s90, s90, 1")
    a(f"v_mov_b32 v{vT1}, s90")
    a(f"v_mov_b32 v{vT3}, 128")
    a(f"buffer_store_dword v{vT1}, v{vT3}, s[{sDBG}:{sDBG+3}], 0 offen sc1")
    a.label("L_nononce")
    def xrow_dma(rowexpr, vt):
        rowexpr()
        a(f"s_and_b32 s{sT1}, s{sT0}, 15")
        a(f"v_xor_b32 v{vt}, s{sT1}, v{vL}")
        a(f"v_lshlrev_b32 v{vt}, 4, v{vt}")
        a(f"s_lshl_b32 s{sT1}, s{sT0}, 10")
        a(f"s_add_u32 m0, s{sT1}, {L_X}")
        a(f"s_add_u32 s{sT1}, s{sT1}, s{sTBOFF}")
        a(f"buffer_load_dwordx4 v{vt}, s[{sX}:{sX+3}], s{sT1} offen lds")
    a(f"s_lshl_b32 s{sT2}, s{sTTKV}, 5")
    a(f"s_add_u32 s{sT2}, s{sT2}, s{sW}")
    for i in range(4):
        xrow_dma(lambda: a(f"s_add_u32 s{sT0}, s{sT2}, {8*i}"), vT1)
    a(f"s_lshl_b32 s{sT1}, s{sW}, 11")
    a(f"s_add_u32 m0, s{sT1}, {L_WKV}")
    a(f"s_add_u32 s{sT3}, s{sT1}, 1024")
    a(f"buffer_load_dwordx4 v{vK}, s[{sWKV}:{sWKV+3}], s{sT1} offen lds")
    a(f"s_add_u32 m0, s{sT3}, {L_WKV}")
    srd(a, sGW, 24, 1024)
    a(f"buffer_load_dwordx4 v{vK}, s[{sWKV}:{sWKV+3}], s{sT3} offen lds")
    stamp(a, 1)
    srd(a, sWS, 30, WS_SIZE)
    def qaddr_setup():
        for sp in range(8):
            a(f"s_mov_b32 s{sT0}, {32*sp}")
            a(f"v_xad_u32 v{vXa+sp}, v{vXt}, s{sT0}, v{vXb}")
        a(f"v_lshrrev_b32 v{vT0}, 4, v{vL}")
        a(f"v_lshrrev_b32 v{vT3}, 2, v{vN15}")
        a(f"v_lshl_add_u32 v{vAa}, v{vH}, 3, v{vT3}")
        a(f"v_lshlrev_b32 v{vAa}, 8, v{vAa}")
        a(f"v_and_b32 v{vAa+1}, 1, v{vT0}")
        a(f"v_lshlrev_b32 v{vAa+1}, 1, v{vAa+1}")
        a(f"v_bfe_u32 v{vAa+2}, v{vN15}, 1, 1")
        a(f"v_add_u32 v{vAa+1}, v{vAa+1}, v{vAa+2}")
        a(f"s_lshl_b32 s{sT1}, s{sC}, 2")
        a(f"v_add_u32 v{vAa+1}, s{sT1}, v{vAa+1}")
        a(f"v_lshlrev_b32 v{vT3}, 2, v{vT3}")
        a(f"v_xor_b32 v{vAa+1}, v{vAa+1}, v{vT3}")
        a(f"v_lshl_add_u32 v{vAa}, v{vAa+1}, 4, v{vAa}")
        a(f"v_and_b32 v{vAa+2}, 1, v{vN15}")
        a(f"v_lshl_add_u32 v{vAa}, v{vAa+2}, 3, v{vAa}")
        for k in range(5, 0, -1):
            a(f"v_add_u32 v{vAa+k}, {L_SLOT[k]}, v{vAa}")
    def late_srds():
        a(f"s_cmp_eq_u32 s{sTT}, 0")
        a("s_cselect_b32 s12, s12, s22")
        a("s_cselect_b32 s13, s13, s23")
        srd(a, sOUT, 26, 2048 * 1024)
        srd(a, sWO, 12, 512 * 1024)
    a(f"s_cmp_eq_u32 s{sROLE}, 1")
    a("s_cbranch_scc0 L_wrole")
    if "kvprio" in EXPT: a("s_setprio 3")
    a(f"s_mov_b32 m0, {L_GW}")
    a(f"v_lshrrev_b32 v{vT0}, 4, v{vL}")
    a(f"buffer_load_dwordx4 v{vK}, s[{sGW}:{sGW+3}], 0 offen lds")
    vXk = vXa
    WF16, XF16 = 128, 192
    KAC = EAC
    a(f"s_and_b32 s{sT2}, s{sC}, 1")
    a(f"s_lshl_b32 s{sT0}, s{sTTKV}, 5")
    a(f"s_lshl_b32 s{sT1}, s{sT2}, 4")
    a(f"s_add_u32 s{sT0}, s{sT0}, s{sT1}")
    a(f"v_add_u32 v{vT2}, s{sT0}, v{vN15}")
    a(f"v_lshlrev_b32 v{vT2}, 10, v{vT2}")
    a(f"v_add_u32 v{vT2}, {L_X}, v{vT2}")
    a(f"v_xor_b32 v{vT3}, v{vT0}, v{vN15}")
    a(f"v_lshlrev_b32 v{vT3}, 4, v{vT3}")
    for sp in range(4):
        a(f"s_mov_b32 s{sT0}, {64*sp}")
        a(f"v_xad_u32 v{vXk+sp}, v{vT3}, s{sT0}, v{vT2}")
    a(f"v_lshrrev_b32 v{vE}, 2, v{vN15}")
    a(f"v_lshl_add_u32 v{vE}, v{vT0}, 3, v{vE}")
    a(f"v_lshlrev_b32 v{vE}, 5, v{vE}")
    a(f"v_and_b32 v{vT3}, 3, v{vN15}")
    a(f"v_lshl_add_u32 v{vE}, v{vT3}, 3, v{vE}")
    a(f"v_add_u32 v{vE}, {L_WKV}, v{vE}")
    a(f"v_lshlrev_b32 v{vGp}, 4, v{vT0}")
    a(f"v_add_u32 v{vGp}, {L_GW}, v{vGp}")
    a(f"v_and_b32 v{vT2}, 1, v{vT0}")
    a(f"v_lshrrev_b32 v{vT3}, 1, v{vT0}")
    a(f"s_cmp_eq_u32 s{sTYPE}, 0")
    a("s_cbranch_scc0 L_sa_v")
    a(f"v_and_b32 v{vPw}, 3, v{vN15}")
    a(f"v_and_b32 v{vT1}, 4, v{vN15}")
    a(f"v_lshl_add_u32 v{vPw}, v{vT1}, 1, v{vPw}")
    a(f"v_and_b32 v{vT1}, 8, v{vN15}")
    a(f"v_lshrrev_b32 v{vT1}, 1, v{vT1}")
    a(f"v_add_u32 v{vPw}, v{vPw}, v{vT1}")
    a(f"v_lshl_add_u32 v{vPw}, v{vT2}, 5, v{vPw}")
    a(f"s_lshl_b32 s{sT1}, s{sT2}, 4")
    a(f"v_add_u32 v{vPw}, s{sT1}, v{vPw}")
    a(f"v_lshlrev_b32 v{vPw}, 4, v{vPw}")
    a("s_branch L_sa_j")
    a.label("L_sa_v")
    a(f"v_lshl_add_u32 v{vPw}, v{vT2}, 4, v{vN15}")
    a(f"v_lshlrev_b32 v{vPw}, 4, v{vPw}")
    a(f"s_lshl_b32 s{sT1}, s{sT2}, 9")
    a(f"s_add_u32 s{sT1}, s{sT1}, 1024")
    a(f"v_add_u32 v{vPw}, s{sT1}, v{vPw}")
    a.label("L_sa_j")
    a(f"v_lshl_add_u32 v{vPw}, v{vT3}, 3, v{vPw}")
    a(f"s_lshl_b32 s{sT0}, s{sTB}, 1")
    a(f"s_add_u32 s{sT0}, s{sT0}, s{sTTKV}")
    a(f"s_lshl_b32 s{sOFF}, s{sT0}, 11")
    a(f"s_lshl_b32 s{sT3}, s{sB}, 17")
    a(f"s_add_u32 s{sOFF}, s{sOFF}, s{sT3}")
    if WS_KV: a(f"s_add_u32 s{sOFF}, s{sOFF}, {WS_KV}")
    a(f"s_lshl_b32 s{sM0}, s{sT0}, 7")
    a(f"s_add_u32 s{sM0}, s{sM0}, {WS_G}")
    if "notlb2" not in EXPT:
        a(f"v_mov_b32 v{vT3}, 0")
        a(f"buffer_load_dword v39, v{vT3}, s[{sWS}:{sWS+3}], s{sOFF} offen")
    vNon = 38
    a(f"v_mov_b32 v{vT3}, 128")
    a(f"buffer_load_dword v{vNon}, v{vT3}, s[{sDBG}:{sDBG+3}], 0 offen sc1")
    stamp(a, 2)
    a("s_waitcnt vmcnt(0)")
    a("s_barrier")
    stamp(a, 3)
    a(f"s_cmp_ge_u32 s{sC}, 2")
    a("s_cbranch_scc1 L_kv_gate")
    def kvreads(sx):
        a(f"ds_read_b64_tr_b16 {vr(WF16+4*sx,2)}, v{vE} offset:{sx*1024}")
        a(f"ds_read_b64_tr_b16 {vr(WF16+4*sx+2,2)}, v{vE} offset:{sx*1024+128}")
        a(f"ds_read_b128 {vr(XF16+4*sx,4)}, v{vXk+(sx%4)} offset:{(sx//4)*256}")
    D = 5
    for kind in ("k", "v"):
        if kind == "k":
            a(f"s_cmp_eq_u32 s{sTYPE}, 0")
            a("s_cbranch_scc0 L_kv_v")
        else:
            a.label("L_kv_v")
        for sx in range(D): kvreads(sx)
        for sx in range(16):
            rem = min(D - 1, 15 - sx)
            a(f"s_waitcnt lgkmcnt({3*rem})")
            c = vr(KAC, 4) if sx else "0"
            if kind == "k":
                a(f"{MF16} {vr(KAC,4)}, {vr(WF16+4*sx,4)}, {vr(XF16+4*sx,4)}, {c}")
            else:
                a(f"{MF16} {vr(KAC,4)}, {vr(XF16+4*sx,4)}, {vr(WF16+4*sx,4)}, {c}")
            if sx + D < 16: kvreads(sx + D)
        if kind == "k": a("s_branch L_kv_st")
    a.label("L_kv_st")
    a("s_nop 7")
    a(f"v_cvt_pk_bf16_f32 v{KAC+4}, v{KAC}, v{KAC+1}")
    a(f"v_cvt_pk_bf16_f32 v{KAC+5}, v{KAC+2}, v{KAC+3}")
    a(f"buffer_store_dwordx2 {vr(KAC+4,2)}, v{vPw}, s[{sWS}:{sWS+3}], s{sOFF} offen sc1")
    stamp(a, 12)
    a("s_branch L_kv_sig")
    a.label("L_kv_gate")
    a(f"s_or_b32 s{sT0}, s{sTYPE}, s{sB}")
    a(f"s_xor_b32 s{sT1}, s{sC}, 2")
    a(f"s_or_b32 s{sT0}, s{sT0}, s{sT1}")
    a(f"s_cmp_eq_u32 s{sT0}, 0")
    a("s_cbranch_scc0 L_kv_idle")
    for sp in range(4):
        a(f"v_add_u32 v{vXk+4+sp}, 16384, v{vXk+sp}")
    def greads(sx):
        a(f"ds_read_b128 {vr(WF16+4*(sx%8),4)}, v{vGp} offset:{sx*64}")
        a(f"ds_read_b128 {vr(XF16+8*(sx%8),4)}, v{vXk+(sx%4)} offset:{(sx//4)*256}")
        a(f"ds_read_b128 {vr(XF16+8*(sx%8)+4,4)}, v{vXk+4+(sx%4)} offset:{(sx//4)*256}")
    for sx in range(D): greads(sx)
    for sx in range(16):
        rem = min(D - 1, 15 - sx)
        a(f"s_waitcnt lgkmcnt({3*rem})")
        a(f"{MF16} {vr(KAC,4)}, {vr(WF16+4*(sx%8),4)}, {vr(XF16+8*(sx%8),4)}, {vr(KAC,4) if sx else '0'}")
        a(f"{MF16} {vr(KAC+4,4)}, {vr(WF16+4*(sx%8),4)}, {vr(XF16+8*(sx%8)+4,4)}, {vr(KAC+4,4) if sx else '0'}")
        if sx + D < 16: greads(sx + D)
    a(f"v_and_b32 v{vT1}, 16, v{vL}")
    a(f"v_cmp_eq_u32 vcc, 0, v{vT1}")
    a("s_nop 6")
    a(f"v_cndmask_b32 v{KAC+8}, v{KAC+4}, v{KAC}, vcc")
    a(f"v_cvt_pk_bf16_f32 v{KAC+8}, v{KAC+8}, v{KAC+8}")
    a(f"v_lshlrev_b32 v{KAC+8}, 16, v{KAC+8}")
    a(f"s_mov_b32 s{sT2}, {hex(f2u(-math.log2(math.e)))}")
    a(f"v_mul_f32 v{KAC+8}, s{sT2}, v{KAC+8}")
    a(f"v_exp_f32 v{KAC+8}, v{KAC+8}")
    a("s_nop 0")
    a(f"v_add_f32 v{KAC+8}, 1.0, v{KAC+8}")
    a(f"v_rcp_f32 v{KAC+8}, v{KAC+8}")
    a("s_nop 0")
    a(f"v_cvt_pk_bf16_f32 v{KAC+8}, v{KAC+8}, v{KAC+8}")
    a(f"v_lshlrev_b32 v{KAC+8}, 16, v{KAC+8}")
    a(f"v_lshlrev_b32 v{KAC+9}, 2, v{vL}")
    a(f"v_cmp_gt_u32 vcc, 32, v{vL}")
    a(f"s_and_saveexec_b64 s[{sT4}:{sT5}], vcc")
    a(f"buffer_store_dword v{KAC+8}, v{KAC+9}, s[{sWS}:{sWS+3}], s{sM0} offen sc1")
    a(f"s_mov_b64 exec, s[{sT4}:{sT5}]")
    a.label("L_kv_sig")
    qaddr_setup()
    late_srds()
    a(f"v_lshl_add_u32 v{vV}, v{vH}, 4, v{vN15}")
    a(f"v_lshlrev_b32 v{vV}, 4, v{vV}")
    a(f"s_mov_b32 s{sSIG}, 1")
    a("s_branch L_sigcode")
    a.label("L_kv_idle")
    if "notlb" not in EXPT:
        a(f"s_lshl_b32 s{sT0}, s{sTB}, 16")
        a(f"v_mov_b32 v{vP1}, s{sT0}")
        a(f"global_load_dword v{vF}, v{vP1}, s[26:27]")
        a(f"s_lshl_b32 s{sT0}, s{sTB}, 17")
        a(f"s_add_u32 s{sT0}, s{sT0}, {WS_O}")
        a(f"v_mov_b32 v{vP1}, s{sT0}")
        a(f"global_load_dword v{vF+1}, v{vP1}, s[30:31]")
        a(f"s_lshr_b32 s{sT0}, s{sGI}, 1")
        a(f"s_lshl_b32 s{sT0}, s{sT0}, 8")
        a(f"v_mov_b32 v{vP1}, s{sT0}")
        a(f"global_load_dword v{vF+2}, v{vP1}, s[12:13]")
        a(f"global_load_dword v{vF+3}, v{vP1}, s[22:23]")
    qaddr_setup()
    late_srds()
    a(f"v_lshl_add_u32 v{vV}, v{vH}, 4, v{vN15}")
    a(f"v_lshlrev_b32 v{vV}, 4, v{vV}")
    a(f"v_lshrrev_b32 v{vP0}, 1, v{vL}")
    a(f"v_lshlrev_b32 v{vP0}, 7, v{vP0}")
    a(f"v_and_b32 v{vP2}, 1, v{vL}")
    a(f"v_lshl_add_u32 v{vP0}, v{vP2}, 4, v{vP0}")
    a(f"v_lshlrev_b32 v{vP2}, 2, v{vP2}")
    a(f"s_lshl_b32 s{sPA}, s{sB}, 12")
    a(f"s_add_u32 s{sPA}, s{sPA}, {WS_KF}")
    a(f"s_lshl_b32 s{sPB}, s{sTB}, 7")
    a(f"s_add_u32 s{sPB}, s{sPB}, {WS_KF + 8192}")
    a(f"v_readfirstlane_b32 s{sNONCE}, v{vNon}")
    a("s_branch L_b1")
    def signal_kv():
        a(f"s_cmp_eq_u32 s{sSIG}, 1")
        a("s_cbranch_scc0 L_nosig")
        a(f"v_readfirstlane_b32 s{sNONCE}, v{vNon}")
        a(f"s_mov_b32 s{sT1}, 0")
        a.label("L_nwait")
        a(f"s_cmp_lg_u32 s{sNONCE}, 0")
        a("s_cbranch_scc1 L_nok")
        a(f"v_mov_b32 v{vT3}, 128")
        a(f"buffer_load_dword v{vNon}, v{vT3}, s[{sDBG}:{sDBG+3}], 0 offen sc1")
        a("s_waitcnt vmcnt(0)")
        a(f"v_readfirstlane_b32 s{sNONCE}, v{vNon}")
        a(f"s_add_u32 s{sT1}, s{sT1}, 1")
        a(f"s_cmp_lt_u32 s{sT1}, {POLL_LIMIT}")
        a("s_cbranch_scc1 L_nwait")
        a.label("L_nok")
        a(f"s_cmp_eq_u32 s{sC}, 2")
        a("s_cbranch_scc1 L_fa_gate")
        a(f"s_lshl_b32 s{sT0}, s{sB}, 5")
        a(f"s_add_u32 s{sT0}, s{sT0}, s{sTB}")
        a(f"s_lshl_b32 s{sT0}, s{sT0}, 7")
        a(f"s_lshl_b32 s{sT1}, s{sTTKV}, 2")
        a(f"s_lshl_b32 s{sT2}, s{sTYPE}, 1")
        a(f"s_add_u32 s{sT1}, s{sT1}, s{sT2}")
        a(f"s_add_u32 s{sT1}, s{sT1}, s{sC}")
        a(f"s_lshl_b32 s{sT1}, s{sT1}, 2")
        a(f"s_add_u32 s{sT0}, s{sT0}, s{sT1}")
        a(f"s_add_u32 s{sT0}, s{sT0}, {WS_KF}")
        a("s_branch L_fa_j")
        a.label("L_fa_gate")
        a(f"s_lshl_b32 s{sT0}, s{sTB}, 7")
        a(f"s_lshl_b32 s{sT1}, s{sTTKV}, 2")
        a(f"s_add_u32 s{sT0}, s{sT0}, s{sT1}")
        a(f"s_add_u32 s{sT0}, s{sT0}, {WS_KF + 8192}")
        a.label("L_fa_j")
        a(f"v_mov_b32 v{RD}, 0")
        a(f"v_mov_b32 v{RD+1}, s{sNONCE}")
        a("s_waitcnt vmcnt(0)")
        a(f"v_cmp_eq_u32 vcc, 0, v{vL}")
        a(f"s_and_saveexec_b64 s[{sT4}:{sT5}], vcc")
        a(f"buffer_store_dword v{RD+1}, v{RD}, s[{sWS}:{sWS+3}], s{sT0} offen sc1")
        a(f"s_mov_b64 exec, s[{sT4}:{sT5}]")
        stamp(a, 13)
        a.label("L_nosig")
    a.label("L_sigcode")
    signal_kv()
    a("s_branch L_b1")
    a.label("L_wrole")
    a(f"v_lshrrev_b32 v{vT0}, 4, v{vL}")
    a(f"v_lshlrev_b32 v{vWq}, 2, v{vT0}")
    a(f"v_xor_b32 v{vWq}, v{vWq}, v{vN15}")
    a(f"v_lshlrev_b32 v{vWq}, 4, v{vWq}")
    a(f"v_lshl_add_u32 v{vWq}, v{vT0}, 10, v{vWq}")
    a(f"s_lshl_b32 s{sT1}, s{sHG}, 8")
    a(f"v_add_u32 v{vWq}, s{sT1}, v{vWq}")
    srd(a, sWQ, 6, 512 * 1024)
    def wq_chunk(c):
        slot = L_SLOT[c]
        for i in range(4):
            a(f"s_lshl_b32 s{sT1}, s{sC}, 12")
            a(f"s_add_u32 m0, s{sT1}, {slot + i*1024}")
            a(f"s_lshl_b32 s{sT1}, s{sC}, 14")
            a(f"s_add_u32 s{sT1}, s{sT1}, {(64*c + 4*i)*1024}")
            a(f"buffer_load_dwordx4 v{vWq}, s[{sWQ}:{sWQ+3}], s{sT1} offen lds")
    def other_rows():
        a(f"s_xor_b32 s{sT2}, s{sTTKV}, 1")
        a(f"s_lshl_b32 s{sT2}, s{sT2}, 5")
        a(f"s_add_u32 s{sT2}, s{sT2}, s{sC}")
        for i in range(8):
            xrow_dma(lambda: a(f"s_add_u32 s{sT0}, s{sT2}, {4*i}"), vT1)
    EARLY = opt("early", 0)
    nbefore = 0
    if EARLY >= 1: other_rows(); nbefore += 8
    if EARLY >= 2: wq_chunk(0); nbefore += 4
    for c in range(1, 4):
        if EARLY >= 2 + c: wq_chunk(c); nbefore += 4
    qaddr_setup()
    late_srds()
    a(f"v_lshl_add_u32 v{vV}, v{vH}, 4, v{vN15}")
    a(f"v_lshlrev_b32 v{vV}, 4, v{vV}")
    stamp(a, 2)
    a(f"s_waitcnt vmcnt({nbefore})")
    a("s_barrier")
    stamp(a, 3)
    if "wdelay" in EXPT:
        a(f"v_mov_b32 v{vT0}, {L_CNT}")
        a.label("L_wspin")
        a(f"ds_read_b32 v{vT1}, v{vT0}")
        a("s_waitcnt lgkmcnt(0)")
        a(f"v_readfirstlane_b32 s{sT0}, v{vT1}")
        a(f"s_cmp_ge_u32 s{sT0}, {opt('wd', 4)}")
        a("s_cbranch_scc0 L_wspin")
    if EARLY < 1: other_rows()
    if EARLY < 2: wq_chunk(0)
    for c in range(1, 4):
        if EARLY < 2 + c: wq_chunk(c)
    stamp(a, 4)
    a("s_waitcnt vmcnt(8)")
    a.label("L_b1")
    if "kvprio" in EXPT: a("s_setprio 0")
    a("s_barrier")
    stamp(a, 5)
    def qreads(s):
        c, sp4 = s // 4, s % 4
        buf = s % 4
        va = vAa + [0, 1, 2, 3, 4, 5, 0, 1][c]
        a(f"ds_read_b64_tr_b16 {vr(AF+4*buf,2)}, v{va} offset:{sp4*4096}")
        a(f"ds_read_b64_tr_b16 {vr(AF+4*buf+2,2)}, v{va} offset:{sp4*4096+1024}")
        a(f"ds_read_b128 {vr(XF+4*buf,4)}, v{vXa + (s % 8)} offset:{(s//8)*256}")
    def qmf(s):
        buf = s % 4
        a(f"{MF} {vr(ACC,16)}, {vr(AF+4*buf,4)}, {vr(XF+4*buf,4)}, {vr(ACC,16) if s else '0'}")
    def flag_loads():
        a(f"buffer_load_dwordx4 {vr(vF,4)}, v{vP0}, s[{sWS}:{sWS+3}], s{sPA} offen sc1")
        a(f"buffer_load_dword v{vF+4}, v{vP2}, s[{sWS}:{sWS+3}], s{sPB} offen sc1")
    def flag_cmp():
        a(f"v_cmp_eq_u32 vcc, s{sNONCE}, v{vF}")
        for k in range(1, 5):
            a(f"v_cmp_eq_u32 s[{sT2}:{sT3}], s{sNONCE}, v{vF+k}")
            a(f"s_and_b64 vcc, vcc, s[{sT2}:{sT3}]")
    def first_kv():
        a(f"s_lshl_b32 s{sOFF}, s{sB}, 17")
        if WS_KV: a(f"s_add_u32 s{sOFF}, s{sOFF}, {WS_KV}")
        a(f"s_mov_b32 s{sM0}, {L_KV}")
        for i in range(8):
            a(f"s_mov_b32 m0, s{sM0}")
            a(f"s_add_u32 s{sM0}, s{sM0}, 1024")
            a(f"buffer_load_dwordx4 v{vK}, s[{sWS}:{sWS+3}], s{sOFF} offen sc1 lds")
            a(f"s_add_u32 s{sOFF}, s{sOFF}, 1024")
        a(f"s_mov_b32 s{sFOK}, 2")
    def poller_step(p, check, can_first):
        lab = f"L_ps{p}"
        a(f"s_cmp_eq_u32 s{sPOLLER}, 1")
        a(f"s_cbranch_scc0 {lab}")
        a(f"s_cmp_lg_u32 s{sFOK}, 0")
        a(f"s_cbranch_scc1 {lab}_fok")
        if check:
            a("s_waitcnt vmcnt(0)")
            a(f"s_cmp_eq_u32 s{sNONCE}, 0")
            a(f"s_cbranch_scc1 {lab}_re")
            flag_cmp()
            a("s_cmp_eq_u64 vcc, exec")
            a(f"s_cbranch_scc0 {lab}_re")
            a(f"s_mov_b32 s{sFOK}, 1")
            a(f"s_branch {lab}_fok")
            a.label(f"{lab}_re")
            a(f"s_cmp_lg_u32 s{sNONCE}, 0")
            a(f"s_cbranch_scc1 {lab}_ld")
            a(f"v_readfirstlane_b32 s{sNONCE}, v{vNon}")
            a.label(f"{lab}_ld")
        a(f"v_mov_b32 v{vP1}, 128")
        a(f"buffer_load_dword v{vNon}, v{vP1}, s[{sDBG}:{sDBG+3}], 0 offen sc1")
        flag_loads()
        a(f"s_branch {lab}")
        a.label(f"{lab}_fok")
        if can_first:
            a(f"s_cmp_eq_u32 s{sFOK}, 1")
            a(f"s_cbranch_scc0 {lab}")
            first_kv()
        a.label(lab)
    for s_ in range(4): qreads(s_)
    a(f"s_cmp_eq_u32 s{sROLE}, 1")
    a("s_cbranch_scc1 L_c5_skip")
    wq_chunk(4)
    wq_chunk(5)
    a.label("L_c5_skip")
    for p in range(4):
        for j in range(8):
            s_ = 8 * p + j
            if j < 7:
                nxt = min(3, 7 - j)
                a(f"s_waitcnt lgkmcnt({3*nxt})")
                qmf(s_)
                if j + 4 < 8: qreads(s_ + 4)
            else:
                a("s_waitcnt lgkmcnt(0)")
                if p < 3:
                    lab = f"L_q{p}"
                    a(f"s_cmp_eq_u32 s{sROLE}, 1")
                    a(f"s_cbranch_scc1 {lab}_kv")
                    a(f"s_waitcnt vmcnt({[8, 8, 0][p]})")
                    a("s_barrier")
                    if p == 0:
                        wq_chunk(6); wq_chunk(7)
                    a(f"s_branch {lab}_j")
                    a.label(f"{lab}_kv")
                    a("s_barrier")
                    a.label(f"{lab}_j")
                    for k in range(3): qreads(8 * (p + 1) + k)
                    qmf(s_)
                    qreads(8 * (p + 1) + 3)
                    poller_step(p, check=(p > 0), can_first=(p == 2))
                    if p == 2:
                        a(f"s_cmp_eq_u32 s{sW}, 0")
                        a("s_cbranch_scc0 L_nocz")
                        a(f"v_mov_b32 v{RD}, 0")
                        a(f"ds_write_b32 v{RD}, v{RD} offset:{L_CNT3}")
                        a.label("L_nocz")
                    if "st3" in EXPT: stamp(a, 18 + p)
                else:
                    qmf(s_)
    stamp(a, 6)
    def poll(label, load, cmpcode):
        a(f"s_mov_b32 s{sT1}, 0")
        a.label(label)
        load()
        a("s_waitcnt vmcnt(0)")
        cmpcode()
        a("s_cmp_eq_u64 vcc, exec")
        a(f"s_cbranch_scc1 {label}_done")
        a(f"s_add_u32 s{sT1}, s{sT1}, 1")
        a(f"s_cmp_lt_u32 s{sT1}, {POLL_LIMIT}")
        a(f"s_cbranch_scc0 {label}_done")
        a("s_sleep 1")
        a(f"s_branch {label}")
        a.label(f"{label}_done")
    a(f"s_mov_b32 s{sT0}, {hex(f2u(CQ))}")
    a(f"v_add_u32 v{vV}, {L_KV+1024}, v{vV}")
    a(f"v_and_b32 v{vT0}, 27, v{vL}")
    a(f"v_cmp_eq_u32 vcc, 16, v{vT0}")
    a(f"v_mov_b32 v{vT1}, 0x3f803f80")
    a(f"v_add_u32 v{vV2}, 0x10000, v{vV}")
    for i in range(16):
        a(f"v_cndmask_b32 v{V0+i}, 0, v{vT1}, vcc")
    a(f"s_mov_b32 s{sT1}, s{sT0}")
    for i in range(0, 16, 2):
        a(f"v_pk_mul_f32 {vr(ACC+i,2)}, {vr(ACC+i,2)}, s[{sT0}:{sT1}]")
    for j in range(4):
        a(f"v_cvt_pk_bf16_f32 v{QA+j}, v{ACC+2*j}, v{ACC+2*j+1}")
        a(f"v_cvt_pk_bf16_f32 v{QB+j}, v{ACC+8+2*j}, v{ACC+8+2*j+1}")
    a(f"s_cmp_eq_u32 s{sPOLLER}, 1")
    a("s_cbranch_scc0 L_nopoll")
    a(f"s_cmp_eq_u32 s{sFOK}, 2")
    a("s_cbranch_scc1 L_nopoll")
    a(f"s_cmp_eq_u32 s{sFOK}, 1")
    a("s_cbranch_scc1 L_dofirst")
    a("s_waitcnt vmcnt(0)")
    a(f"s_cmp_lg_u32 s{sNONCE}, 0")
    a("s_cbranch_scc0 L_getnonce")
    flag_cmp()
    a("s_cmp_eq_u64 vcc, exec")
    a("s_cbranch_scc1 L_dofirst")
    a("s_branch L_havenonce")
    a.label("L_getnonce")
    a(f"v_readfirstlane_b32 s{sNONCE}, v{vNon}")
    a(f"v_mov_b32 v{vP1}, 128")
    def ldn(): a(f"buffer_load_dword v{vNon}, v{vP1}, s[{sDBG}:{sDBG+3}], 0 offen sc1")
    def cmpn(): a(f"v_cmp_ne_u32 vcc, 0, v{vNon}")
    a(f"s_cmp_lg_u32 s{sNONCE}, 0")
    a("s_cbranch_scc1 L_havenonce")
    poll("L_polln", ldn, cmpn)
    a(f"v_readfirstlane_b32 s{sNONCE}, v{vNon}")
    a.label("L_havenonce")
    poll("L_poll", flag_loads, flag_cmp)
    a.label("L_dofirst")
    first_kv()
    a.label("L_nopoll")
    for i in range(0, 16, 2):
        a(f"v_pk_mov_b32 {vr(OA+i,2)}, 0, 0")
        a(f"v_pk_mov_b32 {vr(OB+i,2)}, 0, 0")
    a(f"v_lshrrev_b32 v{vT0}, 2, v{vL}")
    a(f"v_and_b32 v{vT1}, 3, v{vL}")
    a(f"v_lshlrev_b32 v{vT1}, 4, v{vT1}")
    a(f"v_lshl_add_u32 v{vWO}, v{vT0}, 10, v{vT1}")
    a(f"s_lshr_b32 s{sT0}, s{sGI}, 1")
    a(f"s_lshl_b32 s{sT0}, s{sT0}, 8")
    a(f"s_lshl_b32 s{sT1}, s{sC}, 6")
    a(f"s_add_u32 s{sT0}, s{sT0}, s{sT1}")
    a(f"v_add_u32 v{vWO}, s{sT0}, v{vWO}")
    a(f"v_lshrrev_b32 v{vT1}, 2, v{vN15}")
    a(f"v_lshl_add_u32 v{vT1}, v{vH}, 2, v{vT1}")
    a(f"v_lshlrev_b32 v{vWOr}, 6, v{vT1}")
    a(f"v_bfe_u32 v{vT1}, v{vL}, 4, 1")
    a(f"v_lshl_add_u32 v{vWOr}, v{vT1}, 5, v{vWOr}")
    a(f"v_and_b32 v{vT0}, 3, v{vN15}")
    a(f"v_lshl_add_u32 v{vWOr}, v{vT0}, 3, v{vWOr}")
    a(f"s_lshl_b32 s{sT0}, s{sW}, 12")
    a(f"v_add_u32 v{vWOr}, s{sT0}, v{vWOr}")
    a(f"v_mov_b32 v{IDX}, 0xdddddddd")
    a(f"s_lshl_b32 s{sOFF}, s{sB}, 17")
    a(f"s_add_u32 s{sOFF}, s{sOFF}, {WS_KV + 8192}")
    a(f"s_lshl_b32 s{sM0}, s{sC}, 11")
    a(f"s_add_u32 s{sOFF}, s{sOFF}, s{sM0}")
    a(f"s_add_u32 s{sM0}, s{sM0}, {L_KV + 8192}")
    vKd = 253
    a(f"v_mov_b32 v{vKd}, v{vK}")
    a(f"v_add_u32 v{vK}, {L_KV}, v{vK}")
    a(f"v_add_u32 v{vK2}, 0x10000, v{vK}")
    a(f"s_mov_b32 s{sPASS}, 1")
    a(f"s_lshr_b32 s{sKVI}, s{sW}, 2")
    a(f"v_and_b32 v{vG}, 31, v{vL}")
    a(f"v_lshlrev_b32 v{vG}, 2, v{vG}")
    a(f"s_lshl_b32 s{sT2}, s{sTB}, 1")
    a(f"s_add_u32 s{sT2}, s{sT2}, s{sTT}")
    a(f"s_lshl_b32 s{sT2}, s{sT2}, 7")
    a(f"s_add_u32 s{sT2}, s{sT2}, {WS_G}")
    if opt("idle", 0):
        for _ in range(opt("idle", 0)): a("s_sleep 8")
    a("s_waitcnt vmcnt(0)")
    a("s_barrier")
    stamp(a, 7)
    def kv_step():
        a(f"s_mov_b32 m0, s{sM0}")
        a(f"s_add_u32 s{sT0}, s{sOFF}, 1024")
        a(f"buffer_load_dwordx4 v{vKd}, s[{sWS}:{sWS+3}], s{sOFF} offen sc1 lds")
        a(f"s_add_u32 m0, s{sM0}, 1024")
        a(f"s_add_u32 s{sM0}, s{sM0}, 8192")
        a(f"buffer_load_dwordx4 v{vKd}, s[{sWS}:{sWS+3}], s{sT0} offen sc1 lds")
        a(f"s_add_u32 s{sOFF}, s{sOFF}, 8192")
    a(f"buffer_load_dword v{vG}, v{vG}, s[{sWS}:{sWS+3}], s{sT2} offen sc1")
    def ldK(buf, t):
        va = vK if t < 32 else vK2
        a(f"ds_read_b128 {vr(KB+4*buf,4)}, v{va} offset:{(t % 32)*2048}")
    def ldV(buf, t):
        va = vV if t < 32 else vV2
        off = (t % 32) * 2048
        a(f"s_mov_b64 exec, s[{sVM}:{sVM+1}]")
        a(f"ds_read_b128 {vr(V0+4*buf,4)}, v{va} offset:{off}")
        a(f"ds_read_b128 {vr(V1+4*buf,4)}, v{va} offset:{off+512}")
        a("s_mov_b64 exec, -1")
    def neg_bcast(C, m):
        for i in range(0, 16, 2):
            a(f"v_pk_mul_f32 {vr(C+i,2)}, {vr(m,2)}, -1.0 op_sel_hi:[0,0]")
    def crosshalf_max(m, t):
        a(f"v_mov_b32 v{t}, v{m}")
        a("s_nop 1")
        a(f"v_permlane32_swap_b32 v{m}, v{t}")
        a("s_nop 1")
        a(f"v_max_f32 v{m}, v{m}, v{t}")
    def rowmax(S, m):
        a(f"v_max3_f32 v{m}, v{S}, v{S+1}, v{S+2}")
        for i in range(3, 15, 2):
            a(f"v_max3_f32 v{m}, v{m}, v{S+i}, v{S+i+1}")
        a(f"v_max_f32 v{m}, v{m}, v{S+15}")
    M0r, M1r, M2r, M3r = WOA, WOA + 1, WOA + 2, WOA + 3
    ldK(0, 0)
    ldK(1, 1)
    ldV(0, 0)
    a("s_waitcnt lgkmcnt(3)")
    a(f"{MF} {vr(SA,16)}, {vr(KB,4)}, {vr(QA,4)}, 0")
    a(f"{MF} {vr(SB,16)}, {vr(KB,4)}, {vr(QB,4)}, 0")
    for i in range(8, 16, 2):
        pass
    a("s_nop 10")
    rowmax(SA, M0r); rowmax(SB, M2r)
    crosshalf_max(M0r, M1r); crosshalf_max(M2r, M3r)
    neg_bcast(CA, M0r); neg_bcast(CB, M2r)
    a("s_branch L_go")
    a.label("L_restart")
    for i in range(0, 16, 2):
        a(f"v_pk_mov_b32 {vr(OA+i,2)}, 0, 0")
        a(f"v_pk_mov_b32 {vr(OB+i,2)}, 0, 0")
    ldK(0, 0)
    ldK(1, 1)
    ldV(0, 0)
    a.label("L_go")
    for i in range(8, 16, 2):
        a(f"v_pk_mov_b32 {vr(SB+i,2)}, 0, 0")
    a("s_waitcnt lgkmcnt(0)")
    a(f"{MF} {vr(SA,16)}, {vr(KB,4)}, {vr(QA,4)}, {vr(CA,16)}")
    if "noprio" not in EXPT:
        a(f"s_cmp_ge_u32 s{sW}, 4")
        a("s_cbranch_scc0 L_noprio0")
        a("s_setprio 1")
        a.label("L_noprio0")
    a("s_nop 7")
    a("s_nop 1")
    stamp(a, 9)
    def ex(S, i): a(f"v_exp_f32 v{S+i}, v{S+i}")
    T0W = 16
    def wo_dma(f):
        a(f"s_lshl_b32 s{sT0}, s{sW}, 12")
        a(f"s_add_u32 m0, s{sT0}, {L_WOST + (f % 3)*1024}")
        a(f"s_mov_b32 s{sT1}, {f*16384}")
        a(f"buffer_load_dwordx4 v{vWO}, s[{sWO}:{sWO+3}], s{sT1} offen lds")
    def wo_read(f, dst):
        a(f"ds_read_b64_tr_b16 {vr(dst,2)}, v{vWOr} offset:{L_WOST + (f % 3)*1024}")
        a(f"ds_read_b64_tr_b16 {vr(dst+2,2)}, v{vWOr} offset:{L_WOST + (f % 3)*1024 + 512}")
    PSW = opt("psw", 53)
    for t in range(64):
        p = t & 1
        def sync(k, n):
            a(f"s_cmp_eq_u32 s{sPASS}, 1")
            a(f"s_cbranch_scc0 L_sy{k}_done")
            a(f"s_cmp_ge_u32 s{sW}, 4")
            a(f"s_cbranch_scc0 L_sy{k}_spin")
            if n is not None: a(f"s_waitcnt vmcnt({n})")
            a(f"v_mov_b32 v254, 1")
            a("s_mov_b64 exec, 1")
            a(f"ds_add_u32 v{vKd}, v254 offset:{L_CNT3}")
            a("s_mov_b64 exec, -1")
            a.label(f"L_sy{k}_spin")
            a(f"ds_read_b32 v254, v{vKd} offset:{L_CNT3}")
            a("s_waitcnt lgkmcnt(0)")
            a(f"v_readfirstlane_b32 s{sT0}, v254")
            a(f"s_cmp_ge_u32 s{sT0}, {4*k}")
            a(f"s_cbranch_scc0 L_sy{k}_spin")
            a.label(f"L_sy{k}_done")
        if t == 2:  sync(1, 2)
        if t == 6:  sync(2, 6)
        if t == 14: sync(3, 14)
        if t == 30: sync(4, None)
        if t == PSW and "noprio" not in EXPT:
            a("s_setprio 0")
        ex(SA, 0); ex(SA, 1)
        a(f"{SM} {vr(OB,16)}, {vr(V1+4*(p^1),4)}, {vr(SB+8,8)}, v{IDX}")
        ex(SA, 2); ex(SA, 3); ex(SA, 4)
        a(f"{MF} {vr(SB,16)}, {vr(KB+4*p,4)}, {vr(QB,4)}, {vr(CB,16)}")
        nld = 0
        if t + 2 < 64: ldK(p, t + 2); nld += 1
        if t + 1 < 64: ldV(p ^ 1, t + 1); nld += 2
        for i in range(5, 10): ex(SA, i)
        a(f"s_waitcnt lgkmcnt({nld})")
        a(f"{SM} {vr(OA,16)}, {vr(V0+4*p,4)}, {vr(SA,8)}, v{IDX}")
        for i in range(10, 13): ex(SA, i)
        if t <= 14:
            a(f"s_cmp_eq_u32 s{sKVI}, 1")
            a(f"s_cbranch_scc0 L_nokv{t}")
            kv_step()
            a.label(f"L_nokv{t}")
        fd = t - T0W
        if 0 <= fd < NFR: wo_dma(fd)
        for i in range(13, 16): ex(SA, i)
        ex(SB, 0); ex(SB, 1)
        a(f"{SM} {vr(OA,16)}, {vr(V1+4*p,4)}, {vr(SA+8,8)}, v{IDX}")
        ex(SB, 2); ex(SB, 3); ex(SB, 4)
        if t + 1 < 64:
            a(f"{MF} {vr(SA,16)}, {vr(KB+4*(p^1),4)}, {vr(QA,4)}, {vr(CA,16)}")
        else:
            a("s_nop 0")
        for i in range(5, 8): ex(SB, i)
        fr = t - T0W - 2
        if 0 <= fr < NFR:
            outstanding_after = min(fd, NFR - 1) - fr
            a(f"s_waitcnt vmcnt({outstanding_after})")
            wo_read(fr, WOA + 4 * fr)
        for i in range(8, 10): ex(SB, i)
        a(f"{SM} {vr(OB,16)}, {vr(V0+4*p,4)}, {vr(SB,8)}, v{IDX}")
        for i in range(10, 16): ex(SB, i)
    a("s_nop 1")
    a(f"{SM} {vr(OB,16)}, {vr(V1+4,4)}, {vr(SB+8,8)}, v{IDX}")
    for f in range(NFR, 32): wo_dma(f)
    TT = SA
    a(f"v_sub_f32 v{TT+2}, 1.0, v{vG}")
    a(f"v_cvt_pk_bf16_f32 v{TT+2}, v{TT+2}, v{TT+2}")
    a(f"v_lshlrev_b32 v{TT+2}, 16, v{TT+2}")
    a(f"s_cmp_eq_u32 s{sB}, 0")
    a(f"s_cselect_b64 s[{sLM}:{sLM+1}], -1, 0")
    a(f"v_cndmask_b32 v{TT+2}, v{TT+2}, v{vG}, s[{sLM}:{sLM+1}]")
    stamp(a, 10)
    a(f"v_mul_f32 v{TT}, 0, v{OA}")
    for i in range(1, 8): a(f"v_fma_f32 v{TT}, v{OA+i}, 0, v{TT}")
    for i in range(0, 8): a(f"v_fma_f32 v{TT}, v{OB+i}, 0, v{TT}")
    a(f"v_max_f32 v{TT+1}, v{OA+8}, v{OB+8}")
    a(f"v_add_f32 v{TT}, v{TT}, v{TT+1}")
    a(f"s_mov_b32 s{sT0}, {hex(f2u(2.0**60))}")
    a(f"v_cmp_gt_f32 vcc, s{sT0}, v{TT}")
    a(f"s_cmp_eq_u32 s{sPASS}, 2")
    a("s_cbranch_scc1 L_fin")
    a("s_cmp_eq_u64 vcc, exec")
    a("s_cbranch_scc1 L_fin")
    a(f"s_mov_b32 s{sPASS}, 2")
    a(f"s_mov_b32 s{sKVI}, 0")
    FM0, FM1, FM2, FM3 = KB + 4, KB + 5, KB + 6, KB + 7
    a(f"v_mov_b32 v{FM0}, 0xff800000")
    a(f"v_mov_b32 v{FM2}, 0xff800000")
    a(f"v_mov_b32 v{FM1}, v{vK}")
    a(f"s_mov_b32 s{sT0}, 0")
    a.label("L_maxloop")
    a(f"ds_read_b128 {vr(KB,4)}, v{FM1}")
    a("s_waitcnt lgkmcnt(0)")
    a(f"{MF} {vr(SA,16)}, {vr(KB,4)}, {vr(QA,4)}, 0")
    a(f"{MF} {vr(SB,16)}, {vr(KB,4)}, {vr(QB,4)}, 0")
    a("s_nop 15")
    for i in range(0, 16, 2):
        a(f"v_max3_f32 v{FM0}, v{FM0}, v{SA+i}, v{SA+i+1}")
        a(f"v_max3_f32 v{FM2}, v{FM2}, v{SB+i}, v{SB+i+1}")
    a(f"v_add_u32 v{FM1}, 2048, v{FM1}")
    a(f"s_add_u32 s{sT0}, s{sT0}, 1")
    a(f"s_cmp_lt_u32 s{sT0}, 64")
    a("s_cbranch_scc1 L_maxloop")
    crosshalf_max(FM0, FM1); crosshalf_max(FM2, FM3)
    neg_bcast(CA, FM0); neg_bcast(CB, FM2)
    a("s_waitcnt vmcnt(0)")
    a("s_branch L_restart")
    a.label("L_fin")
    a(f"v_rcp_f32 v{TT}, v{OA+8}")
    a(f"v_rcp_f32 v{TT+1}, v{OB+8}")
    a("s_nop 0")
    a(f"v_mul_f32 v{TT}, v{TT}, v{TT+2}")
    a(f"v_mul_f32 v{TT+1}, v{TT+1}, v{TT+2}")
    for i in range(8):
        a(f"v_mul_f32 v{OA+i}, v{TT}, v{OA+i}")
        a(f"v_mul_f32 v{OB+i}, v{TT+1}, v{OB+i}")
    for j in range(4):
        a(f"v_cvt_pk_bf16_f32 v{SA+4+j}, v{OA+2*j}, v{OA+2*j+1}")
        a(f"v_cvt_pk_bf16_f32 v{SA+8+j}, v{OB+2*j}, v{OB+2*j+1}")
    a(f"s_lshl_b32 s{sT0}, s{sTB}, 1")
    a(f"s_add_u32 s{sT0}, s{sT0}, s{sTT}")
    a(f"s_lshl_b32 s{sT0}, s{sT0}, 6")
    a(f"s_lshl_b32 s{sT1}, s{sGI}, 3")
    a(f"s_add_u32 s{sT0}, s{sT0}, s{sT1}")
    a(f"s_lshl_b32 s{sT1}, s{sC}, 1")
    a(f"s_add_u32 s{sT0}, s{sT0}, s{sT1}")
    a(f"s_lshl_b32 s{sT0}, s{sT0}, 10")
    a(f"s_add_u32 s{sT0}, s{sT0}, {WS_O}")
    vS = SB
    a(f"v_lshlrev_b32 v{vS}, 4, v{vL}")
    a(f"buffer_store_dwordx4 {vr(SA+4,4)}, v{vS}, s[{sWS}:{sWS+3}], s{sT0} offen sc1")
    a(f"buffer_store_dwordx4 {vr(SA+8,4)}, v{vS}, s[{sWS}:{sWS+3}], s{sT0} offen offset:1024 sc1")
    a("s_waitcnt vmcnt(2)")
    XFR = {}
    for k, f in enumerate(range(NFR, 32)):
        XFR[f] = [KB, KB + 4, V0][k]
        wo_read(f, XFR[f])
    a(f"s_and_b32 s{sT2}, s{sGI}, 1")
    a(f"s_lshl_b32 s{sT3}, s{sTB}, 1")
    a(f"s_add_u32 s{sT3}, s{sT3}, s{sT2}")
    a(f"s_lshl_b32 s{sT4}, s{sTT}, 5")
    a(f"s_lshl_b32 s{sT5}, s{sC}, 1")
    a(f"s_add_u32 s{sT4}, s{sT4}, s{sT5}")
    a(f"s_lshl_b32 s{sM0}, s{sT4}, 10")
    a(f"s_lshl_b32 s{sOFF}, s{sT3}, 16")
    a(f"s_add_u32 s{sOFF}, s{sOFF}, s{sM0}")
    a(f"s_add_u32 s{sOFF}, s{sOFF}, {WS_O}")
    a(f"s_add_u32 s{sM0}, s{sM0}, {L_KV}")
    vB = SB + 6
    a(f"s_lshl_b32 s{sT4}, s{sTT}, 15")
    a(f"s_add_u32 s{sT4}, s{sT4}, {L_KV}")
    a(f"v_add_u32 v{vB}, s{sT4}, v{vS}")
    vO = SB + 7
    a(f"v_and_b32 v{vO}, 31, v{vL}")
    a(f"s_lshl_b32 s{sT3}, s{sT3}, 5")
    a(f"v_add_u32 v{vO}, s{sT3}, v{vO}")
    a(f"v_lshlrev_b32 v{vO}, 10, v{vO}")
    a(f"v_lshrrev_b32 v{SB+3}, 5, v{vL}")
    a(f"v_lshl_add_u32 v{vO}, v{SB+3}, 4, v{vO}")
    a(f"s_lshr_b32 s{sT2}, s{sGI}, 1")
    a(f"s_lshl_b32 s{sT2}, s{sT2}, 8")
    a(f"s_lshl_b32 s{sT3}, s{sC}, 6")
    a(f"s_add_u32 s{sT2}, s{sT2}, s{sT3}")
    a(f"s_lshl_b32 s{sT3}, s{sTT}, 5")
    a(f"s_add_u32 s{sT2}, s{sT2}, s{sT3}")
    a(f"v_add_u32 v{vO}, s{sT2}, v{vO}")
    vXw, vXr = SB + 3, SB + 4
    a(f"s_lshl_b32 s{sT0}, s{sW}, 11")
    a(f"v_add_u32 v{vXw}, s{sT0}, v{vS}")
    a(f"s_xor_b32 s{sT1}, s{sW}, 4")
    a(f"s_lshl_b32 s{sT1}, s{sT1}, 11")
    a(f"v_add_u32 v{vXr}, s{sT1}, v{vS}")
    a("s_waitcnt vmcnt(0)")
    a("s_barrier")
    stamp(a, 11)
    a(f"s_cmp_eq_u32 s{sPOLLER}, 1")
    a("s_cbranch_scc0 L_nosig2")
    a(f"s_lshl_b32 s{sT0}, s{sTB}, 7")
    a(f"s_add_u32 s{sT0}, s{sT0}, {WS_F}")
    a(f"s_lshl_b32 s{sT1}, s{sGI}, 2")
    a(f"v_mov_b32 v{SB+1}, s{sT1}")
    a(f"v_mov_b32 v{SB+2}, s{sNONCE}")
    a(f"v_cmp_eq_u32 vcc, 0, v{vL}")
    a(f"s_and_saveexec_b64 s[{sT4}:{sT5}], vcc")
    a(f"buffer_store_dword v{SB+2}, v{SB+1}, s[{sWS}:{sWS+3}], s{sT0} offen sc1")
    a(f"s_mov_b64 exec, s[{sT4}:{sT5}]")
    a(f"v_and_b32 v{SB+1}, 7, v{vL}")
    a(f"v_lshlrev_b32 v{SB+1}, 2, v{SB+1}")
    def ld2(): a(f"buffer_load_dword v{SB+2}, v{SB+1}, s[{sWS}:{sWS+3}], s{sT0} offen sc1")
    def cmp2(): a(f"v_cmp_eq_u32 vcc, s{sNONCE}, v{SB+2}")
    poll("L_poll2", ld2, cmp2)
    a.label("L_nosig2")
    a("s_barrier")
    stamp(a, 14)
    def o_dma(q):
        for i in range(2):
            a(f"s_add_u32 m0, s{sM0}, {(8*q+i)*1024}")
            a(f"s_add_u32 s{sT0}, s{sOFF}, {(8*q+i)*1024}")
            a(f"buffer_load_dwordx4 v{vS}, s[{sWS}:{sWS+3}], s{sT0} offen sc1 lds")
    o_dma(0); o_dma(1)
    ACC3 = OA
    BF = CA
    def afr(s): return XFR[s] if s in XFR else WOA + 4 * s
    for q in range(4):
        a(f"s_waitcnt vmcnt({[2, 4, 2, 0][q]})")
        if q == 0:
            pass
        a("s_barrier")
        if q == 0:
            stamp(a, 15)
        for i in range(8):
            a(f"ds_read_b128 {vr(BF+4*i,4)}, v{vB} offset:{(8*q+i)*1024}")
        if q == 0:
            o_dma(2); o_dma(3)
        for i in range(8):
            a(f"s_waitcnt lgkmcnt({7-i})")
            a(f"{MF} {vr(ACC3,16)}, {vr(afr(8*q+i),4)}, {vr(BF+4*i,4)}, {vr(ACC3,16) if (q or i) else '0'}")
    stamp(a, 16)
    a("s_nop 15")
    a(f"s_cmp_eq_u32 s{sTT}, 0")
    a("s_cbranch_scc0 L_x_b1")
    a(f"ds_write_b128 v{vXw}, {vr(ACC3+8,4)} offset:{L_XCH}")
    a(f"ds_write_b128 v{vXw}, {vr(ACC3+12,4)} offset:{L_XCH+1024}")
    a("s_waitcnt lgkmcnt(0)")
    a("s_barrier")
    a(f"ds_read_b128 {vr(CB,4)}, v{vXr} offset:{L_XCH}")
    a(f"ds_read_b128 {vr(CB+4,4)}, v{vXr} offset:{L_XCH+1024}")
    a("s_waitcnt lgkmcnt(0)")
    for i in range(0, 8, 2):
        a(f"v_pk_add_f32 {vr(CB+i,2)}, {vr(CB+i,2)}, {vr(ACC3+i,2)}")
    a("s_branch L_x_j")
    a.label("L_x_b1")
    a(f"ds_write_b128 v{vXw}, {vr(ACC3,4)} offset:{L_XCH}")
    a(f"ds_write_b128 v{vXw}, {vr(ACC3+4,4)} offset:{L_XCH+1024}")
    a("s_waitcnt lgkmcnt(0)")
    a("s_barrier")
    a(f"ds_read_b128 {vr(CB,4)}, v{vXr} offset:{L_XCH}")
    a(f"ds_read_b128 {vr(CB+4,4)}, v{vXr} offset:{L_XCH+1024}")
    a("s_waitcnt lgkmcnt(0)")
    for i in range(0, 8, 2):
        a(f"v_pk_add_f32 {vr(CB+i,2)}, {vr(CB+i,2)}, {vr(ACC3+8+i,2)}")
    a.label("L_x_j")
    R = SA + 4
    for i in range(0, 8, 2):
        a(f"v_cvt_pk_bf16_f32 v{R+i//2}, v{CB+i}, v{CB+i+1}")
    a("s_nop 1")
    a(f"v_permlane32_swap_b32 v{R}, v{R+2}")
    a(f"v_permlane32_swap_b32 v{R+1}, v{R+3}")
    a(f"buffer_store_dwordx4 {vr(R,4)}, v{vO}, s[{sOUT}:{sOUT+3}], 0 offen {'sc1' if 'osc1' in EXPT else ''} {'nt' if 'ont' in EXPT else ''} {'sc0 sc1' if 'osys' in EXPT else ''}")
    if PROF:
        a("s_waitcnt vmcnt(0)")
        stamp(a, 17)
        stamp_rt(a, 13 if 'dbgout' in EXPT else 31)
        stamp_flush(a, vL, SB + 3)
    a.label("L_end")
    a("s_endpgm")
    return a, kdesc(KNAME, 256)

def build(path):
    ref = open("cdna_kernels/" + NAME + ".s.ref").read().split("\n")
    hdr = [l for l in ref if l.startswith(";") and "@launch" not in l and "Override launch" not in l and "grid=ceil" not in l][:16]
    k, d = gen_fused()
    errs = check(k.lines, "fused")
    for e in errs[:10]: print("HAZARD", e)
    out = "\n".join(hdr) + "\n"
    out += "; @launch grid=(256,1,1) block=(512,1,1) lds=163840\n"
    out += '.amdgcn_target "amdgcn-amd-amdhsa--gfx950"\n.text\n'
    out += k.text()
    out += '.section .rodata,"a"\n.p2align 6\n' + d
    open(path, "w").write(out)
    return len(errs)

if __name__ == "__main__":
    for arg in list(sys.argv):
        if arg.startswith("--x="):
            EXPT.update(arg[4:].split(",")); sys.argv.remove(arg)
    if "--prof" in sys.argv:
        PROF = True; sys.argv.remove("--prof")
    if "dbgout" in EXPT:
        REMAP.update({2: None, 16: 2, 17: 8, 4: None, 12: None, 13: None})
    p = sys.argv[1] if len(sys.argv) > 1 else "f4.s"
    n = build(p)
    print("written", p, "hazards:", n)
```

```python
import sys, math, struct
from asmlib import *

NAME = "gated_mix__grouped_kv_mqa__grouped_kv_mqa__prompt"
KNAME = NAME + "_kernel"
WS_KV = 0
WS_G = 256 << 10
WS_F = 512 << 10
WS_KF = WS_F + 8192
WS_XI = WS_KF + 16384
WS_O = 1 << 20
WS_SIZE = 16 << 20
WS_PROF = 13 << 20
CQ = 0.25 * math.log2(math.e)
def f2u(f): return struct.unpack("<I", struct.pack("<f", f))[0]
MF = "v_mfma_f32_32x32x16_bf16"
SM = "v_smfmac_f32_32x32x32_bf16"
MF16 = "v_mfma_f32_16x16x32_bf16"
PROF = False
EXPT = set()
def opt(name, default):
    for x in EXPT:
        if x.startswith(name + "="): return int(x[len(name) + 1:])
    return default

L_PART = 16 << 10
L_GW = L_PART
L_WKV = 32 << 10
L_X = 48 << 10
L_KV = 32 << 10
L_SLOT = [0, 112 << 10, 128 << 10, 144 << 10, L_WKV, L_PART, 0, 112 << 10]
L_WOST = 0
L_XCH = 0
L_CNT3 = 7 * 4096 + 3072
L_CNT = L_PART + 4096 + 3072

sX, sWQ, sWKV, sWS, sDBG, sWO, sOUT, sGW = 32, 36, 40, 44, 48, 52, 56, 60
sW, sB, sHG, sTB, sGI, sTT, sC, sTTKV = 64, 65, 66, 67, 68, 69, 70, 71
sVM = 72
sPASS, sROLE, sTYPE, sNONCE = 74, 75, 76, 77
sT0, sT1, sT2, sT3, sT4, sT5 = 78, 79, 80, 81, 82, 83
sM0, sOFF = 84, 85
sTBOFF = 86
sSIG = 87
sPOLLER, sFOK = 92, 93
sPA, sPB = 94, 95
sKVI = 96
sXCC, sFAST, sXID = 97, 98, 99
sLM = 88

def srd(a, d, base, nbytes):
    a(f"s_mov_b32 s{d}, s{base}")
    a(f"s_and_b32 s{d+1}, s{base+1}, 0xffff")
    a(f"s_mov_b32 s{d+2}, {nbytes}")
    a(f"s_mov_b32 s{d+3}, 0x20000")

def kdesc(name, vgpr, sgpr=100, accum=None):
    if accum is None: accum = (vgpr + 3) // 4 * 4
    return f""".amdhsa_kernel {name}
  .amdhsa_next_free_vgpr {vgpr}
  .amdhsa_next_free_sgpr {sgpr}
  .amdhsa_accum_offset {accum}
  .amdhsa_group_segment_fixed_size 0
  .amdhsa_kernarg_size 112
  .amdhsa_user_sgpr_count 2
  .amdhsa_user_sgpr_kernarg_segment_ptr 1
  .amdhsa_system_sgpr_workgroup_id_x 1
  .amdhsa_float_denorm_mode_32 3
.end_amdhsa_kernel
"""
def header(a, name):
    a.raw(f".globl {name}"); a.raw(".p2align 8"); a.raw(f".type {name},@function"); a.label(name)

VST = 0
def stamp(a, idx):
    if PROF:
        a("s_memtime s[90:91]")
        a("s_waitcnt lgkmcnt(0)")
        a(f"v_writelane_b32 v{VST}, s90, {idx}")
def stamp_rt(a, idx):
    if PROF:
        a("s_memrealtime s[90:91]")
        a("s_waitcnt lgkmcnt(0)")
        a(f"v_writelane_b32 v{VST}, s90, {idx}")
def stamp_flush(a, vL, vtmp0):
    if not PROF: return
    a(f"s_lshl_b32 s{sT0}, s2, 3")
    a(f"s_add_u32 s{sT0}, s{sT0}, s{sW}")
    a(f"s_lshl_b32 s{sT0}, s{sT0}, 7")
    a(f"s_add_u32 s{sT0}, s{sT0}, {WS_PROF}")
    a(f"v_lshlrev_b32 v{vtmp0}, 2, v{vL}")
    a(f"v_cmp_gt_u32 vcc, 32, v{vL}")
    a(f"s_and_saveexec_b64 s[{sT4}:{sT5}], vcc")
    a(f"buffer_store_dword v{VST}, v{vtmp0}, s[{sWS}:{sWS+3}], s{sT0} offen")
    a(f"s_mov_b64 exec, s[{sT4}:{sT5}]")
    a("s_waitcnt vmcnt(0)")

POLL_LIMIT = 0x2000

def gen_fused():
    a = Asm()
    header(a, KNAME)
    vL, vK, vV = 1, 2, 3
    QA, QB = 4, 8
    CA, CB = 12, 28
    SA, SB = 44, 60
    OA, OB = 76, 92
    KB = 108; V0 = 116; V1 = 124
    vK2, vV2, vWO, vWOr = 132, 133, 134, 135
    IDX = 0; NFR = 29; vG = 252
    WOA = 136
    if PROF:
        IDX = 255
    vT0, vT1, vT2, vT3 = 12, 13, 14, 15
    vH = 16; vN15 = 17; vXb = 18; vXt = 19
    vXa = 20
    vAa = 28
    vWq = 34; vE = 35; vGp = 36; vPw = 37
    ACC = 44
    EAC = 60
    AF = 76
    XF = 92
    WF, XFF = 136, 168
    vP0, vP1, vP2, vF = 240, 241, 242, 244
    RD = 200

    a("s_cmp_ge_u32 s2, 256")
    a("s_cbranch_scc1 L_end")
    a("s_load_dwordx8 s[4:11], s[0:1], 0")
    a("s_load_dwordx2 s[12:13], s[0:1], 32")
    a("s_load_dwordx8 s[16:23], s[0:1], 48")
    a("s_load_dwordx8 s[24:31], s[0:1], 80")
    a(f"v_lshrrev_b32 v{vT0}, 6, v0")
    a(f"v_and_b32 v{vL}, 63, v0")
    a(f"v_readfirstlane_b32 s{sW}, v{vT0}")
    if "cpf" in EXPT:
        a("s_lshr_b32 s90, s2, 4")
        a(f"s_xor_b32 s91, s{sW}, 7")
        a("s_or_b32 s90, s90, s91")
        a("s_cmp_eq_u32 s90, 0")
        a("s_cbranch_scc0 L_nocpf")
        a("s_getpc_b64 s[90:91]")
        a.label("L_cpf")
        a(f"v_lshlrev_b32 v{vT1}, 7, v{vL}")
        a(f"s_mov_b32 s{sT0}, L_end-L_cpf")
        for k in range(4):
            a(f"v_min_u32 v{vT2}, s{sT0}, v{vT1}")
            a(f"global_load_dword v250, v{vT2}, s[90:91]")
            a(f"v_add_u32 v{vT1}, 8192, v{vT1}")
        a.label("L_nocpf")
    if PROF:
        stamp(a, 0); stamp_rt(a, 30)
    a(f"s_lshr_b32 s{sT0}, s2, 3")
    a(f"s_and_b32 s{sGI}, s{sT0}, 7")
    a(f"s_lshr_b32 s{sT0}, s{sT0}, 3")
    a(f"s_and_b32 s{sT1}, s2, 7")
    a(f"s_lshl_b32 s{sT1}, s{sT1}, 2")
    a(f"s_add_u32 s{sTB}, s{sT1}, s{sT0}")
    a(f"s_lshr_b32 s{sB}, s{sGI}, 2")
    a(f"s_and_b32 s{sHG}, s{sGI}, 3")
    a(f"s_lshr_b32 s{sTYPE}, s{sHG}, 1")
    a(f"s_and_b32 s{sTTKV}, s{sHG}, 1")
    a(f"s_lshr_b32 s{sTT}, s{sW}, 2")
    a(f"s_and_b32 s{sC}, s{sW}, 3")
    a(f"s_cmp_eq_u32 s{sTT}, s{sTTKV}")
    a(f"s_cselect_b32 s{sROLE}, 1, 0")
    a(f"s_lshl_b32 s{sTBOFF}, s{sTB}, 16")
    a(f"s_lshl_b32 s{sT0}, s{sTTKV}, 2")
    a(f"s_add_u32 s{sT0}, s{sT0}, 3")
    a(f"s_cmp_eq_u32 s{sW}, s{sT0}")
    a(f"s_cselect_b32 s{sPOLLER}, 1, 0")
    a(f"s_mov_b32 s{sFOK}, 0")
    a(f"s_getreg_b32 s{sXCC}, hwreg(HW_REG_XCC_ID, 0, 4)")
    a(f"s_mov_b32 s{sXID}, 0")
    a(f"s_mov_b32 s{sFAST}, 0")
    a(f"s_mov_b32 s{sSIG}, 0")
    a(f"s_mov_b32 s{sVM}, 0x0000ffff")
    a(f"s_mov_b32 s{sVM+1}, 0x0000ffff")
    a(f"s_mov_b32 s{sNONCE}, 0")
    a(f"v_lshlrev_b32 v{vK}, 4, v{vL}")
    a(f"v_lshrrev_b32 v{vH}, 5, v{vL}")
    a(f"v_mov_b32 v{vP0}, 0")
    a(f"v_mov_b32 v{vP2}, 0")
    a(f"s_mov_b32 s{sPA}, 0")
    a(f"s_mov_b32 s{sPB}, 0")
    a(f"v_and_b32 v{vT0}, 31, v{vL}")
    a(f"s_lshl_b32 s{sT0}, s{sTT}, 5")
    a(f"v_add_u32 v{vXb}, s{sT0}, v{vT0}")
    a(f"v_lshlrev_b32 v{vXb}, 10, v{vXb}")
    a(f"v_add_u32 v{vXb}, {L_X}, v{vXb}")
    a(f"v_and_b32 v{vN15}, 15, v{vL}")
    a(f"v_xor_b32 v{vXt}, v{vH}, v{vN15}")
    a(f"v_lshlrev_b32 v{vXt}, 4, v{vXt}")
    a("s_waitcnt lgkmcnt(0)")
    a(f"s_cmp_eq_u32 s{sB}, 0")
    a("s_cselect_b32 s6, s6, s16")
    a("s_cselect_b32 s7, s7, s17")
    a("s_cselect_b32 s8, s8, s18")
    a("s_cselect_b32 s9, s9, s19")
    a("s_cselect_b32 s10, s10, s20")
    a("s_cselect_b32 s11, s11, s21")
    a(f"s_cmp_eq_u32 s{sTYPE}, 0")
    a("s_cselect_b32 s8, s8, s10")
    a("s_cselect_b32 s9, s9, s11")
    srd(a, sX, 4, 2048 * 1024)
    srd(a, sWKV, 8, 16384)
    srd(a, sDBG, 28, 256)
    a(f"s_xor_b32 s{sT0}, s{sW}, 3")
    a(f"s_or_b32 s{sT0}, s2, s{sT0}")
    a(f"s_cmp_eq_u32 s{sT0}, 0")
    a("s_cbranch_scc0 L_nononce")
    a("s_memrealtime s[90:91]")
    a("s_waitcnt lgkmcnt(0)")
    a("s_lshl_b32 s90, s90, 4")
    a("s_or_b32 s90, s90, 0x10")
    a(f"v_mov_b32 v{vT1}, s90")
    a(f"v_mov_b32 v{vT3}, 128")
    a(f"buffer_store_dword v{vT1}, v{vT3}, s[{sDBG}:{sDBG+3}], 0 offen sc1")
    a.label("L_nononce")
    def xrow_dma(rowexpr, vt):
        rowexpr()
        a(f"s_and_b32 s{sT1}, s{sT0}, 15")
        a(f"v_xor_b32 v{vt}, s{sT1}, v{vL}")
        a(f"v_lshlrev_b32 v{vt}, 4, v{vt}")
        a(f"s_lshl_b32 s{sT1}, s{sT0}, 10")
        a(f"s_add_u32 m0, s{sT1}, {L_X}")
        a(f"s_add_u32 s{sT1}, s{sT1}, s{sTBOFF}")
        a(f"buffer_load_dwordx4 v{vt}, s[{sX}:{sX+3}], s{sT1} offen lds")
    a(f"s_lshl_b32 s{sT2}, s{sTTKV}, 5")
    a(f"s_add_u32 s{sT2}, s{sT2}, s{sW}")
    for i in range(4):
        xrow_dma(lambda: a(f"s_add_u32 s{sT0}, s{sT2}, {8*i}"), vT1)
    a(f"s_lshl_b32 s{sT1}, s{sW}, 11")
    a(f"s_add_u32 m0, s{sT1}, {L_WKV}")
    a(f"s_add_u32 s{sT3}, s{sT1}, 1024")
    a(f"buffer_load_dwordx4 v{vK}, s[{sWKV}:{sWKV+3}], s{sT1} offen lds")
    a(f"s_add_u32 m0, s{sT3}, {L_WKV}")
    srd(a, sGW, 24, 1024)
    a(f"buffer_load_dwordx4 v{vK}, s[{sWKV}:{sWKV+3}], s{sT3} offen lds")
    stamp(a, 1)
    srd(a, sWS, 30, WS_SIZE)
    def qaddr_setup():
        for sp in range(8):
            a(f"s_mov_b32 s{sT0}, {32*sp}")
            a(f"v_xad_u32 v{vXa+sp}, v{vXt}, s{sT0}, v{vXb}")
        a(f"v_lshrrev_b32 v{vT0}, 4, v{vL}")
        a(f"v_lshrrev_b32 v{vT3}, 2, v{vN15}")
        a(f"v_lshl_add_u32 v{vAa}, v{vH}, 3, v{vT3}")
        a(f"v_lshlrev_b32 v{vAa}, 8, v{vAa}")
        a(f"v_and_b32 v{vAa+1}, 1, v{vT0}")
        a(f"v_lshlrev_b32 v{vAa+1}, 1, v{vAa+1}")
        a(f"v_bfe_u32 v{vAa+2}, v{vN15}, 1, 1")
        a(f"v_add_u32 v{vAa+1}, v{vAa+1}, v{vAa+2}")
        a(f"s_lshl_b32 s{sT1}, s{sC}, 2")
        a(f"v_add_u32 v{vAa+1}, s{sT1}, v{vAa+1}")
        a(f"v_lshlrev_b32 v{vT3}, 2, v{vT3}")
        a(f"v_xor_b32 v{vAa+1}, v{vAa+1}, v{vT3}")
        a(f"v_lshl_add_u32 v{vAa}, v{vAa+1}, 4, v{vAa}")
        a(f"v_and_b32 v{vAa+2}, 1, v{vN15}")
        a(f"v_lshl_add_u32 v{vAa}, v{vAa+2}, 3, v{vAa}")
        for k in range(5, 0, -1):
            a(f"v_add_u32 v{vAa+k}, {L_SLOT[k]}, v{vAa}")
    def late_srds():
        a(f"s_cmp_eq_u32 s{sTT}, 0")
        a("s_cselect_b32 s12, s12, s22")
        a("s_cselect_b32 s13, s13, s23")
        srd(a, sOUT, 26, 2048 * 1024)
        srd(a, sWO, 12, 512 * 1024)
    a(f"s_cmp_eq_u32 s{sROLE}, 1")
    a("s_cbranch_scc0 L_wrole")
    if "kvprio" in EXPT: a("s_setprio 3")
    a(f"s_mov_b32 m0, {L_GW}")
    a(f"v_lshrrev_b32 v{vT0}, 4, v{vL}")
    a(f"buffer_load_dwordx4 v{vK}, s[{sGW}:{sGW+3}], 0 offen lds")
    vXk = vXa
    WF16, XF16 = 128, 192
    KAC = EAC
    a(f"s_and_b32 s{sT2}, s{sC}, 1")
    a(f"s_lshl_b32 s{sT0}, s{sTTKV}, 5")
    a(f"s_lshl_b32 s{sT1}, s{sT2}, 4")
    a(f"s_add_u32 s{sT0}, s{sT0}, s{sT1}")
    a(f"v_add_u32 v{vT2}, s{sT0}, v{vN15}")
    a(f"v_lshlrev_b32 v{vT2}, 10, v{vT2}")
    a(f"v_add_u32 v{vT2}, {L_X}, v{vT2}")
    a(f"v_xor_b32 v{vT3}, v{vT0}, v{vN15}")
    a(f"v_lshlrev_b32 v{vT3}, 4, v{vT3}")
    for sp in range(4):
        a(f"s_mov_b32 s{sT0}, {64*sp}")
        a(f"v_xad_u32 v{vXk+sp}, v{vT3}, s{sT0}, v{vT2}")
    a(f"v_lshrrev_b32 v{vE}, 2, v{vN15}")
    a(f"v_lshl_add_u32 v{vE}, v{vT0}, 3, v{vE}")
    a(f"v_lshlrev_b32 v{vE}, 5, v{vE}")
    a(f"v_and_b32 v{vT3}, 3, v{vN15}")
    a(f"v_lshl_add_u32 v{vE}, v{vT3}, 3, v{vE}")
    a(f"v_add_u32 v{vE}, {L_WKV}, v{vE}")
    a(f"v_lshlrev_b32 v{vGp}, 4, v{vT0}")
    a(f"v_add_u32 v{vGp}, {L_GW}, v{vGp}")
    a(f"v_and_b32 v{vT2}, 1, v{vT0}")
    a(f"v_lshrrev_b32 v{vT3}, 1, v{vT0}")
    a(f"s_cmp_eq_u32 s{sTYPE}, 0")
    a("s_cbranch_scc0 L_sa_v")
    a(f"v_and_b32 v{vPw}, 3, v{vN15}")
    a(f"v_and_b32 v{vT1}, 4, v{vN15}")
    a(f"v_lshl_add_u32 v{vPw}, v{vT1}, 1, v{vPw}")
    a(f"v_and_b32 v{vT1}, 8, v{vN15}")
    a(f"v_lshrrev_b32 v{vT1}, 1, v{vT1}")
    a(f"v_add_u32 v{vPw}, v{vPw}, v{vT1}")
    a(f"v_lshl_add_u32 v{vPw}, v{vT2}, 5, v{vPw}")
    a(f"s_lshl_b32 s{sT1}, s{sT2}, 4")
    a(f"v_add_u32 v{vPw}, s{sT1}, v{vPw}")
    a(f"v_lshlrev_b32 v{vPw}, 4, v{vPw}")
    a("s_branch L_sa_j")
    a.label("L_sa_v")
    a(f"v_lshl_add_u32 v{vPw}, v{vT2}, 4, v{vN15}")
    a(f"v_lshlrev_b32 v{vPw}, 4, v{vPw}")
    a(f"s_lshl_b32 s{sT1}, s{sT2}, 9")
    a(f"s_add_u32 s{sT1}, s{sT1}, 1024")
    a(f"v_add_u32 v{vPw}, s{sT1}, v{vPw}")
    a.label("L_sa_j")
    a(f"v_lshl_add_u32 v{vPw}, v{vT3}, 3, v{vPw}")
    a(f"s_lshl_b32 s{sT0}, s{sTB}, 1")
    a(f"s_add_u32 s{sT0}, s{sT0}, s{sTTKV}")
    a(f"s_lshl_b32 s{sOFF}, s{sT0}, 11")
    a(f"s_lshl_b32 s{sT3}, s{sB}, 17")
    a(f"s_add_u32 s{sOFF}, s{sOFF}, s{sT3}")
    if WS_KV: a(f"s_add_u32 s{sOFF}, s{sOFF}, {WS_KV}")
    a(f"s_lshl_b32 s{sM0}, s{sT0}, 7")
    a(f"s_add_u32 s{sM0}, s{sM0}, {WS_G}")
    vNon = 38
    a(f"v_mov_b32 v{vT3}, 128")
    a(f"buffer_load_dword v{vNon}, v{vT3}, s[{sDBG}:{sDBG+3}], 0 offen sc1")
    stamp(a, 2)
    a("s_waitcnt vmcnt(0)")
    a("s_barrier")
    stamp(a, 3)
    a(f"s_cmp_ge_u32 s{sC}, 2")
    a("s_cbranch_scc1 L_kv_gate")
    def kvreads(sx):
        a(f"ds_read_b64_tr_b16 {vr(WF16+4*sx,2)}, v{vE} offset:{sx*1024}")
        a(f"ds_read_b64_tr_b16 {vr(WF16+4*sx+2,2)}, v{vE} offset:{sx*1024+128}")
        a(f"ds_read_b128 {vr(XF16+4*sx,4)}, v{vXk+(sx%4)} offset:{(sx//4)*256}")
    D = 5
    for kind in ("k", "v"):
        if kind == "k":
            a(f"s_cmp_eq_u32 s{sTYPE}, 0")
            a("s_cbranch_scc0 L_kv_v")
        else:
            a.label("L_kv_v")
        for sx in range(D): kvreads(sx)
        for sx in range(16):
            rem = min(D - 1, 15 - sx)
            a(f"s_waitcnt lgkmcnt({3*rem})")
            c = vr(KAC, 4) if sx else "0"
            if kind == "k":
                a(f"{MF16} {vr(KAC,4)}, {vr(WF16+4*sx,4)}, {vr(XF16+4*sx,4)}, {c}")
            else:
                a(f"{MF16} {vr(KAC,4)}, {vr(XF16+4*sx,4)}, {vr(WF16+4*sx,4)}, {c}")
            if sx + D < 16: kvreads(sx + D)
        if kind == "k": a("s_branch L_kv_st")
    a.label("L_kv_st")
    a("s_nop 7")
    a(f"v_cvt_pk_bf16_f32 v{KAC+4}, v{KAC}, v{KAC+1}")
    a(f"v_cvt_pk_bf16_f32 v{KAC+5}, v{KAC+2}, v{KAC+3}")
    a(f"buffer_store_dwordx2 {vr(KAC+4,2)}, v{vPw}, s[{sWS}:{sWS+3}], s{sOFF} offen sc1")
    stamp(a, 12)
    a("s_branch L_kv_sig")
    a.label("L_kv_gate")
    a(f"s_or_b32 s{sT0}, s{sTYPE}, s{sB}")
    a(f"s_xor_b32 s{sT1}, s{sC}, 2")
    a(f"s_or_b32 s{sT0}, s{sT0}, s{sT1}")
    a(f"s_cmp_eq_u32 s{sT0}, 0")
    a("s_cbranch_scc0 L_kv_idle")
    for sp in range(4):
        a(f"v_add_u32 v{vXk+4+sp}, 16384, v{vXk+sp}")
    def greads(sx):
        a(f"ds_read_b128 {vr(WF16+4*(sx%8),4)}, v{vGp} offset:{sx*64}")
        a(f"ds_read_b128 {vr(XF16+8*(sx%8),4)}, v{vXk+(sx%4)} offset:{(sx//4)*256}")
        a(f"ds_read_b128 {vr(XF16+8*(sx%8)+4,4)}, v{vXk+4+(sx%4)} offset:{(sx//4)*256}")
    for sx in range(D): greads(sx)
    for sx in range(16):
        rem = min(D - 1, 15 - sx)
        a(f"s_waitcnt lgkmcnt({3*rem})")
        a(f"{MF16} {vr(KAC,4)}, {vr(WF16+4*(sx%8),4)}, {vr(XF16+8*(sx%8),4)}, {vr(KAC,4) if sx else '0'}")
        a(f"{MF16} {vr(KAC+4,4)}, {vr(WF16+4*(sx%8),4)}, {vr(XF16+8*(sx%8)+4,4)}, {vr(KAC+4,4) if sx else '0'}")
        if sx + D < 16: greads(sx + D)
    a(f"v_and_b32 v{vT1}, 16, v{vL}")
    a(f"v_cmp_eq_u32 vcc, 0, v{vT1}")
    a("s_nop 6")
    a(f"v_cndmask_b32 v{KAC+8}, v{KAC+4}, v{KAC}, vcc")
    a(f"v_cvt_pk_bf16_f32 v{KAC+8}, v{KAC+8}, v{KAC+8}")
    a(f"v_lshlrev_b32 v{KAC+8}, 16, v{KAC+8}")
    a(f"s_mov_b32 s{sT2}, {hex(f2u(-math.log2(math.e)))}")
    a(f"v_mul_f32 v{KAC+8}, s{sT2}, v{KAC+8}")
    a(f"v_exp_f32 v{KAC+8}, v{KAC+8}")
    a("s_nop 0")
    a(f"v_add_f32 v{KAC+8}, 1.0, v{KAC+8}")
    a(f"v_rcp_f32 v{KAC+8}, v{KAC+8}")
    a("s_nop 0")
    a(f"v_cvt_pk_bf16_f32 v{KAC+8}, v{KAC+8}, v{KAC+8}")
    a(f"v_lshlrev_b32 v{KAC+8}, 16, v{KAC+8}")
    a(f"v_lshlrev_b32 v{KAC+9}, 2, v{vL}")
    a(f"v_cmp_gt_u32 vcc, 32, v{vL}")
    a(f"s_and_saveexec_b64 s[{sT4}:{sT5}], vcc")
    a(f"buffer_store_dword v{KAC+8}, v{KAC+9}, s[{sWS}:{sWS+3}], s{sM0} offen sc1")
    a(f"s_mov_b64 exec, s[{sT4}:{sT5}]")
    a.label("L_kv_sig")
    qaddr_setup()
    late_srds()
    a(f"v_lshl_add_u32 v{vV}, v{vH}, 4, v{vN15}")
    a(f"v_lshlrev_b32 v{vV}, 4, v{vV}")
    a(f"s_mov_b32 s{sSIG}, 1")
    a("s_branch L_sigcode")
    a.label("L_kv_idle")
    if "notlb" not in EXPT:
        a(f"s_lshl_b32 s{sT0}, s{sTB}, 16")
        a(f"v_mov_b32 v{vP1}, s{sT0}")
        a(f"global_load_dword v{vF}, v{vP1}, s[26:27]")
        a(f"s_lshl_b32 s{sT0}, s{sTB}, 17")
        a(f"s_add_u32 s{sT0}, s{sT0}, {WS_O}")
        a(f"v_mov_b32 v{vP1}, s{sT0}")
        a(f"global_load_dword v{vF+1}, v{vP1}, s[30:31]")
        a(f"s_lshr_b32 s{sT0}, s{sGI}, 1")
        a(f"s_lshl_b32 s{sT0}, s{sT0}, 8")
        a(f"v_mov_b32 v{vP1}, s{sT0}")
        a(f"global_load_dword v{vF+2}, v{vP1}, s[12:13]")
        a(f"global_load_dword v{vF+3}, v{vP1}, s[22:23]")
    qaddr_setup()
    late_srds()
    a(f"v_lshl_add_u32 v{vV}, v{vH}, 4, v{vN15}")
    a(f"v_lshlrev_b32 v{vV}, 4, v{vV}")
    a(f"v_lshrrev_b32 v{vP0}, 1, v{vL}")
    a(f"v_lshlrev_b32 v{vP0}, 7, v{vP0}")
    a(f"v_and_b32 v{vP2}, 1, v{vL}")
    a(f"v_lshl_add_u32 v{vP0}, v{vP2}, 4, v{vP0}")
    a(f"v_lshlrev_b32 v{vP2}, 2, v{vP2}")
    a(f"s_lshl_b32 s{sPA}, s{sB}, 12")
    a(f"s_add_u32 s{sPA}, s{sPA}, {WS_KF}")
    a(f"s_lshl_b32 s{sPB}, s{sTB}, 7")
    a(f"s_add_u32 s{sPB}, s{sPB}, {WS_KF + 8192}")
    a(f"v_readfirstlane_b32 s{sNONCE}, v{vNon}")
    a("s_branch L_b1")
    def signal_kv():
        a(f"s_cmp_eq_u32 s{sSIG}, 1")
        a("s_cbranch_scc0 L_nosig")
        a(f"v_readfirstlane_b32 s{sNONCE}, v{vNon}")
        a(f"s_mov_b32 s{sT1}, 0")
        a.label("L_nwait")
        a(f"s_cmp_lg_u32 s{sNONCE}, 0")
        a("s_cbranch_scc1 L_nok")
        a(f"v_mov_b32 v{vT3}, 128")
        a(f"buffer_load_dword v{vNon}, v{vT3}, s[{sDBG}:{sDBG+3}], 0 offen sc1")
        a("s_waitcnt vmcnt(0)")
        a(f"v_readfirstlane_b32 s{sNONCE}, v{vNon}")
        a(f"s_add_u32 s{sT1}, s{sT1}, 1")
        a(f"s_cmp_lt_u32 s{sT1}, {POLL_LIMIT}")
        a("s_cbranch_scc1 L_nwait")
        a.label("L_nok")
        a(f"s_cmp_eq_u32 s{sC}, 2")
        a("s_cbranch_scc1 L_fa_gate")
        a(f"s_lshl_b32 s{sT0}, s{sB}, 5")
        a(f"s_add_u32 s{sT0}, s{sT0}, s{sTB}")
        a(f"s_lshl_b32 s{sT0}, s{sT0}, 7")
        a(f"s_lshl_b32 s{sT1}, s{sTTKV}, 2")
        a(f"s_lshl_b32 s{sT2}, s{sTYPE}, 1")
        a(f"s_add_u32 s{sT1}, s{sT1}, s{sT2}")
        a(f"s_add_u32 s{sT1}, s{sT1}, s{sC}")
        a(f"s_lshl_b32 s{sT1}, s{sT1}, 2")
        a(f"s_add_u32 s{sT0}, s{sT0}, s{sT1}")
        a(f"s_add_u32 s{sT0}, s{sT0}, {WS_KF}")
        a("s_branch L_fa_j")
        a.label("L_fa_gate")
        a(f"s_lshl_b32 s{sT0}, s{sTB}, 7")
        a(f"s_lshl_b32 s{sT1}, s{sTTKV}, 2")
        a(f"s_add_u32 s{sT0}, s{sT0}, s{sT1}")
        a(f"s_add_u32 s{sT0}, s{sT0}, {WS_KF + 8192}")
        a.label("L_fa_j")
        a(f"v_mov_b32 v{RD}, 0")
        a(f"v_mov_b32 v{RD+1}, s{sNONCE}")
        a("s_waitcnt vmcnt(0)")
        a(f"v_cmp_eq_u32 vcc, 0, v{vL}")
        a(f"s_and_saveexec_b64 s[{sT4}:{sT5}], vcc")
        a(f"buffer_store_dword v{RD+1}, v{RD}, s[{sWS}:{sWS+3}], s{sT0} offen sc1")
        a(f"s_mov_b64 exec, s[{sT4}:{sT5}]")
        stamp(a, 13)
        a.label("L_nosig")
    a.label("L_sigcode")
    signal_kv()
    a("s_branch L_b1")
    a.label("L_wrole")
    a(f"v_lshrrev_b32 v{vT0}, 4, v{vL}")
    a(f"v_lshlrev_b32 v{vWq}, 2, v{vT0}")
    a(f"v_xor_b32 v{vWq}, v{vWq}, v{vN15}")
    a(f"v_lshlrev_b32 v{vWq}, 4, v{vWq}")
    a(f"v_lshl_add_u32 v{vWq}, v{vT0}, 10, v{vWq}")
    a(f"s_lshl_b32 s{sT1}, s{sHG}, 8")
    a(f"v_add_u32 v{vWq}, s{sT1}, v{vWq}")
    srd(a, sWQ, 6, 512 * 1024)
    def wq_chunk(c):
        slot = L_SLOT[c]
        for i in range(4):
            a(f"s_lshl_b32 s{sT1}, s{sC}, 12")
            a(f"s_add_u32 m0, s{sT1}, {slot + i*1024}")
            a(f"s_lshl_b32 s{sT1}, s{sC}, 14")
            a(f"s_add_u32 s{sT1}, s{sT1}, {(64*c + 4*i)*1024}")
            a(f"buffer_load_dwordx4 v{vWq}, s[{sWQ}:{sWQ+3}], s{sT1} offen lds")
    def other_rows():
        a(f"s_xor_b32 s{sT2}, s{sTTKV}, 1")
        a(f"s_lshl_b32 s{sT2}, s{sT2}, 5")
        a(f"s_add_u32 s{sT2}, s{sT2}, s{sC}")
        for i in range(8):
            xrow_dma(lambda: a(f"s_add_u32 s{sT0}, s{sT2}, {4*i}"), vT1)
    EARLY = opt("early", 0)
    nbefore = 0
    if EARLY >= 1: other_rows(); nbefore += 8
    if EARLY >= 2: wq_chunk(0); nbefore += 4
    qaddr_setup()
    late_srds()
    a(f"v_lshl_add_u32 v{vV}, v{vH}, 4, v{vN15}")
    a(f"v_lshlrev_b32 v{vV}, 4, v{vV}")
    stamp(a, 2)
    a(f"s_waitcnt vmcnt({nbefore})")
    a("s_barrier")
    stamp(a, 3)
    if "wdelay" in EXPT:
        a(f"v_mov_b32 v{vT0}, {L_CNT}")
        a.label("L_wspin")
        a(f"ds_read_b32 v{vT1}, v{vT0}")
        a("s_waitcnt lgkmcnt(0)")
        a(f"v_readfirstlane_b32 s{sT0}, v{vT1}")
        a(f"s_cmp_ge_u32 s{sT0}, {opt('wd', 4)}")
        a("s_cbranch_scc0 L_wspin")
    if EARLY < 1: other_rows()
    if EARLY < 2: wq_chunk(0)
    for c in range(1, 4): wq_chunk(c)
    stamp(a, 4)
    a("s_waitcnt vmcnt(8)")
    a.label("L_b1")
    if "kvprio" in EXPT: a("s_setprio 0")
    a("s_barrier")
    stamp(a, 5)
    def qreads(s):
        c, sp4 = s // 4, s % 4
        buf = s % 4
        va = vAa + [0, 1, 2, 3, 4, 5, 0, 1][c]
        a(f"ds_read_b64_tr_b16 {vr(AF+4*buf,2)}, v{va} offset:{sp4*4096}")
        a(f"ds_read_b64_tr_b16 {vr(AF+4*buf+2,2)}, v{va} offset:{sp4*4096+1024}")
        a(f"ds_read_b128 {vr(XF+4*buf,4)}, v{vXa + (s % 8)} offset:{(s//8)*256}")
    def qmf(s):
        buf = s % 4
        a(f"{MF} {vr(ACC,16)}, {vr(AF+4*buf,4)}, {vr(XF+4*buf,4)}, {vr(ACC,16) if s else '0'}")
    def flag_loads():
        a(f"buffer_load_dwordx4 {vr(vF,4)}, v{vP0}, s[{sWS}:{sWS+3}], s{sPA} offen sc1")
        a(f"buffer_load_dword v{vF+4}, v{vP2}, s[{sWS}:{sWS+3}], s{sPB} offen sc1")
    def flag_cmp():
        a(f"v_cmp_eq_u32 vcc, s{sNONCE}, v{vF}")
        for k in range(1, 5):
            a(f"v_cmp_eq_u32 s[{sT2}:{sT3}], s{sNONCE}, v{vF+k}")
            a(f"s_and_b64 vcc, vcc, s[{sT2}:{sT3}]")
    def first_kv():
        a(f"s_lshl_b32 s{sOFF}, s{sB}, 17")
        if WS_KV: a(f"s_add_u32 s{sOFF}, s{sOFF}, {WS_KV}")
        a(f"s_mov_b32 s{sM0}, {L_KV}")
        for i in range(8):
            a(f"s_mov_b32 m0, s{sM0}")
            a(f"s_add_u32 s{sM0}, s{sM0}, 1024")
            a(f"buffer_load_dwordx4 v{vK}, s[{sWS}:{sWS+3}], s{sOFF} offen sc1 lds")
            a(f"s_add_u32 s{sOFF}, s{sOFF}, 1024")
        a(f"s_mov_b32 s{sFOK}, 2")
    def xid_publish(tag):
        a(f"s_cmp_eq_u32 s{sNONCE}, 0")
        a(f"s_cbranch_scc1 L_xp{tag}")
        a(f"s_cmp_lg_u32 s{sXID}, 0")
        a(f"s_cbranch_scc1 L_xp{tag}")
        a(f"s_or_b32 s{sXID}, s{sNONCE}, s{sXCC}")
        a(f"s_lshl_b32 s{sT0}, s{sTB}, 7")
        a(f"s_lshl_b32 s{sT1}, s{sGI}, 2")
        a(f"s_add_u32 s{sT0}, s{sT0}, s{sT1}")
        a(f"s_add_u32 s{sT0}, s{sT0}, {WS_XI}")
        a(f"v_mov_b32 v{vP1}, 0")
        a(f"v_mov_b32 v{vF+5}, s{sXID}")
        a(f"buffer_store_dword v{vF+5}, v{vP1}, s[{sWS}:{sWS+3}], s{sT0} offen sc1")
        a.label(f"L_xp{tag}")
    def poller_step(p, check, can_first):
        lab = f"L_ps{p}"
        a(f"s_cmp_eq_u32 s{sPOLLER}, 1")
        a(f"s_cbranch_scc0 {lab}")
        xid_publish(p)
        a(f"s_cmp_lg_u32 s{sFOK}, 0")
        a(f"s_cbranch_scc1 {lab}_fok")
        if check:
            a("s_waitcnt vmcnt(0)")
            a(f"s_cmp_eq_u32 s{sNONCE}, 0")
            a(f"s_cbranch_scc1 {lab}_re")
            flag_cmp()
            a("s_cmp_eq_u64 vcc, exec")
            a(f"s_cbranch_scc0 {lab}_re")
            a(f"s_mov_b32 s{sFOK}, 1")
            a(f"s_branch {lab}_fok")
            a.label(f"{lab}_re")
            a(f"s_cmp_lg_u32 s{sNONCE}, 0")
            a(f"s_cbranch_scc1 {lab}_ld")
            a(f"v_readfirstlane_b32 s{sNONCE}, v{vNon}")
            a.label(f"{lab}_ld")
        a(f"v_mov_b32 v{vP1}, 128")
        a(f"buffer_load_dword v{vNon}, v{vP1}, s[{sDBG}:{sDBG+3}], 0 offen sc1")
        flag_loads()
        a(f"s_branch {lab}")
        a.label(f"{lab}_fok")
        if can_first:
            a(f"s_cmp_eq_u32 s{sFOK}, 1")
            a(f"s_cbranch_scc0 {lab}")
            first_kv()
        a.label(lab)
    for s_ in range(4): qreads(s_)
    a(f"s_cmp_eq_u32 s{sROLE}, 1")
    a("s_cbranch_scc1 L_c5_skip")
    wq_chunk(4)
    wq_chunk(5)
    a.label("L_c5_skip")
    for p in range(4):
        for j in range(8):
            s_ = 8 * p + j
            if j < 7:
                nxt = min(3, 7 - j)
                a(f"s_waitcnt lgkmcnt({3*nxt})")
                qmf(s_)
                if j + 4 < 8: qreads(s_ + 4)
            else:
                a("s_waitcnt lgkmcnt(0)")
                if p < 3:
                    lab = f"L_q{p}"
                    a(f"s_cmp_eq_u32 s{sROLE}, 1")
                    a(f"s_cbranch_scc1 {lab}_kv")
                    a(f"s_waitcnt vmcnt({[8, 8, 0][p]})")
                    a("s_barrier")
                    if p == 0:
                        wq_chunk(6); wq_chunk(7)
                    a(f"s_branch {lab}_j")
                    a.label(f"{lab}_kv")
                    a("s_barrier")
                    a.label(f"{lab}_j")
                    for k in range(3): qreads(8 * (p + 1) + k)
                    qmf(s_)
                    qreads(8 * (p + 1) + 3)
                    poller_step(p, check=(p > 0), can_first=(p == 2))
                    if p == 2:
                        a(f"s_cmp_eq_u32 s{sW}, 0")
                        a("s_cbranch_scc0 L_nocz")
                        a(f"v_mov_b32 v{RD}, 0")
                        a(f"ds_write_b32 v{RD}, v{RD} offset:{L_CNT3}")
                        a.label("L_nocz")
                    if "st3" in EXPT: stamp(a, 18 + p)
                else:
                    qmf(s_)
    stamp(a, 6)
    def poll(label, load, cmpcode):
        a(f"s_mov_b32 s{sT1}, 0")
        a.label(label)
        load()
        a("s_waitcnt vmcnt(0)")
        cmpcode()
        a("s_cmp_eq_u64 vcc, exec")
        a(f"s_cbranch_scc1 {label}_done")
        a(f"s_add_u32 s{sT1}, s{sT1}, 1")
        a(f"s_cmp_lt_u32 s{sT1}, {POLL_LIMIT}")
        a(f"s_cbranch_scc0 {label}_done")
        a("s_sleep 1")
        a(f"s_branch {label}")
        a.label(f"{label}_done")
    a(f"s_mov_b32 s{sT0}, {hex(f2u(CQ))}")
    a(f"v_add_u32 v{vV}, {L_KV+1024}, v{vV}")
    a(f"v_and_b32 v{vT0}, 27, v{vL}")
    a(f"v_cmp_eq_u32 vcc, 16, v{vT0}")
    a(f"v_mov_b32 v{vT1}, 0x3f803f80")
    a(f"v_add_u32 v{vV2}, 0x10000, v{vV}")
    for i in range(16):
        a(f"v_cndmask_b32 v{V0+i}, 0, v{vT1}, vcc")
    a(f"s_mov_b32 s{sT1}, s{sT0}")
    for i in range(0, 16, 2):
        a(f"v_pk_mul_f32 {vr(ACC+i,2)}, {vr(ACC+i,2)}, s[{sT0}:{sT1}]")
    for j in range(4):
        a(f"v_cvt_pk_bf16_f32 v{QA+j}, v{ACC+2*j}, v{ACC+2*j+1}")
        a(f"v_cvt_pk_bf16_f32 v{QB+j}, v{ACC+8+2*j}, v{ACC+8+2*j+1}")
    a(f"s_cmp_eq_u32 s{sPOLLER}, 1")
    a("s_cbranch_scc0 L_nopoll")
    a(f"s_cmp_eq_u32 s{sFOK}, 2")
    a("s_cbranch_scc1 L_nopoll")
    a(f"s_cmp_eq_u32 s{sFOK}, 1")
    a("s_cbranch_scc1 L_dofirst")
    a("s_waitcnt vmcnt(0)")
    a(f"s_cmp_lg_u32 s{sNONCE}, 0")
    a("s_cbranch_scc0 L_getnonce")
    flag_cmp()
    a("s_cmp_eq_u64 vcc, exec")
    a("s_cbranch_scc1 L_dofirst")
    a("s_branch L_havenonce")
    a.label("L_getnonce")
    a(f"v_readfirstlane_b32 s{sNONCE}, v{vNon}")
    a(f"v_mov_b32 v{vP1}, 128")
    def ldn(): a(f"buffer_load_dword v{vNon}, v{vP1}, s[{sDBG}:{sDBG+3}], 0 offen sc1")
    def cmpn(): a(f"v_cmp_ne_u32 vcc, 0, v{vNon}")
    a(f"s_cmp_lg_u32 s{sNONCE}, 0")
    a("s_cbranch_scc1 L_havenonce")
    poll("L_polln", ldn, cmpn)
    a(f"v_readfirstlane_b32 s{sNONCE}, v{vNon}")
    a.label("L_havenonce")
    poll("L_poll", flag_loads, flag_cmp)
    a.label("L_dofirst")
    first_kv()
    a.label("L_nopoll")
    a(f"s_cmp_eq_u32 s{sPOLLER}, 1")
    a("s_cbranch_scc0 L_noxp")
    xid_publish(9)
    a.label("L_noxp")
    for i in range(0, 16, 2):
        a(f"v_pk_mov_b32 {vr(OA+i,2)}, 0, 0")
        a(f"v_pk_mov_b32 {vr(OB+i,2)}, 0, 0")
    a(f"v_lshrrev_b32 v{vT0}, 2, v{vL}")
    a(f"v_and_b32 v{vT1}, 3, v{vL}")
    a(f"v_lshlrev_b32 v{vT1}, 4, v{vT1}")
    a(f"v_lshl_add_u32 v{vWO}, v{vT0}, 10, v{vT1}")
    a(f"s_lshr_b32 s{sT0}, s{sGI}, 1")
    a(f"s_lshl_b32 s{sT0}, s{sT0}, 8")
    a(f"s_lshl_b32 s{sT1}, s{sC}, 6")
    a(f"s_add_u32 s{sT0}, s{sT0}, s{sT1}")
    a(f"v_add_u32 v{vWO}, s{sT0}, v{vWO}")
    a(f"v_lshrrev_b32 v{vT1}, 2, v{vN15}")
    a(f"v_lshl_add_u32 v{vT1}, v{vH}, 2, v{vT1}")
    a(f"v_lshlrev_b32 v{vWOr}, 6, v{vT1}")
    a(f"v_bfe_u32 v{vT1}, v{vL}, 4, 1")
    a(f"v_lshl_add_u32 v{vWOr}, v{vT1}, 5, v{vWOr}")
    a(f"v_and_b32 v{vT0}, 3, v{vN15}")
    a(f"v_lshl_add_u32 v{vWOr}, v{vT0}, 3, v{vWOr}")
    a(f"s_lshl_b32 s{sT0}, s{sW}, 12")
    a(f"v_add_u32 v{vWOr}, s{sT0}, v{vWOr}")
    a(f"v_mov_b32 v{IDX}, 0xdddddddd")
    a(f"s_lshl_b32 s{sOFF}, s{sB}, 17")
    a(f"s_add_u32 s{sOFF}, s{sOFF}, {WS_KV + 8192}")
    a(f"s_lshl_b32 s{sM0}, s{sC}, 11")
    a(f"s_add_u32 s{sOFF}, s{sOFF}, s{sM0}")
    a(f"s_add_u32 s{sM0}, s{sM0}, {L_KV + 8192}")
    vKd = 253
    a(f"v_mov_b32 v{vKd}, v{vK}")
    a(f"v_add_u32 v{vK}, {L_KV}, v{vK}")
    a(f"v_add_u32 v{vK2}, 0x10000, v{vK}")
    a(f"s_mov_b32 s{sPASS}, 1")
    a(f"s_lshr_b32 s{sKVI}, s{sW}, 2")
    a(f"v_and_b32 v{vG}, 31, v{vL}")
    a(f"v_lshlrev_b32 v{vG}, 2, v{vG}")
    a(f"s_lshl_b32 s{sT2}, s{sTB}, 1")
    a(f"s_add_u32 s{sT2}, s{sT2}, s{sTT}")
    a(f"s_lshl_b32 s{sT2}, s{sT2}, 7")
    a(f"s_add_u32 s{sT2}, s{sT2}, {WS_G}")
    a("s_waitcnt vmcnt(0)")
    a("s_barrier")
    stamp(a, 7)
    def kv_step():
        a(f"s_mov_b32 m0, s{sM0}")
        a(f"s_add_u32 s{sT0}, s{sOFF}, 1024")
        a(f"buffer_load_dwordx4 v{vKd}, s[{sWS}:{sWS+3}], s{sOFF} offen sc1 lds")
        a(f"s_add_u32 m0, s{sM0}, 1024")
        a(f"s_add_u32 s{sM0}, s{sM0}, 8192")
        a(f"buffer_load_dwordx4 v{vKd}, s[{sWS}:{sWS+3}], s{sT0} offen sc1 lds")
        a(f"s_add_u32 s{sOFF}, s{sOFF}, 8192")
    a(f"buffer_load_dword v{vG}, v{vG}, s[{sWS}:{sWS+3}], s{sT2} offen sc1")
    def ldK(buf, t):
        va = vK if t < 32 else vK2
        a(f"ds_read_b128 {vr(KB+4*buf,4)}, v{va} offset:{(t % 32)*2048}")
    def ldV(buf, t):
        va = vV if t < 32 else vV2
        off = (t % 32) * 2048
        a(f"s_mov_b64 exec, s[{sVM}:{sVM+1}]")
        a(f"ds_read_b128 {vr(V0+4*buf,4)}, v{va} offset:{off}")
        a(f"ds_read_b128 {vr(V1+4*buf,4)}, v{va} offset:{off+512}")
        a("s_mov_b64 exec, -1")
    def neg_bcast(C, m):
        for i in range(0, 16, 2):
            a(f"v_pk_mul_f32 {vr(C+i,2)}, {vr(m,2)}, -1.0 op_sel_hi:[0,0]")
    def crosshalf_max(m, t):
        a(f"v_mov_b32 v{t}, v{m}")
        a("s_nop 1")
        a(f"v_permlane32_swap_b32 v{m}, v{t}")
        a("s_nop 1")
        a(f"v_max_f32 v{m}, v{m}, v{t}")
    def rowmax(S, m):
        a(f"v_max3_f32 v{m}, v{S}, v{S+1}, v{S+2}")
        for i in range(3, 15, 2):
            a(f"v_max3_f32 v{m}, v{m}, v{S+i}, v{S+i+1}")
        a(f"v_max_f32 v{m}, v{m}, v{S+15}")
    M0r, M1r, M2r, M3r = WOA, WOA + 1, WOA + 2, WOA + 3
    ldK(0, 0)
    ldK(1, 1)
    ldV(0, 0)
    a("s_waitcnt lgkmcnt(3)")
    a(f"{MF} {vr(SA,16)}, {vr(KB,4)}, {vr(QA,4)}, 0")
    a(f"{MF} {vr(SB,16)}, {vr(KB,4)}, {vr(QB,4)}, 0")
    for i in range(8, 16, 2):
        pass
    a("s_nop 10")
    rowmax(SA, M0r); rowmax(SB, M2r)
    crosshalf_max(M0r, M1r); crosshalf_max(M2r, M3r)
    neg_bcast(CA, M0r); neg_bcast(CB, M2r)
    a("s_branch L_go")
    a.label("L_restart")
    for i in range(0, 16, 2):
        a(f"v_pk_mov_b32 {vr(OA+i,2)}, 0, 0")
        a(f"v_pk_mov_b32 {vr(OB+i,2)}, 0, 0")
    ldK(0, 0)
    ldK(1, 1)
    ldV(0, 0)
    a.label("L_go")
    for i in range(8, 16, 2):
        a(f"v_pk_mov_b32 {vr(SB+i,2)}, 0, 0")
    a("s_waitcnt lgkmcnt(0)")
    a(f"{MF} {vr(SA,16)}, {vr(KB,4)}, {vr(QA,4)}, {vr(CA,16)}")
    if "noprio" not in EXPT:
        a(f"s_cmp_ge_u32 s{sW}, 4")
        a("s_cbranch_scc0 L_noprio0")
        a("s_setprio 1")
        a.label("L_noprio0")
    a("s_nop 7")
    a("s_nop 1")
    stamp(a, 9)
    def ex(S, i): a(f"v_exp_f32 v{S+i}, v{S+i}")
    T0W = 16
    def wo_dma(f):
        a(f"s_lshl_b32 s{sT0}, s{sW}, 12")
        a(f"s_add_u32 m0, s{sT0}, {L_WOST + (f % 3)*1024}")
        a(f"s_mov_b32 s{sT1}, {f*16384}")
        a(f"buffer_load_dwordx4 v{vWO}, s[{sWO}:{sWO+3}], s{sT1} offen lds")
    def wo_read(f, dst):
        a(f"ds_read_b64_tr_b16 {vr(dst,2)}, v{vWOr} offset:{L_WOST + (f % 3)*1024}")
        a(f"ds_read_b64_tr_b16 {vr(dst+2,2)}, v{vWOr} offset:{L_WOST + (f % 3)*1024 + 512}")
    PSW = opt("psw", 53)
    for t in range(64):
        p = t & 1
        def sync(k, n):
            a(f"s_cmp_eq_u32 s{sPASS}, 1")
            a(f"s_cbranch_scc0 L_sy{k}_done")
            a(f"s_cmp_ge_u32 s{sW}, 4")
            a(f"s_cbranch_scc0 L_sy{k}_spin")
            if n is not None: a(f"s_waitcnt vmcnt({n})")
            a(f"v_mov_b32 v254, 1")
            a("s_mov_b64 exec, 1")
            a(f"ds_add_u32 v{vKd}, v254 offset:{L_CNT3}")
            a("s_mov_b64 exec, -1")
            a.label(f"L_sy{k}_spin")
            a(f"ds_read_b32 v254, v{vKd} offset:{L_CNT3}")
            a("s_waitcnt lgkmcnt(0)")
            a(f"v_readfirstlane_b32 s{sT0}, v254")
            a(f"s_cmp_ge_u32 s{sT0}, {4*k}")
            a(f"s_cbranch_scc0 L_sy{k}_spin")
            a.label(f"L_sy{k}_done")
        if t == 2:  sync(1, 2)
        if t == 6:  sync(2, 6)
        if t == 14: sync(3, 14)
        if t == 30: sync(4, None)
        if t == PSW and "noprio" not in EXPT:
            a("s_setprio 0")
        ex(SA, 0); ex(SA, 1)
        a(f"{SM} {vr(OB,16)}, {vr(V1+4*(p^1),4)}, {vr(SB+8,8)}, v{IDX}")
        ex(SA, 2); ex(SA, 3); ex(SA, 4)
        a(f"{MF} {vr(SB,16)}, {vr(KB+4*p,4)}, {vr(QB,4)}, {vr(CB,16)}")
        nld = 0
        if t + 2 < 64: ldK(p, t + 2); nld += 1
        if t + 1 < 64: ldV(p ^ 1, t + 1); nld += 2
        for i in range(5, 10): ex(SA, i)
        a(f"s_waitcnt lgkmcnt({nld})")
        a(f"{SM} {vr(OA,16)}, {vr(V0+4*p,4)}, {vr(SA,8)}, v{IDX}")
        for i in range(10, 13): ex(SA, i)
        if t <= 14:
            a(f"s_cmp_eq_u32 s{sKVI}, 1")
            a(f"s_cbranch_scc0 L_nokv{t}")
            kv_step()
            a.label(f"L_nokv{t}")
        if t == 48:
            a(f"v_and_b32 v254, 7, v{vL}")
            a(f"v_lshlrev_b32 v254, 2, v254")
            a(f"s_lshl_b32 s{sT0}, s{sTB}, 7")
            a(f"s_add_u32 s{sT0}, s{sT0}, {WS_XI}")
            a(f"buffer_load_dword v253, v254, s[{sWS}:{sWS+3}], s{sT0} offen sc1")
            a(f"v_mov_b32 v254, 128")
            a(f"buffer_load_dword v254, v254, s[{sDBG}:{sDBG+3}], 0 offen sc1")
        fd = t - T0W
        if 0 <= fd < NFR: wo_dma(fd)
        for i in range(13, 16): ex(SA, i)
        ex(SB, 0); ex(SB, 1)
        a(f"{SM} {vr(OA,16)}, {vr(V1+4*p,4)}, {vr(SA+8,8)}, v{IDX}")
        ex(SB, 2); ex(SB, 3); ex(SB, 4)
        if t + 1 < 64:
            a(f"{MF} {vr(SA,16)}, {vr(KB+4*(p^1),4)}, {vr(QA,4)}, {vr(CA,16)}")
        else:
            a("s_nop 0")
        for i in range(5, 8): ex(SB, i)
        fr = t - T0W - 2
        if 0 <= fr < NFR:
            outstanding_after = min(fd, NFR - 1) - fr
            a(f"s_waitcnt vmcnt({outstanding_after})")
            wo_read(fr, WOA + 4 * fr)
        for i in range(8, 10): ex(SB, i)
        a(f"{SM} {vr(OB,16)}, {vr(V0+4*p,4)}, {vr(SB,8)}, v{IDX}")
        for i in range(10, 16): ex(SB, i)
    a("s_nop 1")
    a(f"{SM} {vr(OB,16)}, {vr(V1+4,4)}, {vr(SB+8,8)}, v{IDX}")
    for f in range(NFR, 32): wo_dma(f)
    TT = SA
    a(f"s_waitcnt vmcnt({32 - NFR})")
    a(f"s_nop 0")
    a(f"v_or_b32 v254, s{sXCC}, v254")
    a(f"v_cmp_eq_u32 vcc, v253, v254")
    a(f"s_cmp_eq_u64 vcc, exec")
    a(f"s_cselect_b32 s{sFAST}, 1, 0")
    if "nofast" in EXPT: a(f"s_mov_b32 s{sFAST}, 0")
    a(f"v_sub_f32 v{TT+2}, 1.0, v{vG}")
    a(f"v_cvt_pk_bf16_f32 v{TT+2}, v{TT+2}, v{TT+2}")
    a(f"v_lshlrev_b32 v{TT+2}, 16, v{TT+2}")
    a(f"s_cmp_eq_u32 s{sB}, 0")
    a(f"s_cselect_b64 s[{sLM}:{sLM+1}], -1, 0")
    a(f"v_cndmask_b32 v{TT+2}, v{TT+2}, v{vG}, s[{sLM}:{sLM+1}]")
    stamp(a, 10)
    a(f"v_mul_f32 v{TT}, 0, v{OA}")
    for i in range(1, 8): a(f"v_fma_f32 v{TT}, v{OA+i}, 0, v{TT}")
    for i in range(0, 8): a(f"v_fma_f32 v{TT}, v{OB+i}, 0, v{TT}")
    a(f"v_max_f32 v{TT+1}, v{OA+8}, v{OB+8}")
    a(f"v_add_f32 v{TT}, v{TT}, v{TT+1}")
    a(f"s_mov_b32 s{sT0}, {hex(f2u(2.0**60))}")
    a(f"v_cmp_gt_f32 vcc, s{sT0}, v{TT}")
    a(f"s_cmp_eq_u32 s{sPASS}, 2")
    a("s_cbranch_scc1 L_fin")
    a("s_cmp_eq_u64 vcc, exec")
    a("s_cbranch_scc1 L_fin")
    a(f"s_mov_b32 s{sPASS}, 2")
    a(f"s_mov_b32 s{sKVI}, 0")
    FM0, FM1, FM2, FM3 = KB + 4, KB + 5, KB + 6, KB + 7
    a(f"v_mov_b32 v{FM0}, 0xff800000")
    a(f"v_mov_b32 v{FM2}, 0xff800000")
    a(f"v_mov_b32 v{FM1}, v{vK}")
    a(f"s_mov_b32 s{sT0}, 0")
    a.label("L_maxloop")
    a(f"ds_read_b128 {vr(KB,4)}, v{FM1}")
    a("s_waitcnt lgkmcnt(0)")
    a(f"{MF} {vr(SA,16)}, {vr(KB,4)}, {vr(QA,4)}, 0")
    a(f"{MF} {vr(SB,16)}, {vr(KB,4)}, {vr(QB,4)}, 0")
    a("s_nop 15")
    for i in range(0, 16, 2):
        a(f"v_max3_f32 v{FM0}, v{FM0}, v{SA+i}, v{SA+i+1}")
        a(f"v_max3_f32 v{FM2}, v{FM2}, v{SB+i}, v{SB+i+1}")
    a(f"v_add_u32 v{FM1}, 2048, v{FM1}")
    a(f"s_add_u32 s{sT0}, s{sT0}, 1")
    a(f"s_cmp_lt_u32 s{sT0}, 64")
    a("s_cbranch_scc1 L_maxloop")
    crosshalf_max(FM0, FM1); crosshalf_max(FM2, FM3)
    neg_bcast(CA, FM0); neg_bcast(CB, FM2)
    a("s_waitcnt vmcnt(0)")
    a("s_branch L_restart")
    a.label("L_fin")
    a(f"v_rcp_f32 v{TT}, v{OA+8}")
    a(f"v_rcp_f32 v{TT+1}, v{OB+8}")
    a("s_nop 0")
    a(f"v_mul_f32 v{TT}, v{TT}, v{TT+2}")
    a(f"v_mul_f32 v{TT+1}, v{TT+1}, v{TT+2}")
    for i in range(8):
        a(f"v_mul_f32 v{OA+i}, v{TT}, v{OA+i}")
        a(f"v_mul_f32 v{OB+i}, v{TT+1}, v{OB+i}")
    for j in range(4):
        a(f"v_cvt_pk_bf16_f32 v{SA+4+j}, v{OA+2*j}, v{OA+2*j+1}")
        a(f"v_cvt_pk_bf16_f32 v{SA+8+j}, v{OB+2*j}, v{OB+2*j+1}")
    a(f"s_lshl_b32 s{sT0}, s{sTB}, 1")
    a(f"s_add_u32 s{sT0}, s{sT0}, s{sTT}")
    a(f"s_lshl_b32 s{sT0}, s{sT0}, 6")
    a(f"s_lshl_b32 s{sT1}, s{sGI}, 3")
    a(f"s_add_u32 s{sT0}, s{sT0}, s{sT1}")
    a(f"s_lshl_b32 s{sT1}, s{sC}, 1")
    a(f"s_add_u32 s{sT0}, s{sT0}, s{sT1}")
    a(f"s_lshl_b32 s{sT0}, s{sT0}, 10")
    a(f"s_add_u32 s{sT0}, s{sT0}, {WS_O}")
    vS = SB
    a(f"v_lshlrev_b32 v{vS}, 4, v{vL}")
    a(f"s_mov_b32 s{sSIG}, s{sT0}")
    if "fastflag" not in EXPT:
        a(f"s_cmp_eq_u32 s{sFAST}, 1")
        a("s_cbranch_scc1 L_ost_fast")
    if "slowtest" in EXPT:
        a(f"s_mov_b32 s{sT1}, 200")
        a.label("L_slowtest")
        a("s_sleep 3")
        a(f"s_sub_u32 s{sT1}, s{sT1}, 1")
        a(f"s_cmp_lg_u32 s{sT1}, 0")
        a("s_cbranch_scc1 L_slowtest")
    a(f"buffer_store_dwordx4 {vr(SA+4,4)}, v{vS}, s[{sWS}:{sWS+3}], s{sT0} offen sc1")
    a(f"buffer_store_dwordx4 {vr(SA+8,4)}, v{vS}, s[{sWS}:{sWS+3}], s{sT0} offen offset:1024 sc1")
    a("s_branch L_ost_j")
    a.label("L_ost_fast")
    fl = "nt" if "fastnt" in EXPT else ("sc0" if "fastsc0" in EXPT else "")
    a(f"buffer_store_dwordx4 {vr(SA+4,4)}, v{vS}, s[{sWS}:{sWS+3}], s{sT0} offen {fl}")
    a(f"buffer_store_dwordx4 {vr(SA+8,4)}, v{vS}, s[{sWS}:{sWS+3}], s{sT0} offen offset:1024 {fl}")
    a.label("L_ost_j")
    a("s_waitcnt vmcnt(2)")
    XFR = {}
    for k, f in enumerate(range(NFR, 32)):
        XFR[f] = [KB, KB + 4, V0][k]
        wo_read(f, XFR[f])
    a(f"s_and_b32 s{sT2}, s{sGI}, 1")
    a(f"s_lshl_b32 s{sT3}, s{sTB}, 1")
    a(f"s_add_u32 s{sT3}, s{sT3}, s{sT2}")
    a(f"s_lshl_b32 s{sT4}, s{sTT}, 5")
    a(f"s_lshl_b32 s{sT5}, s{sC}, 1")
    a(f"s_add_u32 s{sT4}, s{sT4}, s{sT5}")
    a(f"s_lshl_b32 s{sM0}, s{sT4}, 10")
    a(f"s_lshl_b32 s{sOFF}, s{sT3}, 16")
    a(f"s_add_u32 s{sOFF}, s{sOFF}, s{sM0}")
    a(f"s_add_u32 s{sOFF}, s{sOFF}, {WS_O}")
    a(f"s_add_u32 s{sM0}, s{sM0}, {L_KV}")
    vB = SB + 6
    a(f"s_lshl_b32 s{sT4}, s{sTT}, 15")
    a(f"s_add_u32 s{sT4}, s{sT4}, {L_KV}")
    a(f"v_add_u32 v{vB}, s{sT4}, v{vS}")
    vO = SB + 7
    a(f"v_and_b32 v{vO}, 31, v{vL}")
    a(f"s_lshl_b32 s{sT3}, s{sT3}, 5")
    a(f"v_add_u32 v{vO}, s{sT3}, v{vO}")
    a(f"v_lshlrev_b32 v{vO}, 10, v{vO}")
    a(f"v_lshrrev_b32 v{SB+3}, 5, v{vL}")
    a(f"v_lshl_add_u32 v{vO}, v{SB+3}, 4, v{vO}")
    a(f"s_lshr_b32 s{sT2}, s{sGI}, 1")
    a(f"s_lshl_b32 s{sT2}, s{sT2}, 8")
    a(f"s_lshl_b32 s{sT3}, s{sC}, 6")
    a(f"s_add_u32 s{sT2}, s{sT2}, s{sT3}")
    a(f"s_lshl_b32 s{sT3}, s{sTT}, 5")
    a(f"s_add_u32 s{sT2}, s{sT2}, s{sT3}")
    a(f"v_add_u32 v{vO}, s{sT2}, v{vO}")
    vXw, vXr = SB + 3, SB + 4
    a(f"s_lshl_b32 s{sT0}, s{sW}, 11")
    a(f"v_add_u32 v{vXw}, s{sT0}, v{vS}")
    a(f"s_xor_b32 s{sT1}, s{sW}, 4")
    a(f"s_lshl_b32 s{sT1}, s{sT1}, 11")
    a(f"v_add_u32 v{vXr}, s{sT1}, v{vS}")
    a("s_waitcnt vmcnt(0)")
    a("s_barrier")
    stamp(a, 11)
    a(f"s_cmp_eq_u32 s{sPOLLER}, 1")
    a("s_cbranch_scc0 L_nosig2")
    a(f"s_lshl_b32 s{sT0}, s{sTB}, 7")
    a(f"s_add_u32 s{sT0}, s{sT0}, {WS_F}")
    a(f"s_lshl_b32 s{sT1}, s{sGI}, 2")
    a(f"v_mov_b32 v{SB+1}, s{sT1}")
    a(f"v_mov_b32 v{SB+2}, s{sNONCE}")
    a(f"v_cmp_eq_u32 vcc, 0, v{vL}")
    a(f"s_and_saveexec_b64 s[{sT4}:{sT5}], vcc")
    a(f"s_cmp_eq_u32 s{sFAST}, 1")
    a("s_cbranch_scc1 L_fst_fast")
    a(f"buffer_store_dword v{SB+2}, v{SB+1}, s[{sWS}:{sWS+3}], s{sT0} offen sc1")
    a("s_branch L_fst_j")
    a.label("L_fst_fast")
    a(f"buffer_store_dword v{SB+2}, v{SB+1}, s[{sWS}:{sWS+3}], s{sT0} offen")
    a.label("L_fst_j")
    a(f"s_mov_b64 exec, s[{sT4}:{sT5}]")
    a(f"v_and_b32 v{SB+1}, 7, v{vL}")
    a(f"v_lshlrev_b32 v{SB+1}, 2, v{SB+1}")
    def ld2(): a(f"buffer_load_dword v{SB+2}, v{SB+1}, s[{sWS}:{sWS+3}], s{sT0} offen sc1")
    def cmp2(): a(f"v_cmp_eq_u32 vcc, s{sNONCE}, v{SB+2}")
    poll("L_poll2", ld2, cmp2)
    a.label("L_nosig2")
    a("s_barrier")
    stamp(a, 14)
    def o_dma(q):
        for i in range(2):
            a(f"s_add_u32 m0, s{sM0}, {(8*q+i)*1024}")
            a(f"s_add_u32 s{sT0}, s{sOFF}, {(8*q+i)*1024}")
            a(f"buffer_load_dwordx4 v{vS}, s[{sWS}:{sWS+3}], s{sT0} offen sc1 lds")
    o_dma(0); o_dma(1)
    ACC3 = OA
    BF = CA
    def afr(s): return XFR[s] if s in XFR else WOA + 4 * s
    for q in range(4):
        a(f"s_waitcnt vmcnt({[2, 4, 2, 0][q]})")
        if q == 0:
            pass
        a("s_barrier")
        if q == 0:
            stamp(a, 15)
        for i in range(8):
            a(f"ds_read_b128 {vr(BF+4*i,4)}, v{vB} offset:{(8*q+i)*1024}")
        if q == 0:
            o_dma(2); o_dma(3)
        if q == opt("rwq", 3) and "rewrite" in EXPT:
            a(f"s_cmp_eq_u32 s{sFAST}, 1")
            a("s_cbranch_scc0 L_norw")
            a(f"buffer_store_dwordx4 {vr(SA+4,4)}, v{vS}, s[{sWS}:{sWS+3}], s{sSIG} offen sc1")
            a(f"buffer_store_dwordx4 {vr(SA+8,4)}, v{vS}, s[{sWS}:{sWS+3}], s{sSIG} offen offset:1024 sc1")
            a.label("L_norw")
        for i in range(8):
            a(f"s_waitcnt lgkmcnt({7-i})")
            a(f"{MF} {vr(ACC3,16)}, {vr(afr(8*q+i),4)}, {vr(BF+4*i,4)}, {vr(ACC3,16) if (q or i) else '0'}")
    stamp(a, 16)
    a("s_nop 15")
    a(f"s_cmp_eq_u32 s{sTT}, 0")
    a("s_cbranch_scc0 L_x_b1")
    a(f"ds_write_b128 v{vXw}, {vr(ACC3+8,4)} offset:{L_XCH}")
    a(f"ds_write_b128 v{vXw}, {vr(ACC3+12,4)} offset:{L_XCH+1024}")
    a("s_waitcnt lgkmcnt(0)")
    a("s_barrier")
    a(f"ds_read_b128 {vr(CB,4)}, v{vXr} offset:{L_XCH}")
    a(f"ds_read_b128 {vr(CB+4,4)}, v{vXr} offset:{L_XCH+1024}")
    a("s_waitcnt lgkmcnt(0)")
    for i in range(0, 8, 2):
        a(f"v_pk_add_f32 {vr(CB+i,2)}, {vr(CB+i,2)}, {vr(ACC3+i,2)}")
    a("s_branch L_x_j")
    a.label("L_x_b1")
    a(f"ds_write_b128 v{vXw}, {vr(ACC3,4)} offset:{L_XCH}")
    a(f"ds_write_b128 v{vXw}, {vr(ACC3+4,4)} offset:{L_XCH+1024}")
    a("s_waitcnt lgkmcnt(0)")
    a("s_barrier")
    a(f"ds_read_b128 {vr(CB,4)}, v{vXr} offset:{L_XCH}")
    a(f"ds_read_b128 {vr(CB+4,4)}, v{vXr} offset:{L_XCH+1024}")
    a("s_waitcnt lgkmcnt(0)")
    for i in range(0, 8, 2):
        a(f"v_pk_add_f32 {vr(CB+i,2)}, {vr(CB+i,2)}, {vr(ACC3+8+i,2)}")
    a.label("L_x_j")
    R = SA + 4
    for i in range(0, 8, 2):
        a(f"v_cvt_pk_bf16_f32 v{R+i//2}, v{CB+i}, v{CB+i+1}")
    a("s_nop 1")
    a(f"v_permlane32_swap_b32 v{R}, v{R+2}")
    a(f"v_permlane32_swap_b32 v{R+1}, v{R+3}")
    a(f"buffer_store_dwordx4 {vr(R,4)}, v{vO}, s[{sOUT}:{sOUT+3}], 0 offen {'sc1' if 'osc1' in EXPT else ''} {'nt' if 'ont' in EXPT else ''} {'sc0 sc1' if 'osys' in EXPT else ''}")
    if PROF:
        a("s_waitcnt vmcnt(0)")
        stamp(a, 17)
        stamp_rt(a, 31)
        stamp_flush(a, vL, SB + 3)
    a.label("L_end")
    a("s_endpgm")
    return a, kdesc(KNAME, 256)

def build(path):
    ref = open("cdna_kernels/" + NAME + ".s.ref").read().split("\n")
    hdr = [l for l in ref if l.startswith(";") and "@launch" not in l and "Override launch" not in l and "grid=ceil" not in l][:16]
    k, d = gen_fused()
    errs = check(k.lines, "fused")
    for e in errs[:10]: print("HAZARD", e)
    out = "\n".join(hdr) + "\n"
    out += "; @launch grid=(256,1,1) block=(512,1,1) lds=163840\n"
    out += '.amdgcn_target "amdgcn-amd-amdhsa--gfx950"\n.text\n'
    out += k.text()
    out += '.section .rodata,"a"\n.p2align 6\n' + d
    open(path, "w").write(out)
    return len(errs)

if __name__ == "__main__":
    for arg in list(sys.argv):
        if arg.startswith("--x="):
            EXPT.update(arg[4:].split(",")); sys.argv.remove(arg)
    if "--prof" in sys.argv:
        PROF = True; sys.argv.remove("--prof")
    p = sys.argv[1] if len(sys.argv) > 1 else "f4.s"
    n = build(p)
    print("written", p, "hazards:", n)
```

```python
import sys, math, struct
from asmlib import *

NAME = "gated_mix__grouped_kv_mqa__grouped_kv_mqa__prompt"
KNAME = NAME + "_kernel"
WS_KV = 0
WS_G = 256 << 10
WS_F = 512 << 10
WS_KF = WS_F + 8192
WS_XI = WS_KF + 16384
WS_O = 1 << 20
WS_SIZE = 16 << 20
WS_PROF = 13 << 20
CQ = 0.25 * math.log2(math.e)
def f2u(f): return struct.unpack("<I", struct.pack("<f", f))[0]
MF = "v_mfma_f32_32x32x16_bf16"
SM = "v_smfmac_f32_32x32x32_bf16"
MF16 = "v_mfma_f32_16x16x32_bf16"
PROF = False
EXPT = set()
def opt(name, default):
    for x in EXPT:
        if x.startswith(name + "="): return int(x[len(name) + 1:])
    return default

L_PART = 16 << 10
L_GW = L_PART
L_WKV = 32 << 10
L_X = 48 << 10
L_KV = 32 << 10
L_SLOT = [0, 112 << 10, 128 << 10, 144 << 10, L_WKV, L_PART, 0, 112 << 10]
L_WOST = 0
L_XCH = 0
L_CNT3 = 7 * 4096 + 3072
L_CNT = L_PART + 4096 + 3072

sX, sWQ, sWKV, sWS, sDBG, sWO, sOUT, sGW = 32, 36, 40, 44, 48, 52, 56, 60
sW, sB, sHG, sTB, sGI, sTT, sC, sTTKV = 64, 65, 66, 67, 68, 69, 70, 71
sVM = 72
sPASS, sROLE, sTYPE, sNONCE = 74, 75, 76, 77
sT0, sT1, sT2, sT3, sT4, sT5 = 78, 79, 80, 81, 82, 83
sM0, sOFF = 84, 85
sTBOFF = 86
sSIG = 87
sPOLLER, sFOK = 92, 93
sPA, sPB = 94, 95
sKVI = 96
sXCC, sFAST, sXID = 97, 98, 99
sLM = 88

def srd(a, d, base, nbytes):
    a(f"s_mov_b32 s{d}, s{base}")
    a(f"s_and_b32 s{d+1}, s{base+1}, 0xffff")
    a(f"s_mov_b32 s{d+2}, {nbytes}")
    a(f"s_mov_b32 s{d+3}, 0x20000")

def kdesc(name, vgpr, sgpr=100, accum=None):
    if accum is None: accum = (vgpr + 3) // 4 * 4
    return f""".amdhsa_kernel {name}
  .amdhsa_next_free_vgpr {vgpr}
  .amdhsa_next_free_sgpr {sgpr}
  .amdhsa_accum_offset {accum}
  .amdhsa_group_segment_fixed_size 0
  .amdhsa_kernarg_size 112
  .amdhsa_user_sgpr_count 2
  .amdhsa_user_sgpr_kernarg_segment_ptr 1
  .amdhsa_system_sgpr_workgroup_id_x 1
  .amdhsa_float_denorm_mode_32 3
.end_amdhsa_kernel
"""
def header(a, name):
    a.raw(f".globl {name}"); a.raw(".p2align 8"); a.raw(f".type {name},@function"); a.label(name)

VST = 0
def stamp(a, idx):
    if PROF:
        a("s_memtime s[90:91]")
        a("s_waitcnt lgkmcnt(0)")
        a(f"v_writelane_b32 v{VST}, s90, {idx}")
def stamp_rt(a, idx):
    if PROF:
        a("s_memrealtime s[90:91]")
        a("s_waitcnt lgkmcnt(0)")
        a(f"v_writelane_b32 v{VST}, s90, {idx}")
def stamp_flush(a, vL, vtmp0):
    if not PROF: return
    a(f"s_lshl_b32 s{sT0}, s2, 3")
    a(f"s_add_u32 s{sT0}, s{sT0}, s{sW}")
    a(f"s_lshl_b32 s{sT0}, s{sT0}, 7")
    a(f"s_add_u32 s{sT0}, s{sT0}, {WS_PROF}")
    a(f"v_lshlrev_b32 v{vtmp0}, 2, v{vL}")
    a(f"v_cmp_gt_u32 vcc, 32, v{vL}")
    a(f"s_and_saveexec_b64 s[{sT4}:{sT5}], vcc")
    a(f"buffer_store_dword v{VST}, v{vtmp0}, s[{sWS}:{sWS+3}], s{sT0} offen")
    a(f"s_mov_b64 exec, s[{sT4}:{sT5}]")
    a("s_waitcnt vmcnt(0)")

POLL_LIMIT = 0x2000

def gen_fused():
    a = Asm()
    header(a, KNAME)
    vL, vK, vV = 1, 2, 3
    QA, QB = 4, 8
    CA, CB = 12, 28
    SA, SB = 44, 60
    OA, OB = 76, 92
    KB = 108; V0 = 116; V1 = 124
    vK2, vV2, vWO, vWOr = 132, 133, 134, 135
    IDX = 0; NFR = 29; vG = 252
    WOA = 136
    if PROF:
        IDX = 255
    vT0, vT1, vT2, vT3 = 12, 13, 14, 15
    vH = 16; vN15 = 17; vXb = 18; vXt = 19
    vXa = 20
    vAa = 28
    vWq = 34; vE = 35; vGp = 36; vPw = 37
    ACC = 44
    EAC = 60
    AF = 76
    XF = 92
    WF, XFF = 136, 168
    vP0, vP1, vP2, vF = 240, 241, 242, 244
    RD = 200

    a("s_cmp_ge_u32 s2, 256")
    a("s_cbranch_scc1 L_end")
    a("s_load_dwordx8 s[4:11], s[0:1], 0")
    a("s_load_dwordx2 s[12:13], s[0:1], 32")
    a("s_load_dwordx8 s[16:23], s[0:1], 48")
    a("s_load_dwordx8 s[24:31], s[0:1], 80")
    a(f"v_lshrrev_b32 v{vT0}, 6, v0")
    a(f"v_and_b32 v{vL}, 63, v0")
    a(f"v_readfirstlane_b32 s{sW}, v{vT0}")
    if "cpf" in EXPT:
        a("s_lshr_b32 s90, s2, 4")
        a(f"s_xor_b32 s91, s{sW}, 7")
        a("s_or_b32 s90, s90, s91")
        a("s_cmp_eq_u32 s90, 0")
        a("s_cbranch_scc0 L_nocpf")
        a("s_getpc_b64 s[90:91]")
        a.label("L_cpf")
        a(f"v_lshlrev_b32 v{vT1}, 7, v{vL}")
        a(f"s_mov_b32 s{sT0}, L_end-L_cpf")
        for k in range(4):
            a(f"v_min_u32 v{vT2}, s{sT0}, v{vT1}")
            a(f"global_load_dword v250, v{vT2}, s[90:91]")
            a(f"v_add_u32 v{vT1}, 8192, v{vT1}")
        a.label("L_nocpf")
    if PROF:
        stamp(a, 0); stamp_rt(a, 30)
    a(f"s_lshr_b32 s{sT0}, s2, 3")
    a(f"s_and_b32 s{sGI}, s{sT0}, 7")
    a(f"s_lshr_b32 s{sT0}, s{sT0}, 3")
    a(f"s_and_b32 s{sT1}, s2, 7")
    a(f"s_lshl_b32 s{sT1}, s{sT1}, 2")
    a(f"s_add_u32 s{sTB}, s{sT1}, s{sT0}")
    a(f"s_lshr_b32 s{sB}, s{sGI}, 2")
    a(f"s_and_b32 s{sHG}, s{sGI}, 3")
    a(f"s_lshr_b32 s{sTYPE}, s{sHG}, 1")
    a(f"s_and_b32 s{sTTKV}, s{sHG}, 1")
    a(f"s_lshr_b32 s{sTT}, s{sW}, 2")
    a(f"s_and_b32 s{sC}, s{sW}, 3")
    a(f"s_cmp_eq_u32 s{sTT}, s{sTTKV}")
    a(f"s_cselect_b32 s{sROLE}, 1, 0")
    a(f"s_lshl_b32 s{sTBOFF}, s{sTB}, 16")
    a(f"s_lshl_b32 s{sT0}, s{sTTKV}, 2")
    a(f"s_add_u32 s{sT0}, s{sT0}, 3")
    a(f"s_cmp_eq_u32 s{sW}, s{sT0}")
    a(f"s_cselect_b32 s{sPOLLER}, 1, 0")
    a(f"s_mov_b32 s{sFOK}, 0")
    a(f"s_getreg_b32 s{sXCC}, hwreg(HW_REG_XCC_ID, 0, 4)")
    a(f"s_mov_b32 s{sXID}, 0")
    a(f"s_mov_b32 s{sFAST}, 0")
    a(f"s_mov_b32 s{sSIG}, 0")
    a(f"s_mov_b32 s{sVM}, 0x0000ffff")
    a(f"s_mov_b32 s{sVM+1}, 0x0000ffff")
    a(f"s_mov_b32 s{sNONCE}, 0")
    a(f"v_lshlrev_b32 v{vK}, 4, v{vL}")
    a(f"v_lshrrev_b32 v{vH}, 5, v{vL}")
    a(f"v_mov_b32 v{vP0}, 0")
    a(f"v_mov_b32 v{vP2}, 0")
    a(f"s_mov_b32 s{sPA}, 0")
    a(f"s_mov_b32 s{sPB}, 0")
    a(f"v_and_b32 v{vT0}, 31, v{vL}")
    a(f"s_lshl_b32 s{sT0}, s{sTT}, 5")
    a(f"v_add_u32 v{vXb}, s{sT0}, v{vT0}")
    a(f"v_lshlrev_b32 v{vXb}, 10, v{vXb}")
    a(f"v_add_u32 v{vXb}, {L_X}, v{vXb}")
    a(f"v_and_b32 v{vN15}, 15, v{vL}")
    a(f"v_xor_b32 v{vXt}, v{vH}, v{vN15}")
    a(f"v_lshlrev_b32 v{vXt}, 4, v{vXt}")
    a("s_waitcnt lgkmcnt(0)")
    a(f"s_cmp_eq_u32 s{sB}, 0")
    a("s_cselect_b32 s6, s6, s16")
    a("s_cselect_b32 s7, s7, s17")
    a("s_cselect_b32 s8, s8, s18")
    a("s_cselect_b32 s9, s9, s19")
    a("s_cselect_b32 s10, s10, s20")
    a("s_cselect_b32 s11, s11, s21")
    a(f"s_cmp_eq_u32 s{sTYPE}, 0")
    a("s_cselect_b32 s8, s8, s10")
    a("s_cselect_b32 s9, s9, s11")
    srd(a, sX, 4, 2048 * 1024)
    srd(a, sWKV, 8, 16384)
    srd(a, sDBG, 28, 256)
    a(f"s_xor_b32 s{sT0}, s{sW}, 3")
    a(f"s_or_b32 s{sT0}, s2, s{sT0}")
    a(f"s_cmp_eq_u32 s{sT0}, 0")
    a("s_cbranch_scc0 L_nononce")
    a("s_memrealtime s[90:91]")
    a("s_waitcnt lgkmcnt(0)")
    a("s_lshl_b32 s90, s90, 4")
    a("s_or_b32 s90, s90, 0x10")
    a(f"v_mov_b32 v{vT1}, s90")
    a(f"v_mov_b32 v{vT3}, 128")
    a(f"buffer_store_dword v{vT1}, v{vT3}, s[{sDBG}:{sDBG+3}], 0 offen sc1")
    a.label("L_nononce")
    def xrow_dma(rowexpr, vt):
        rowexpr()
        a(f"s_and_b32 s{sT1}, s{sT0}, 15")
        a(f"v_xor_b32 v{vt}, s{sT1}, v{vL}")
        a(f"v_lshlrev_b32 v{vt}, 4, v{vt}")
        a(f"s_lshl_b32 s{sT1}, s{sT0}, 10")
        a(f"s_add_u32 m0, s{sT1}, {L_X}")
        a(f"s_add_u32 s{sT1}, s{sT1}, s{sTBOFF}")
        a(f"buffer_load_dwordx4 v{vt}, s[{sX}:{sX+3}], s{sT1} offen lds")
    a(f"s_lshl_b32 s{sT2}, s{sTTKV}, 5")
    a(f"s_add_u32 s{sT2}, s{sT2}, s{sW}")
    for i in range(4):
        xrow_dma(lambda: a(f"s_add_u32 s{sT0}, s{sT2}, {8*i}"), vT1)
    a(f"s_lshl_b32 s{sT1}, s{sW}, 11")
    a(f"s_add_u32 m0, s{sT1}, {L_WKV}")
    a(f"s_add_u32 s{sT3}, s{sT1}, 1024")
    a(f"buffer_load_dwordx4 v{vK}, s[{sWKV}:{sWKV+3}], s{sT1} offen lds")
    a(f"s_add_u32 m0, s{sT3}, {L_WKV}")
    srd(a, sGW, 24, 1024)
    a(f"buffer_load_dwordx4 v{vK}, s[{sWKV}:{sWKV+3}], s{sT3} offen lds")
    stamp(a, 1)
    srd(a, sWS, 30, WS_SIZE)
    def qaddr_setup():
        for sp in range(8):
            a(f"s_mov_b32 s{sT0}, {32*sp}")
            a(f"v_xad_u32 v{vXa+sp}, v{vXt}, s{sT0}, v{vXb}")
        a(f"v_lshrrev_b32 v{vT0}, 4, v{vL}")
        a(f"v_lshrrev_b32 v{vT3}, 2, v{vN15}")
        a(f"v_lshl_add_u32 v{vAa}, v{vH}, 3, v{vT3}")
        a(f"v_lshlrev_b32 v{vAa}, 8, v{vAa}")
        a(f"v_and_b32 v{vAa+1}, 1, v{vT0}")
        a(f"v_lshlrev_b32 v{vAa+1}, 1, v{vAa+1}")
        a(f"v_bfe_u32 v{vAa+2}, v{vN15}, 1, 1")
        a(f"v_add_u32 v{vAa+1}, v{vAa+1}, v{vAa+2}")
        a(f"s_lshl_b32 s{sT1}, s{sC}, 2")
        a(f"v_add_u32 v{vAa+1}, s{sT1}, v{vAa+1}")
        a(f"v_lshlrev_b32 v{vT3}, 2, v{vT3}")
        a(f"v_xor_b32 v{vAa+1}, v{vAa+1}, v{vT3}")
        a(f"v_lshl_add_u32 v{vAa}, v{vAa+1}, 4, v{vAa}")
        a(f"v_and_b32 v{vAa+2}, 1, v{vN15}")
        a(f"v_lshl_add_u32 v{vAa}, v{vAa+2}, 3, v{vAa}")
        for k in range(5, 0, -1):
            a(f"v_add_u32 v{vAa+k}, {L_SLOT[k]}, v{vAa}")
    def late_srds():
        a(f"s_cmp_eq_u32 s{sTT}, 0")
        a("s_cselect_b32 s12, s12, s22")
        a("s_cselect_b32 s13, s13, s23")
        srd(a, sOUT, 26, 2048 * 1024)
        srd(a, sWO, 12, 512 * 1024)
    a(f"s_cmp_eq_u32 s{sROLE}, 1")
    a("s_cbranch_scc0 L_wrole")
    if "kvprio" in EXPT: a("s_setprio 3")
    a(f"s_mov_b32 m0, {L_GW}")
    a(f"v_lshrrev_b32 v{vT0}, 4, v{vL}")
    a(f"buffer_load_dwordx4 v{vK}, s[{sGW}:{sGW+3}], 0 offen lds")
    vXk = vXa
    WF16, XF16 = 128, 192
    KAC = EAC
    a(f"s_and_b32 s{sT2}, s{sC}, 1")
    a(f"s_lshl_b32 s{sT0}, s{sTTKV}, 5")
    a(f"s_lshl_b32 s{sT1}, s{sT2}, 4")
    a(f"s_add_u32 s{sT0}, s{sT0}, s{sT1}")
    a(f"v_add_u32 v{vT2}, s{sT0}, v{vN15}")
    a(f"v_lshlrev_b32 v{vT2}, 10, v{vT2}")
    a(f"v_add_u32 v{vT2}, {L_X}, v{vT2}")
    a(f"v_xor_b32 v{vT3}, v{vT0}, v{vN15}")
    a(f"v_lshlrev_b32 v{vT3}, 4, v{vT3}")
    for sp in range(4):
        a(f"s_mov_b32 s{sT0}, {64*sp}")
        a(f"v_xad_u32 v{vXk+sp}, v{vT3}, s{sT0}, v{vT2}")
    a(f"v_lshrrev_b32 v{vE}, 2, v{vN15}")
    a(f"v_lshl_add_u32 v{vE}, v{vT0}, 3, v{vE}")
    a(f"v_lshlrev_b32 v{vE}, 5, v{vE}")
    a(f"v_and_b32 v{vT3}, 3, v{vN15}")
    a(f"v_lshl_add_u32 v{vE}, v{vT3}, 3, v{vE}")
    a(f"v_add_u32 v{vE}, {L_WKV}, v{vE}")
    a(f"v_lshlrev_b32 v{vGp}, 4, v{vT0}")
    a(f"v_add_u32 v{vGp}, {L_GW}, v{vGp}")
    a(f"v_and_b32 v{vT2}, 1, v{vT0}")
    a(f"v_lshrrev_b32 v{vT3}, 1, v{vT0}")
    a(f"s_cmp_eq_u32 s{sTYPE}, 0")
    a("s_cbranch_scc0 L_sa_v")
    a(f"v_and_b32 v{vPw}, 3, v{vN15}")
    a(f"v_and_b32 v{vT1}, 4, v{vN15}")
    a(f"v_lshl_add_u32 v{vPw}, v{vT1}, 1, v{vPw}")
    a(f"v_and_b32 v{vT1}, 8, v{vN15}")
    a(f"v_lshrrev_b32 v{vT1}, 1, v{vT1}")
    a(f"v_add_u32 v{vPw}, v{vPw}, v{vT1}")
    a(f"v_lshl_add_u32 v{vPw}, v{vT2}, 5, v{vPw}")
    a(f"s_lshl_b32 s{sT1}, s{sT2}, 4")
    a(f"v_add_u32 v{vPw}, s{sT1}, v{vPw}")
    a(f"v_lshlrev_b32 v{vPw}, 4, v{vPw}")
    a("s_branch L_sa_j")
    a.label("L_sa_v")
    a(f"v_lshl_add_u32 v{vPw}, v{vT2}, 4, v{vN15}")
    a(f"v_lshlrev_b32 v{vPw}, 4, v{vPw}")
    a(f"s_lshl_b32 s{sT1}, s{sT2}, 9")
    a(f"s_add_u32 s{sT1}, s{sT1}, 1024")
    a(f"v_add_u32 v{vPw}, s{sT1}, v{vPw}")
    a.label("L_sa_j")
    a(f"v_lshl_add_u32 v{vPw}, v{vT3}, 3, v{vPw}")
    a(f"s_lshl_b32 s{sT0}, s{sTB}, 1")
    a(f"s_add_u32 s{sT0}, s{sT0}, s{sTTKV}")
    a(f"s_lshl_b32 s{sOFF}, s{sT0}, 11")
    a(f"s_lshl_b32 s{sT3}, s{sB}, 17")
    a(f"s_add_u32 s{sOFF}, s{sOFF}, s{sT3}")
    if WS_KV: a(f"s_add_u32 s{sOFF}, s{sOFF}, {WS_KV}")
    a(f"s_lshl_b32 s{sM0}, s{sT0}, 7")
    a(f"s_add_u32 s{sM0}, s{sM0}, {WS_G}")
    vNon = 38
    a(f"v_mov_b32 v{vT3}, 128")
    a(f"buffer_load_dword v{vNon}, v{vT3}, s[{sDBG}:{sDBG+3}], 0 offen sc1")
    stamp(a, 2)
    a("s_waitcnt vmcnt(0)")
    a("s_barrier")
    stamp(a, 3)
    a(f"s_cmp_ge_u32 s{sC}, 2")
    a("s_cbranch_scc1 L_kv_gate")
    def kvreads(sx):
        a(f"ds_read_b64_tr_b16 {vr(WF16+4*sx,2)}, v{vE} offset:{sx*1024}")
        a(f"ds_read_b64_tr_b16 {vr(WF16+4*sx+2,2)}, v{vE} offset:{sx*1024+128}")
        a(f"ds_read_b128 {vr(XF16+4*sx,4)}, v{vXk+(sx%4)} offset:{(sx//4)*256}")
    D = 5
    for kind in ("k", "v"):
        if kind == "k":
            a(f"s_cmp_eq_u32 s{sTYPE}, 0")
            a("s_cbranch_scc0 L_kv_v")
        else:
            a.label("L_kv_v")
        for sx in range(D): kvreads(sx)
        for sx in range(16):
            rem = min(D - 1, 15 - sx)
            a(f"s_waitcnt lgkmcnt({3*rem})")
            c = vr(KAC, 4) if sx else "0"
            if kind == "k":
                a(f"{MF16} {vr(KAC,4)}, {vr(WF16+4*sx,4)}, {vr(XF16+4*sx,4)}, {c}")
            else:
                a(f"{MF16} {vr(KAC,4)}, {vr(XF16+4*sx,4)}, {vr(WF16+4*sx,4)}, {c}")
            if sx + D < 16: kvreads(sx + D)
        if kind == "k": a("s_branch L_kv_st")
    a.label("L_kv_st")
    a("s_nop 7")
    a(f"v_cvt_pk_bf16_f32 v{KAC+4}, v{KAC}, v{KAC+1}")
    a(f"v_cvt_pk_bf16_f32 v{KAC+5}, v{KAC+2}, v{KAC+3}")
    a(f"buffer_store_dwordx2 {vr(KAC+4,2)}, v{vPw}, s[{sWS}:{sWS+3}], s{sOFF} offen sc1")
    stamp(a, 12)
    a("s_branch L_kv_sig")
    a.label("L_kv_gate")
    a(f"s_or_b32 s{sT0}, s{sTYPE}, s{sB}")
    a(f"s_xor_b32 s{sT1}, s{sC}, 2")
    a(f"s_or_b32 s{sT0}, s{sT0}, s{sT1}")
    a(f"s_cmp_eq_u32 s{sT0}, 0")
    a("s_cbranch_scc0 L_kv_idle")
    for sp in range(4):
        a(f"v_add_u32 v{vXk+4+sp}, 16384, v{vXk+sp}")
    def greads(sx):
        a(f"ds_read_b128 {vr(WF16+4*(sx%8),4)}, v{vGp} offset:{sx*64}")
        a(f"ds_read_b128 {vr(XF16+8*(sx%8),4)}, v{vXk+(sx%4)} offset:{(sx//4)*256}")
        a(f"ds_read_b128 {vr(XF16+8*(sx%8)+4,4)}, v{vXk+4+(sx%4)} offset:{(sx//4)*256}")
    for sx in range(D): greads(sx)
    for sx in range(16):
        rem = min(D - 1, 15 - sx)
        a(f"s_waitcnt lgkmcnt({3*rem})")
        a(f"{MF16} {vr(KAC,4)}, {vr(WF16+4*(sx%8),4)}, {vr(XF16+8*(sx%8),4)}, {vr(KAC,4) if sx else '0'}")
        a(f"{MF16} {vr(KAC+4,4)}, {vr(WF16+4*(sx%8),4)}, {vr(XF16+8*(sx%8)+4,4)}, {vr(KAC+4,4) if sx else '0'}")
        if sx + D < 16: greads(sx + D)
    a(f"v_and_b32 v{vT1}, 16, v{vL}")
    a(f"v_cmp_eq_u32 vcc, 0, v{vT1}")
    a("s_nop 6")
    a(f"v_cndmask_b32 v{KAC+8}, v{KAC+4}, v{KAC}, vcc")
    a(f"v_cvt_pk_bf16_f32 v{KAC+8}, v{KAC+8}, v{KAC+8}")
    a(f"v_lshlrev_b32 v{KAC+8}, 16, v{KAC+8}")
    a(f"s_mov_b32 s{sT2}, {hex(f2u(-math.log2(math.e)))}")
    a(f"v_mul_f32 v{KAC+8}, s{sT2}, v{KAC+8}")
    a(f"v_exp_f32 v{KAC+8}, v{KAC+8}")
    a("s_nop 0")
    a(f"v_add_f32 v{KAC+8}, 1.0, v{KAC+8}")
    a(f"v_rcp_f32 v{KAC+8}, v{KAC+8}")
    a("s_nop 0")
    a(f"v_cvt_pk_bf16_f32 v{KAC+8}, v{KAC+8}, v{KAC+8}")
    a(f"v_lshlrev_b32 v{KAC+8}, 16, v{KAC+8}")
    a(f"v_lshlrev_b32 v{KAC+9}, 2, v{vL}")
    a(f"v_cmp_gt_u32 vcc, 32, v{vL}")
    a(f"s_and_saveexec_b64 s[{sT4}:{sT5}], vcc")
    a(f"buffer_store_dword v{KAC+8}, v{KAC+9}, s[{sWS}:{sWS+3}], s{sM0} offen sc1")
    a(f"s_mov_b64 exec, s[{sT4}:{sT5}]")
    a.label("L_kv_sig")
    qaddr_setup()
    late_srds()
    a(f"v_lshl_add_u32 v{vV}, v{vH}, 4, v{vN15}")
    a(f"v_lshlrev_b32 v{vV}, 4, v{vV}")
    a(f"s_mov_b32 s{sSIG}, 1")
    a("s_branch L_sigcode")
    a.label("L_kv_idle")
    if "notlb" not in EXPT:
        a(f"s_lshl_b32 s{sT0}, s{sTB}, 16")
        a(f"v_mov_b32 v{vP1}, s{sT0}")
        a(f"global_load_dword v{vF}, v{vP1}, s[26:27]")
        a(f"s_lshl_b32 s{sT0}, s{sTB}, 17")
        a(f"s_add_u32 s{sT0}, s{sT0}, {WS_O}")
        a(f"v_mov_b32 v{vP1}, s{sT0}")
        a(f"global_load_dword v{vF+1}, v{vP1}, s[30:31]")
        a(f"s_lshr_b32 s{sT0}, s{sGI}, 1")
        a(f"s_lshl_b32 s{sT0}, s{sT0}, 8")
        a(f"v_mov_b32 v{vP1}, s{sT0}")
        a(f"global_load_dword v{vF+2}, v{vP1}, s[12:13]")
        a(f"global_load_dword v{vF+3}, v{vP1}, s[22:23]")
    qaddr_setup()
    late_srds()
    a(f"v_lshl_add_u32 v{vV}, v{vH}, 4, v{vN15}")
    a(f"v_lshlrev_b32 v{vV}, 4, v{vV}")
    a(f"v_lshrrev_b32 v{vP0}, 1, v{vL}")
    a(f"v_lshlrev_b32 v{vP0}, 7, v{vP0}")
    a(f"v_and_b32 v{vP2}, 1, v{vL}")
    a(f"v_lshl_add_u32 v{vP0}, v{vP2}, 4, v{vP0}")
    a(f"v_lshlrev_b32 v{vP2}, 2, v{vP2}")
    a(f"s_lshl_b32 s{sPA}, s{sB}, 12")
    a(f"s_add_u32 s{sPA}, s{sPA}, {WS_KF}")
    a(f"s_lshl_b32 s{sPB}, s{sTB}, 7")
    a(f"s_add_u32 s{sPB}, s{sPB}, {WS_KF + 8192}")
    a(f"v_readfirstlane_b32 s{sNONCE}, v{vNon}")
    a("s_branch L_b1")
    def signal_kv():
        a(f"s_cmp_eq_u32 s{sSIG}, 1")
        a("s_cbranch_scc0 L_nosig")
        a(f"v_readfirstlane_b32 s{sNONCE}, v{vNon}")
        a(f"s_mov_b32 s{sT1}, 0")
        a.label("L_nwait")
        a(f"s_cmp_lg_u32 s{sNONCE}, 0")
        a("s_cbranch_scc1 L_nok")
        a(f"v_mov_b32 v{vT3}, 128")
        a(f"buffer_load_dword v{vNon}, v{vT3}, s[{sDBG}:{sDBG+3}], 0 offen sc1")
        a("s_waitcnt vmcnt(0)")
        a(f"v_readfirstlane_b32 s{sNONCE}, v{vNon}")
        a(f"s_add_u32 s{sT1}, s{sT1}, 1")
        a(f"s_cmp_lt_u32 s{sT1}, {POLL_LIMIT}")
        a("s_cbranch_scc1 L_nwait")
        a.label("L_nok")
        a(f"s_cmp_eq_u32 s{sC}, 2")
        a("s_cbranch_scc1 L_fa_gate")
        a(f"s_lshl_b32 s{sT0}, s{sB}, 5")
        a(f"s_add_u32 s{sT0}, s{sT0}, s{sTB}")
        a(f"s_lshl_b32 s{sT0}, s{sT0}, 7")
        a(f"s_lshl_b32 s{sT1}, s{sTTKV}, 2")
        a(f"s_lshl_b32 s{sT2}, s{sTYPE}, 1")
        a(f"s_add_u32 s{sT1}, s{sT1}, s{sT2}")
        a(f"s_add_u32 s{sT1}, s{sT1}, s{sC}")
        a(f"s_lshl_b32 s{sT1}, s{sT1}, 2")
        a(f"s_add_u32 s{sT0}, s{sT0}, s{sT1}")
        a(f"s_add_u32 s{sT0}, s{sT0}, {WS_KF}")
        a("s_branch L_fa_j")
        a.label("L_fa_gate")
        a(f"s_lshl_b32 s{sT0}, s{sTB}, 7")
        a(f"s_lshl_b32 s{sT1}, s{sTTKV}, 2")
        a(f"s_add_u32 s{sT0}, s{sT0}, s{sT1}")
        a(f"s_add_u32 s{sT0}, s{sT0}, {WS_KF + 8192}")
        a.label("L_fa_j")
        a(f"v_mov_b32 v{RD}, 0")
        a(f"v_mov_b32 v{RD+1}, s{sNONCE}")
        a("s_waitcnt vmcnt(0)")
        a(f"v_cmp_eq_u32 vcc, 0, v{vL}")
        a(f"s_and_saveexec_b64 s[{sT4}:{sT5}], vcc")
        a(f"buffer_store_dword v{RD+1}, v{RD}, s[{sWS}:{sWS+3}], s{sT0} offen sc1")
        a(f"s_mov_b64 exec, s[{sT4}:{sT5}]")
        stamp(a, 13)
        a.label("L_nosig")
    a.label("L_sigcode")
    signal_kv()
    a("s_branch L_b1")
    a.label("L_wrole")
    a(f"v_lshrrev_b32 v{vT0}, 4, v{vL}")
    a(f"v_lshlrev_b32 v{vWq}, 2, v{vT0}")
    a(f"v_xor_b32 v{vWq}, v{vWq}, v{vN15}")
    a(f"v_lshlrev_b32 v{vWq}, 4, v{vWq}")
    a(f"v_lshl_add_u32 v{vWq}, v{vT0}, 10, v{vWq}")
    a(f"s_lshl_b32 s{sT1}, s{sHG}, 8")
    a(f"v_add_u32 v{vWq}, s{sT1}, v{vWq}")
    srd(a, sWQ, 6, 512 * 1024)
    def wq_chunk(c):
        slot = L_SLOT[c]
        for i in range(4):
            a(f"s_lshl_b32 s{sT1}, s{sC}, 12")
            a(f"s_add_u32 m0, s{sT1}, {slot + i*1024}")
            a(f"s_lshl_b32 s{sT1}, s{sC}, 14")
            a(f"s_add_u32 s{sT1}, s{sT1}, {(64*c + 4*i)*1024}")
            a(f"buffer_load_dwordx4 v{vWq}, s[{sWQ}:{sWQ+3}], s{sT1} offen lds")
    def other_rows():
        a(f"s_xor_b32 s{sT2}, s{sTTKV}, 1")
        a(f"s_lshl_b32 s{sT2}, s{sT2}, 5")
        a(f"s_add_u32 s{sT2}, s{sT2}, s{sC}")
        for i in range(8):
            xrow_dma(lambda: a(f"s_add_u32 s{sT0}, s{sT2}, {4*i}"), vT1)
    EARLY = opt("early", 0)
    nbefore = 0
    if EARLY >= 1: other_rows(); nbefore += 8
    if EARLY >= 2: wq_chunk(0); nbefore += 4
    qaddr_setup()
    late_srds()
    a(f"v_lshl_add_u32 v{vV}, v{vH}, 4, v{vN15}")
    a(f"v_lshlrev_b32 v{vV}, 4, v{vV}")
    stamp(a, 2)
    a(f"s_waitcnt vmcnt({nbefore})")
    a("s_barrier")
    stamp(a, 3)
    if "wdelay" in EXPT:
        a(f"v_mov_b32 v{vT0}, {L_CNT}")
        a.label("L_wspin")
        a(f"ds_read_b32 v{vT1}, v{vT0}")
        a("s_waitcnt lgkmcnt(0)")
        a(f"v_readfirstlane_b32 s{sT0}, v{vT1}")
        a(f"s_cmp_ge_u32 s{sT0}, {opt('wd', 4)}")
        a("s_cbranch_scc0 L_wspin")
    if EARLY < 1: other_rows()
    if EARLY < 2: wq_chunk(0)
    for c in range(1, 4): wq_chunk(c)
    stamp(a, 4)
    a("s_waitcnt vmcnt(8)")
    a.label("L_b1")
    if "kvprio" in EXPT: a("s_setprio 0")
    a("s_barrier")
    stamp(a, 5)
    def qreads(s):
        c, sp4 = s // 4, s % 4
        buf = s % 4
        va = vAa + [0, 1, 2, 3, 4, 5, 0, 1][c]
        a(f"ds_read_b64_tr_b16 {vr(AF+4*buf,2)}, v{va} offset:{sp4*4096}")
        a(f"ds_read_b64_tr_b16 {vr(AF+4*buf+2,2)}, v{va} offset:{sp4*4096+1024}")
        a(f"ds_read_b128 {vr(XF+4*buf,4)}, v{vXa + (s % 8)} offset:{(s//8)*256}")
    def qmf(s):
        buf = s % 4
        a(f"{MF} {vr(ACC,16)}, {vr(AF+4*buf,4)}, {vr(XF+4*buf,4)}, {vr(ACC,16) if s else '0'}")
    def flag_loads():
        a(f"buffer_load_dwordx4 {vr(vF,4)}, v{vP0}, s[{sWS}:{sWS+3}], s{sPA} offen sc1")
        a(f"buffer_load_dword v{vF+4}, v{vP2}, s[{sWS}:{sWS+3}], s{sPB} offen sc1")
    def flag_cmp():
        a(f"v_cmp_eq_u32 vcc, s{sNONCE}, v{vF}")
        for k in range(1, 5):
            a(f"v_cmp_eq_u32 s[{sT2}:{sT3}], s{sNONCE}, v{vF+k}")
            a(f"s_and_b64 vcc, vcc, s[{sT2}:{sT3}]")
    def first_kv():
        a(f"s_lshl_b32 s{sOFF}, s{sB}, 17")
        if WS_KV: a(f"s_add_u32 s{sOFF}, s{sOFF}, {WS_KV}")
        a(f"s_mov_b32 s{sM0}, {L_KV}")
        for i in range(8):
            a(f"s_mov_b32 m0, s{sM0}")
            a(f"s_add_u32 s{sM0}, s{sM0}, 1024")
            a(f"buffer_load_dwordx4 v{vK}, s[{sWS}:{sWS+3}], s{sOFF} offen sc1 lds")
            a(f"s_add_u32 s{sOFF}, s{sOFF}, 1024")
        a(f"s_mov_b32 s{sFOK}, 2")
    def xid_publish(tag):
        a(f"s_cmp_eq_u32 s{sNONCE}, 0")
        a(f"s_cbranch_scc1 L_xp{tag}")
        a(f"s_cmp_lg_u32 s{sXID}, 0")
        a(f"s_cbranch_scc1 L_xp{tag}")
        a(f"s_or_b32 s{sXID}, s{sNONCE}, s{sXCC}")
        a(f"s_lshl_b32 s{sT0}, s{sTB}, 7")
        a(f"s_lshl_b32 s{sT1}, s{sGI}, 2")
        a(f"s_add_u32 s{sT0}, s{sT0}, s{sT1}")
        a(f"s_add_u32 s{sT0}, s{sT0}, {WS_XI}")
        a(f"v_mov_b32 v{vP1}, 0")
        a(f"v_mov_b32 v{vF+5}, s{sXID}")
        a(f"buffer_store_dword v{vF+5}, v{vP1}, s[{sWS}:{sWS+3}], s{sT0} offen sc1")
        a.label(f"L_xp{tag}")
    def poller_step(p, check, can_first):
        lab = f"L_ps{p}"
        a(f"s_cmp_eq_u32 s{sPOLLER}, 1")
        a(f"s_cbranch_scc0 {lab}")
        xid_publish(p)
        a(f"s_cmp_lg_u32 s{sFOK}, 0")
        a(f"s_cbranch_scc1 {lab}_fok")
        if check:
            a("s_waitcnt vmcnt(0)")
            a(f"s_cmp_eq_u32 s{sNONCE}, 0")
            a(f"s_cbranch_scc1 {lab}_re")
            flag_cmp()
            a("s_cmp_eq_u64 vcc, exec")
            a(f"s_cbranch_scc0 {lab}_re")
            a(f"s_mov_b32 s{sFOK}, 1")
            a(f"s_branch {lab}_fok")
            a.label(f"{lab}_re")
            a(f"s_cmp_lg_u32 s{sNONCE}, 0")
            a(f"s_cbranch_scc1 {lab}_ld")
            a(f"v_readfirstlane_b32 s{sNONCE}, v{vNon}")
            a.label(f"{lab}_ld")
        a(f"v_mov_b32 v{vP1}, 128")
        a(f"buffer_load_dword v{vNon}, v{vP1}, s[{sDBG}:{sDBG+3}], 0 offen sc1")
        flag_loads()
        a(f"s_branch {lab}")
        a.label(f"{lab}_fok")
        if can_first:
            a(f"s_cmp_eq_u32 s{sFOK}, 1")
            a(f"s_cbranch_scc0 {lab}")
            first_kv()
        a.label(lab)
    for s_ in range(4): qreads(s_)
    a(f"s_cmp_eq_u32 s{sROLE}, 1")
    a("s_cbranch_scc1 L_c5_skip")
    wq_chunk(4)
    wq_chunk(5)
    a.label("L_c5_skip")
    for p in range(4):
        for j in range(8):
            s_ = 8 * p + j
            if j < 7:
                nxt = min(3, 7 - j)
                a(f"s_waitcnt lgkmcnt({3*nxt})")
                qmf(s_)
                if j + 4 < 8: qreads(s_ + 4)
            else:
                a("s_waitcnt lgkmcnt(0)")
                if p < 3:
                    lab = f"L_q{p}"
                    a(f"s_cmp_eq_u32 s{sROLE}, 1")
                    a(f"s_cbranch_scc1 {lab}_kv")
                    a(f"s_waitcnt vmcnt({[8, 8, 0][p]})")
                    a("s_barrier")
                    if p == 0:
                        wq_chunk(6); wq_chunk(7)
                    a(f"s_branch {lab}_j")
                    a.label(f"{lab}_kv")
                    a("s_barrier")
                    a.label(f"{lab}_j")
                    for k in range(3): qreads(8 * (p + 1) + k)
                    qmf(s_)
                    qreads(8 * (p + 1) + 3)
                    poller_step(p, check=(p > 0), can_first=(p == 2))
                    if p == 2:
                        a(f"s_cmp_eq_u32 s{sW}, 0")
                        a("s_cbranch_scc0 L_nocz")
                        a(f"v_mov_b32 v{RD}, 0")
                        a(f"ds_write_b32 v{RD}, v{RD} offset:{L_CNT3}")
                        a.label("L_nocz")
                    if "st3" in EXPT: stamp(a, 18 + p)
                else:
                    qmf(s_)
    stamp(a, 6)
    def poll(label, load, cmpcode, sleep=True):
        a(f"s_mov_b32 s{sT1}, 0")
        a.label(label)
        load()
        a("s_waitcnt vmcnt(0)")
        cmpcode()
        a("s_cmp_eq_u64 vcc, exec")
        a(f"s_cbranch_scc1 {label}_done")
        a(f"s_add_u32 s{sT1}, s{sT1}, 1")
        a(f"s_cmp_lt_u32 s{sT1}, {POLL_LIMIT}")
        a(f"s_cbranch_scc0 {label}_done")
        if sleep: a("s_sleep 1")
        a(f"s_branch {label}")
        a.label(f"{label}_done")
    a(f"s_mov_b32 s{sT0}, {hex(f2u(CQ))}")
    a(f"v_add_u32 v{vV}, {L_KV+1024}, v{vV}")
    a(f"v_and_b32 v{vT0}, 27, v{vL}")
    a(f"v_cmp_eq_u32 vcc, 16, v{vT0}")
    a(f"v_mov_b32 v{vT1}, 0x3f803f80")
    a(f"v_add_u32 v{vV2}, 0x10000, v{vV}")
    for i in range(16):
        a(f"v_cndmask_b32 v{V0+i}, 0, v{vT1}, vcc")
    a(f"s_mov_b32 s{sT1}, s{sT0}")
    for i in range(0, 16, 2):
        a(f"v_pk_mul_f32 {vr(ACC+i,2)}, {vr(ACC+i,2)}, s[{sT0}:{sT1}]")
    for j in range(4):
        a(f"v_cvt_pk_bf16_f32 v{QA+j}, v{ACC+2*j}, v{ACC+2*j+1}")
        a(f"v_cvt_pk_bf16_f32 v{QB+j}, v{ACC+8+2*j}, v{ACC+8+2*j+1}")
    a(f"s_cmp_eq_u32 s{sPOLLER}, 1")
    a("s_cbranch_scc0 L_nopoll")
    a(f"s_cmp_eq_u32 s{sFOK}, 2")
    a("s_cbranch_scc1 L_nopoll")
    a(f"s_cmp_eq_u32 s{sFOK}, 1")
    a("s_cbranch_scc1 L_dofirst")
    a("s_waitcnt vmcnt(0)")
    a(f"s_cmp_lg_u32 s{sNONCE}, 0")
    a("s_cbranch_scc0 L_getnonce")
    flag_cmp()
    a("s_cmp_eq_u64 vcc, exec")
    a("s_cbranch_scc1 L_dofirst")
    a("s_branch L_havenonce")
    a.label("L_getnonce")
    a(f"v_readfirstlane_b32 s{sNONCE}, v{vNon}")
    a(f"v_mov_b32 v{vP1}, 128")
    def ldn(): a(f"buffer_load_dword v{vNon}, v{vP1}, s[{sDBG}:{sDBG+3}], 0 offen sc1")
    def cmpn(): a(f"v_cmp_ne_u32 vcc, 0, v{vNon}")
    a(f"s_cmp_lg_u32 s{sNONCE}, 0")
    a("s_cbranch_scc1 L_havenonce")
    poll("L_polln", ldn, cmpn)
    a(f"v_readfirstlane_b32 s{sNONCE}, v{vNon}")
    a.label("L_havenonce")
    poll("L_poll", flag_loads, flag_cmp)
    a.label("L_dofirst")
    first_kv()
    a.label("L_nopoll")
    a(f"s_cmp_eq_u32 s{sPOLLER}, 1")
    a("s_cbranch_scc0 L_noxp")
    xid_publish(9)
    a.label("L_noxp")
    for i in range(0, 16, 2):
        a(f"v_pk_mov_b32 {vr(OA+i,2)}, 0, 0")
        a(f"v_pk_mov_b32 {vr(OB+i,2)}, 0, 0")
    a(f"v_lshrrev_b32 v{vT0}, 2, v{vL}")
    a(f"v_and_b32 v{vT1}, 3, v{vL}")
    a(f"v_lshlrev_b32 v{vT1}, 4, v{vT1}")
    a(f"v_lshl_add_u32 v{vWO}, v{vT0}, 10, v{vT1}")
    a(f"s_lshr_b32 s{sT0}, s{sGI}, 1")
    a(f"s_lshl_b32 s{sT0}, s{sT0}, 8")
    a(f"s_lshl_b32 s{sT1}, s{sC}, 6")
    a(f"s_add_u32 s{sT0}, s{sT0}, s{sT1}")
    a(f"v_add_u32 v{vWO}, s{sT0}, v{vWO}")
    a(f"v_lshrrev_b32 v{vT1}, 2, v{vN15}")
    a(f"v_lshl_add_u32 v{vT1}, v{vH}, 2, v{vT1}")
    a(f"v_lshlrev_b32 v{vWOr}, 6, v{vT1}")
    a(f"v_bfe_u32 v{vT1}, v{vL}, 4, 1")
    a(f"v_lshl_add_u32 v{vWOr}, v{vT1}, 5, v{vWOr}")
    a(f"v_and_b32 v{vT0}, 3, v{vN15}")
    a(f"v_lshl_add_u32 v{vWOr}, v{vT0}, 3, v{vWOr}")
    a(f"s_lshl_b32 s{sT0}, s{sW}, 12")
    a(f"v_add_u32 v{vWOr}, s{sT0}, v{vWOr}")
    a(f"v_mov_b32 v{IDX}, 0xdddddddd")
    a(f"s_lshl_b32 s{sOFF}, s{sB}, 17")
    a(f"s_add_u32 s{sOFF}, s{sOFF}, {WS_KV + 8192}")
    a(f"s_lshl_b32 s{sM0}, s{sC}, 11")
    a(f"s_add_u32 s{sOFF}, s{sOFF}, s{sM0}")
    a(f"s_add_u32 s{sM0}, s{sM0}, {L_KV + 8192}")
    vKd = 253
    a(f"v_mov_b32 v{vKd}, v{vK}")
    a(f"v_add_u32 v{vK}, {L_KV}, v{vK}")
    a(f"v_add_u32 v{vK2}, 0x10000, v{vK}")
    a(f"s_mov_b32 s{sPASS}, 1")
    a(f"s_lshr_b32 s{sKVI}, s{sW}, 2")
    a(f"v_and_b32 v{vG}, 31, v{vL}")
    a(f"v_lshlrev_b32 v{vG}, 2, v{vG}")
    a(f"s_lshl_b32 s{sT2}, s{sTB}, 1")
    a(f"s_add_u32 s{sT2}, s{sT2}, s{sTT}")
    a(f"s_lshl_b32 s{sT2}, s{sT2}, 7")
    a(f"s_add_u32 s{sT2}, s{sT2}, {WS_G}")
    a("s_waitcnt vmcnt(0)")
    a("s_barrier")
    stamp(a, 7)
    def kv_step():
        a(f"s_mov_b32 m0, s{sM0}")
        a(f"s_add_u32 s{sT0}, s{sOFF}, 1024")
        a(f"buffer_load_dwordx4 v{vKd}, s[{sWS}:{sWS+3}], s{sOFF} offen sc1 lds")
        a(f"s_add_u32 m0, s{sM0}, 1024")
        a(f"s_add_u32 s{sM0}, s{sM0}, 8192")
        a(f"buffer_load_dwordx4 v{vKd}, s[{sWS}:{sWS+3}], s{sT0} offen sc1 lds")
        a(f"s_add_u32 s{sOFF}, s{sOFF}, 8192")
    a(f"buffer_load_dword v{vG}, v{vG}, s[{sWS}:{sWS+3}], s{sT2} offen sc1")
    def ldK(buf, t):
        va = vK if t < 32 else vK2
        a(f"ds_read_b128 {vr(KB+4*buf,4)}, v{va} offset:{(t % 32)*2048}")
    def ldV(buf, t):
        va = vV if t < 32 else vV2
        off = (t % 32) * 2048
        a(f"s_mov_b64 exec, s[{sVM}:{sVM+1}]")
        a(f"ds_read_b128 {vr(V0+4*buf,4)}, v{va} offset:{off}")
        a(f"ds_read_b128 {vr(V1+4*buf,4)}, v{va} offset:{off+512}")
        a("s_mov_b64 exec, -1")
    def neg_bcast(C, m):
        for i in range(0, 16, 2):
            a(f"v_pk_mul_f32 {vr(C+i,2)}, {vr(m,2)}, -1.0 op_sel_hi:[0,0]")
    def crosshalf_max(m, t):
        a(f"v_mov_b32 v{t}, v{m}")
        a("s_nop 1")
        a(f"v_permlane32_swap_b32 v{m}, v{t}")
        a("s_nop 1")
        a(f"v_max_f32 v{m}, v{m}, v{t}")
    def rowmax(S, m):
        a(f"v_max3_f32 v{m}, v{S}, v{S+1}, v{S+2}")
        for i in range(3, 15, 2):
            a(f"v_max3_f32 v{m}, v{m}, v{S+i}, v{S+i+1}")
        a(f"v_max_f32 v{m}, v{m}, v{S+15}")
    M0r, M1r, M2r, M3r = WOA, WOA + 1, WOA + 2, WOA + 3
    ldK(0, 0)
    ldK(1, 1)
    ldV(0, 0)
    a("s_waitcnt lgkmcnt(3)")
    a(f"{MF} {vr(SA,16)}, {vr(KB,4)}, {vr(QA,4)}, 0")
    a(f"{MF} {vr(SB,16)}, {vr(KB,4)}, {vr(QB,4)}, 0")
    for i in range(8, 16, 2):
        pass
    a("s_nop 10")
    rowmax(SA, M0r); rowmax(SB, M2r)
    crosshalf_max(M0r, M1r); crosshalf_max(M2r, M3r)
    neg_bcast(CA, M0r); neg_bcast(CB, M2r)
    a("s_branch L_go")
    a.label("L_restart")
    for i in range(0, 16, 2):
        a(f"v_pk_mov_b32 {vr(OA+i,2)}, 0, 0")
        a(f"v_pk_mov_b32 {vr(OB+i,2)}, 0, 0")
    ldK(0, 0)
    ldK(1, 1)
    ldV(0, 0)
    a.label("L_go")
    for i in range(8, 16, 2):
        a(f"v_pk_mov_b32 {vr(SB+i,2)}, 0, 0")
    a("s_waitcnt lgkmcnt(0)")
    a(f"{MF} {vr(SA,16)}, {vr(KB,4)}, {vr(QA,4)}, {vr(CA,16)}")
    if "noprio" not in EXPT:
        a(f"s_cmp_ge_u32 s{sW}, 4")
        a("s_cbranch_scc0 L_noprio0")
        a("s_setprio 1")
        a.label("L_noprio0")
    a("s_nop 7")
    a("s_nop 1")
    stamp(a, 9)
    def ex(S, i): a(f"v_exp_f32 v{S+i}, v{S+i}")
    T0W = 16
    def wo_dma(f):
        a(f"s_lshl_b32 s{sT0}, s{sW}, 12")
        a(f"s_add_u32 m0, s{sT0}, {L_WOST + (f % 3)*1024}")
        a(f"s_mov_b32 s{sT1}, {f*16384}")
        a(f"buffer_load_dwordx4 v{vWO}, s[{sWO}:{sWO+3}], s{sT1} offen lds")
    def wo_read(f, dst):
        a(f"ds_read_b64_tr_b16 {vr(dst,2)}, v{vWOr} offset:{L_WOST + (f % 3)*1024}")
        a(f"ds_read_b64_tr_b16 {vr(dst+2,2)}, v{vWOr} offset:{L_WOST + (f % 3)*1024 + 512}")
    PSW = opt("psw", 53)
    for t in range(64):
        p = t & 1
        def sync(k, n):
            a(f"s_cmp_eq_u32 s{sPASS}, 1")
            a(f"s_cbranch_scc0 L_sy{k}_done")
            a(f"s_cmp_ge_u32 s{sW}, 4")
            a(f"s_cbranch_scc0 L_sy{k}_spin")
            if n is not None: a(f"s_waitcnt vmcnt({n})")
            a(f"v_mov_b32 v254, 1")
            a("s_mov_b64 exec, 1")
            a(f"ds_add_u32 v{vKd}, v254 offset:{L_CNT3}")
            a("s_mov_b64 exec, -1")
            a.label(f"L_sy{k}_spin")
            a(f"ds_read_b32 v254, v{vKd} offset:{L_CNT3}")
            a("s_waitcnt lgkmcnt(0)")
            a(f"v_readfirstlane_b32 s{sT0}, v254")
            a(f"s_cmp_ge_u32 s{sT0}, {4*k}")
            a(f"s_cbranch_scc0 L_sy{k}_spin")
            a.label(f"L_sy{k}_done")
        if t == 2:  sync(1, 2)
        if t == 6:  sync(2, 6)
        if t == 14: sync(3, 14)
        if t == 30: sync(4, None)
        if t == PSW and "noprio" not in EXPT:
            a("s_setprio 0")
        ex(SA, 0); ex(SA, 1)
        a(f"{SM} {vr(OB,16)}, {vr(V1+4*(p^1),4)}, {vr(SB+8,8)}, v{IDX}")
        ex(SA, 2); ex(SA, 3); ex(SA, 4)
        a(f"{MF} {vr(SB,16)}, {vr(KB+4*p,4)}, {vr(QB,4)}, {vr(CB,16)}")
        nld = 0
        if t + 2 < 64: ldK(p, t + 2); nld += 1
        if t + 1 < 64: ldV(p ^ 1, t + 1); nld += 2
        for i in range(5, 10): ex(SA, i)
        a(f"s_waitcnt lgkmcnt({nld})")
        a(f"{SM} {vr(OA,16)}, {vr(V0+4*p,4)}, {vr(SA,8)}, v{IDX}")
        for i in range(10, 13): ex(SA, i)
        if t <= 14:
            a(f"s_cmp_eq_u32 s{sKVI}, 1")
            a(f"s_cbranch_scc0 L_nokv{t}")
            kv_step()
            a.label(f"L_nokv{t}")
        if t == 48:
            a(f"v_and_b32 v254, 7, v{vL}")
            a(f"v_lshlrev_b32 v254, 2, v254")
            a(f"s_lshl_b32 s{sT0}, s{sTB}, 7")
            a(f"s_add_u32 s{sT0}, s{sT0}, {WS_XI}")
            a(f"buffer_load_dword v253, v254, s[{sWS}:{sWS+3}], s{sT0} offen sc1")
            a(f"v_mov_b32 v254, 128")
            a(f"buffer_load_dword v254, v254, s[{sDBG}:{sDBG+3}], 0 offen sc1")
        if t == 60:
            a(f"s_lshl_b32 s{sT0}, s{sTB}, 1")
            a(f"s_add_u32 s{sT0}, s{sT0}, s{sTT}")
            a(f"s_lshl_b32 s{sT0}, s{sT0}, 6")
            a(f"s_lshl_b32 s{sT1}, s{sGI}, 3")
            a(f"s_add_u32 s{sT0}, s{sT0}, s{sT1}")
            a(f"s_lshl_b32 s{sT1}, s{sC}, 1")
            a(f"s_add_u32 s{sT0}, s{sT0}, s{sT1}")
            a(f"s_lshl_b32 s{sT0}, s{sT0}, 10")
            a(f"s_add_u32 s{sSIG}, s{sT0}, {WS_O}")
        fd = t - T0W
        if 0 <= fd < NFR: wo_dma(fd)
        for i in range(13, 16): ex(SA, i)
        ex(SB, 0); ex(SB, 1)
        a(f"{SM} {vr(OA,16)}, {vr(V1+4*p,4)}, {vr(SA+8,8)}, v{IDX}")
        ex(SB, 2); ex(SB, 3); ex(SB, 4)
        if t + 1 < 64:
            a(f"{MF} {vr(SA,16)}, {vr(KB+4*(p^1),4)}, {vr(QA,4)}, {vr(CA,16)}")
        else:
            a("s_nop 0")
        for i in range(5, 8): ex(SB, i)
        fr = t - T0W - 2
        if 0 <= fr < NFR:
            outstanding_after = min(fd, NFR - 1) - fr
            a(f"s_waitcnt vmcnt({outstanding_after})")
            wo_read(fr, WOA + 4 * fr)
        for i in range(8, 10): ex(SB, i)
        a(f"{SM} {vr(OB,16)}, {vr(V0+4*p,4)}, {vr(SB,8)}, v{IDX}")
        for i in range(10, 16): ex(SB, i)
    a("s_nop 1")
    a(f"{SM} {vr(OB,16)}, {vr(V1+4,4)}, {vr(SB+8,8)}, v{IDX}")
    for f in range(NFR, 32): wo_dma(f)
    TT = SA
    a(f"s_waitcnt vmcnt({32 - NFR})")
    a(f"s_nop 0")
    a(f"v_or_b32 v254, s{sXCC}, v254")
    a(f"v_cmp_eq_u32 vcc, v253, v254")
    a(f"s_cmp_eq_u64 vcc, exec")
    a(f"s_cselect_b32 s{sFAST}, 1, 0")
    if "nofast" in EXPT: a(f"s_mov_b32 s{sFAST}, 0")
    a(f"v_sub_f32 v{TT+2}, 1.0, v{vG}")
    a(f"v_cvt_pk_bf16_f32 v{TT+2}, v{TT+2}, v{TT+2}")
    a(f"v_lshlrev_b32 v{TT+2}, 16, v{TT+2}")
    a(f"s_cmp_eq_u32 s{sB}, 0")
    a(f"s_cselect_b64 s[{sLM}:{sLM+1}], -1, 0")
    a(f"v_cndmask_b32 v{TT+2}, v{TT+2}, v{vG}, s[{sLM}:{sLM+1}]")
    stamp(a, 10)
    a(f"v_pk_mul_f32 {vr(TT+4,2)}, {vr(OA,2)}, 0")
    for i in range(2, 8, 2): a(f"v_pk_fma_f32 {vr(TT+4,2)}, {vr(OA+i,2)}, 0, {vr(TT+4,2)}")
    for i in range(0, 8, 2): a(f"v_pk_fma_f32 {vr(TT+4,2)}, {vr(OB+i,2)}, 0, {vr(TT+4,2)}")
    a(f"v_max_f32 v{TT+1}, v{OA+8}, v{OB+8}")
    a(f"v_add_f32 v{TT}, v{TT+4}, v{TT+5}")
    a(f"v_add_f32 v{TT}, v{TT}, v{TT+1}")
    a(f"s_mov_b32 s{sT0}, {hex(f2u(2.0**60))}")
    a(f"v_cmp_gt_f32 vcc, s{sT0}, v{TT}")
    a(f"s_cmp_eq_u32 s{sPASS}, 2")
    a("s_cbranch_scc1 L_fin")
    a("s_cmp_eq_u64 vcc, exec")
    a("s_cbranch_scc1 L_fin")
    a(f"s_mov_b32 s{sPASS}, 2")
    a(f"s_mov_b32 s{sKVI}, 0")
    FM0, FM1, FM2, FM3 = KB + 4, KB + 5, KB + 6, KB + 7
    a(f"v_mov_b32 v{FM0}, 0xff800000")
    a(f"v_mov_b32 v{FM2}, 0xff800000")
    a(f"v_mov_b32 v{FM1}, v{vK}")
    a(f"s_mov_b32 s{sT0}, 0")
    a.label("L_maxloop")
    a(f"ds_read_b128 {vr(KB,4)}, v{FM1}")
    a("s_waitcnt lgkmcnt(0)")
    a(f"{MF} {vr(SA,16)}, {vr(KB,4)}, {vr(QA,4)}, 0")
    a(f"{MF} {vr(SB,16)}, {vr(KB,4)}, {vr(QB,4)}, 0")
    a("s_nop 15")
    for i in range(0, 16, 2):
        a(f"v_max3_f32 v{FM0}, v{FM0}, v{SA+i}, v{SA+i+1}")
        a(f"v_max3_f32 v{FM2}, v{FM2}, v{SB+i}, v{SB+i+1}")
    a(f"v_add_u32 v{FM1}, 2048, v{FM1}")
    a(f"s_add_u32 s{sT0}, s{sT0}, 1")
    a(f"s_cmp_lt_u32 s{sT0}, 64")
    a("s_cbranch_scc1 L_maxloop")
    crosshalf_max(FM0, FM1); crosshalf_max(FM2, FM3)
    neg_bcast(CA, FM0); neg_bcast(CB, FM2)
    a("s_waitcnt vmcnt(0)")
    a("s_branch L_restart")
    a.label("L_fin")
    a(f"v_rcp_f32 v{TT}, v{OA+8}")
    a(f"v_rcp_f32 v{TT+1}, v{OB+8}")
    a("s_nop 0")
    a(f"v_mul_f32 v{TT}, v{TT}, v{TT+2}")
    a(f"v_mul_f32 v{TT+1}, v{TT+1}, v{TT+2}")
    for i in range(0, 8, 2):
        a(f"v_pk_mul_f32 {vr(OA+i,2)}, {vr(OA+i,2)}, {vr(TT,2)} op_sel_hi:[1,0]")
        a(f"v_pk_mul_f32 {vr(OB+i,2)}, {vr(OB+i,2)}, {vr(TT,2)} op_sel:[0,1] op_sel_hi:[1,1]")
    for j in range(4):
        a(f"v_cvt_pk_bf16_f32 v{SA+4+j}, v{OA+2*j}, v{OA+2*j+1}")
        a(f"v_cvt_pk_bf16_f32 v{SA+8+j}, v{OB+2*j}, v{OB+2*j+1}")
    vS = SB
    a(f"v_lshlrev_b32 v{vS}, 4, v{vL}")
    if "ofl" in "".join(EXPT):
        fl = "nt" if "oflnt" in EXPT else ("sc0" if "oflsc0" in EXPT else "sc0 nt")
        a(f"s_cmp_eq_u32 s{sFAST}, 1")
        a("s_cbranch_scc1 L_ost_fast")
        a(f"buffer_store_dwordx4 {vr(SA+4,4)}, v{vS}, s[{sWS}:{sWS+3}], s{sSIG} offen sc1")
        a(f"buffer_store_dwordx4 {vr(SA+8,4)}, v{vS}, s[{sWS}:{sWS+3}], s{sSIG} offen offset:1024 sc1")
        a("s_branch L_ost_j")
        a.label("L_ost_fast")
        a(f"buffer_store_dwordx4 {vr(SA+4,4)}, v{vS}, s[{sWS}:{sWS+3}], s{sSIG} offen {fl}")
        a(f"buffer_store_dwordx4 {vr(SA+8,4)}, v{vS}, s[{sWS}:{sWS+3}], s{sSIG} offen offset:1024 {fl}")
        a.label("L_ost_j")
    else:
        a(f"buffer_store_dwordx4 {vr(SA+4,4)}, v{vS}, s[{sWS}:{sWS+3}], s{sSIG} offen sc1")
        a(f"buffer_store_dwordx4 {vr(SA+8,4)}, v{vS}, s[{sWS}:{sWS+3}], s{sSIG} offen offset:1024 sc1")
    a("s_waitcnt vmcnt(2)")
    XFR = {}
    for k, f in enumerate(range(NFR, 32)):
        XFR[f] = [KB, KB + 4, V0][k]
        wo_read(f, XFR[f])
    a(f"s_and_b32 s{sT2}, s{sGI}, 1")
    a(f"s_lshl_b32 s{sT3}, s{sTB}, 1")
    a(f"s_add_u32 s{sT3}, s{sT3}, s{sT2}")
    a(f"s_lshl_b32 s{sT4}, s{sTT}, 5")
    a(f"s_lshl_b32 s{sT5}, s{sC}, 1")
    a(f"s_add_u32 s{sT4}, s{sT4}, s{sT5}")
    a(f"s_lshl_b32 s{sM0}, s{sT4}, 10")
    a(f"s_lshl_b32 s{sOFF}, s{sT3}, 16")
    a(f"s_add_u32 s{sOFF}, s{sOFF}, s{sM0}")
    a(f"s_add_u32 s{sOFF}, s{sOFF}, {WS_O}")
    a(f"s_add_u32 s{sM0}, s{sM0}, {L_KV}")
    vB = SB + 6
    a(f"s_lshl_b32 s{sT4}, s{sTT}, 15")
    a(f"s_add_u32 s{sT4}, s{sT4}, {L_KV}")
    a(f"v_add_u32 v{vB}, s{sT4}, v{vS}")
    vO = SB + 7
    a(f"v_and_b32 v{vO}, 31, v{vL}")
    a(f"s_lshl_b32 s{sT3}, s{sT3}, 5")
    a(f"v_add_u32 v{vO}, s{sT3}, v{vO}")
    a(f"v_lshlrev_b32 v{vO}, 10, v{vO}")
    a(f"v_lshrrev_b32 v{SB+3}, 5, v{vL}")
    a(f"v_lshl_add_u32 v{vO}, v{SB+3}, 4, v{vO}")
    a(f"s_lshr_b32 s{sT2}, s{sGI}, 1")
    a(f"s_lshl_b32 s{sT2}, s{sT2}, 8")
    a(f"s_lshl_b32 s{sT3}, s{sC}, 6")
    a(f"s_add_u32 s{sT2}, s{sT2}, s{sT3}")
    a(f"s_lshl_b32 s{sT3}, s{sTT}, 5")
    a(f"s_add_u32 s{sT2}, s{sT2}, s{sT3}")
    a(f"v_add_u32 v{vO}, s{sT2}, v{vO}")
    vXw, vXr = SB + 3, SB + 4
    a(f"s_lshl_b32 s{sT0}, s{sW}, 11")
    a(f"v_add_u32 v{vXw}, s{sT0}, v{vS}")
    a(f"s_xor_b32 s{sT1}, s{sW}, 4")
    a(f"s_lshl_b32 s{sT1}, s{sT1}, 11")
    a(f"v_add_u32 v{vXr}, s{sT1}, v{vS}")
    a("s_waitcnt vmcnt(0)")
    a("s_barrier")
    stamp(a, 11)
    a(f"s_cmp_eq_u32 s{sPOLLER}, 1")
    a("s_cbranch_scc0 L_nosig2")
    a(f"s_lshl_b32 s{sT0}, s{sTB}, 7")
    a(f"s_add_u32 s{sT0}, s{sT0}, {WS_F}")
    a(f"s_lshl_b32 s{sT1}, s{sGI}, 2")
    a(f"v_mov_b32 v{SB+1}, s{sT1}")
    a(f"v_mov_b32 v{SB+2}, s{sNONCE}")
    a(f"v_cmp_eq_u32 vcc, 0, v{vL}")
    a(f"s_and_saveexec_b64 s[{sT4}:{sT5}], vcc")
    a(f"s_cmp_eq_u32 s{sFAST}, 1")
    a("s_cbranch_scc1 L_fst_fast")
    a(f"buffer_store_dword v{SB+2}, v{SB+1}, s[{sWS}:{sWS+3}], s{sT0} offen sc1")
    a("s_branch L_fst_j")
    a.label("L_fst_fast")
    a(f"buffer_store_dword v{SB+2}, v{SB+1}, s[{sWS}:{sWS+3}], s{sT0} offen")
    a.label("L_fst_j")
    a(f"s_mov_b64 exec, s[{sT4}:{sT5}]")
    a(f"v_and_b32 v{SB+1}, 7, v{vL}")
    a(f"v_lshlrev_b32 v{SB+1}, 2, v{SB+1}")
    def ld2(): a(f"buffer_load_dword v{SB+2}, v{SB+1}, s[{sWS}:{sWS+3}], s{sT0} offen sc1")
    def cmp2(): a(f"v_cmp_eq_u32 vcc, s{sNONCE}, v{SB+2}")
    poll("L_poll2", ld2, cmp2, sleep=False)
    a.label("L_nosig2")
    a("s_barrier")
    stamp(a, 14)
    def o_dma(q):
        for i in range(2):
            a(f"s_add_u32 m0, s{sM0}, {(8*q+i)*1024}")
            a(f"s_add_u32 s{sT0}, s{sOFF}, {(8*q+i)*1024}")
            a(f"buffer_load_dwordx4 v{vS}, s[{sWS}:{sWS+3}], s{sT0} offen sc1 lds")
    o_dma(0); o_dma(1)
    ACC3 = OA
    BF = CA
    def afr(s): return XFR[s] if s in XFR else WOA + 4 * s
    for q in range(4):
        a(f"s_waitcnt vmcnt({[2, 4, 2, 0][q]})")
        if q == 0:
            pass
        a("s_barrier")
        if q == 0:
            stamp(a, 15)
        for i in range(8):
            a(f"ds_read_b128 {vr(BF+4*i,4)}, v{vB} offset:{(8*q+i)*1024}")
        if q == 0:
            o_dma(2); o_dma(3)
        for i in range(8):
            a(f"s_waitcnt lgkmcnt({7-i})")
            a(f"{MF} {vr(ACC3,16)}, {vr(afr(8*q+i),4)}, {vr(BF+4*i,4)}, {vr(ACC3,16) if (q or i) else '0'}")
    stamp(a, 16)
    a("s_nop 15")
    a(f"s_cmp_eq_u32 s{sTT}, 0")
    a("s_cbranch_scc0 L_x_b1")
    a(f"ds_write_b128 v{vXw}, {vr(ACC3+8,4)} offset:{L_XCH}")
    a(f"ds_write_b128 v{vXw}, {vr(ACC3+12,4)} offset:{L_XCH+1024}")
    a("s_waitcnt lgkmcnt(0)")
    a("s_barrier")
    a(f"ds_read_b128 {vr(CB,4)}, v{vXr} offset:{L_XCH}")
    a(f"ds_read_b128 {vr(CB+4,4)}, v{vXr} offset:{L_XCH+1024}")
    a("s_waitcnt lgkmcnt(0)")
    for i in range(0, 8, 2):
        a(f"v_pk_add_f32 {vr(CB+i,2)}, {vr(CB+i,2)}, {vr(ACC3+i,2)}")
    a("s_branch L_x_j")
    a.label("L_x_b1")
    a(f"ds_write_b128 v{vXw}, {vr(ACC3,4)} offset:{L_XCH}")
    a(f"ds_write_b128 v{vXw}, {vr(ACC3+4,4)} offset:{L_XCH+1024}")
    a("s_waitcnt lgkmcnt(0)")
    a("s_barrier")
    a(f"ds_read_b128 {vr(CB,4)}, v{vXr} offset:{L_XCH}")
    a(f"ds_read_b128 {vr(CB+4,4)}, v{vXr} offset:{L_XCH+1024}")
    a("s_waitcnt lgkmcnt(0)")
    for i in range(0, 8, 2):
        a(f"v_pk_add_f32 {vr(CB+i,2)}, {vr(CB+i,2)}, {vr(ACC3+8+i,2)}")
    a.label("L_x_j")
    R = SA + 4
    for i in range(0, 8, 2):
        a(f"v_cvt_pk_bf16_f32 v{R+i//2}, v{CB+i}, v{CB+i+1}")
    a("s_nop 1")
    a(f"v_permlane32_swap_b32 v{R}, v{R+2}")
    a(f"v_permlane32_swap_b32 v{R+1}, v{R+3}")
    a(f"buffer_store_dwordx4 {vr(R,4)}, v{vO}, s[{sOUT}:{sOUT+3}], 0 offen {'sc1' if 'osc1' in EXPT else ''} {'nt' if 'ont' in EXPT else ''} {'sc0 sc1' if 'osys' in EXPT else ''}")
    if PROF:
        a("s_waitcnt vmcnt(0)")
        stamp(a, 17)
        stamp_rt(a, 31)
        stamp_flush(a, vL, SB + 3)
    a.label("L_end")
    a("s_endpgm")
    return a, kdesc(KNAME, 256)

def build(path):
    ref = open("cdna_kernels/" + NAME + ".s.ref").read().split("\n")
    hdr = [l for l in ref if l.startswith(";") and "@launch" not in l and "Override launch" not in l and "grid=ceil" not in l][:16]
    k, d = gen_fused()
    errs = check(k.lines, "fused")
    for e in errs[:10]: print("HAZARD", e)
    out = "\n".join(hdr) + "\n"
    out += "; @launch grid=(256,1,1) block=(512,1,1) lds=163840\n"
    out += '.amdgcn_target "amdgcn-amd-amdhsa--gfx950"\n.text\n'
    out += k.text()
    out += '.section .rodata,"a"\n.p2align 6\n' + d
    open(path, "w").write(out)
    return len(errs)

if __name__ == "__main__":
    for arg in list(sys.argv):
        if arg.startswith("--x="):
            EXPT.update(arg[4:].split(",")); sys.argv.remove(arg)
    if "--prof" in sys.argv:
        PROF = True; sys.argv.remove("--prof")
    p = sys.argv[1] if len(sys.argv) > 1 else "f4.s"
    n = build(p)
    print("written", p, "hazards:", n)
```
